```python
import torch

def _softmax(x, axis=-1):
    return torch.softmax(x, dim=axis)
def _gelu(x):
    return torch.nn.functional.gelu(x, approximate="tanh")
def _silu(x):
    return torch.nn.functional.silu(x)
def _sigmoid(x):
    return torch.sigmoid(x)
def _layernorm(x, axis=-1, eps=1e-5):
    m = x.mean(dim=axis, keepdim=True)
    v = x.var(dim=axis, keepdim=True, unbiased=False)
    return (x - m) / torch.sqrt(v + eps)
def _scatter_add(tgt, idx, src, axis=0):
    return tgt.clone().index_add_(axis, idx, src)
def _segment_sum(src, seg, n):
    out = torch.zeros((n,) + src.shape[1:], dtype=src.dtype)
    return out.index_add_(0, seg, src)
def _pad(x, pw):
    flat = tuple(v for pair in reversed(pw) for v in pair)
    return torch.nn.functional.pad(x, flat)

kernel_name = 'standalone__sequential_behavior_din__recsys'

def setup_inputs():

    _w = (lambda a: (lambda t: t.to(torch.bfloat16) if t.is_floating_point() else t)(torch.as_tensor(a)))
    B, L, D = 4096, 200, 64
    H = D
    return {
        "target": _w((lambda *s: torch.randn(*s, dtype=torch.bfloat16) * 1.6)(B, D)),
        "hist": _w((lambda *s: torch.randn(*s, dtype=torch.bfloat16) * 1.6)(B, L, D)),
        "mask": _w((lambda lo, hi, *s: torch.randint(lo, hi, s))(0, 2, B, L).to(float)),
        "w1": _w((lambda *s: torch.randn(*s, dtype=torch.bfloat16) * 1.6)(4 * D, H) * (4 * D) ** -0.5),
        "b1": _w((lambda *s: torch.randn(*s, dtype=torch.bfloat16) * 1.6)(H) * 0.1),
        "w2": _w((lambda *s: torch.randn(*s, dtype=torch.bfloat16) * 0.05)(H, 1) * H ** -0.5),
        "b2": _w((lambda *s: torch.randn(*s, dtype=torch.bfloat16) * 0.05)(1) * 0.1),
    }

def reference(target, hist, mask, w1, b1, w2, b2):
    L = hist.shape[1]
    tgt = (lambda x, n, axis: torch.repeat_interleave(x, n, dim=axis))(target[:, None, :], L, axis=1)
    feat = torch.concatenate([hist, tgt, hist - tgt, hist * tgt], axis=-1)
    h = _sigmoid(feat @ w1 + b1)
    scores = (h @ w2 + b2)[..., 0] * mask
    return torch.einsum('bl,bld->bd', scores, hist)
```

```python
import sys

NAME = "standalone__sequential_behavior_din__recsys"
OPT = dict(nt_hist=" nt", nt_mask=" nt", nt_out="", nslot=3)
for a in sys.argv[2:]:
    k, v = a.split("=", 1)
    OPT[k] = v if k.startswith("nt_") else int(v)
    if k.startswith("nt_") and v:
        OPT[k] = " " + v.replace("+", " ")

out = []
def e(s=""):
    out.append(s)

NSLOT = OPT["nslot"]
RING_PER_WAVE = NSLOT * 2048
RING = 0
LIST = RING + 16 * RING_PER_WAVE
PB = LIST + 16 * 1024
WB = PB + 16384
QB = WB + 16384
BB = QB + 8192
LDS_BYTES = BB + 256
assert LDS_BYTES <= 163840

M, C, D3, W2, B2, Z, HB, HT, D2, SP = 0, 32, 48, 64, 72, 76, 92, 100, 108, 112
vA0, vA1 = 114, 115
vT = [116, 117, 118, 119]
vL, vDC0, vDC1, vML = 120, 121, 122, 123
vI0, vI1 = D2, D2 + 1
MK = 124
vLane, vTmp = 124, 125

def vr(b, n=1):
    return f"v{b}" if n == 1 else f"v[{b}:{b+n-1}]"

sT, sH, sMk, sW1, sB1, sW2, sB2, sO = 4, 6, 8, 10, 12, 14, 16, 18
sWave, sB = 20, 21
rH, rMk, rT, rW1, rB1, rW2, rO, rB2 = 24, 28, 32, 36, 40, 44, 48, 52
sRing, sList, sN, sNT = 56, 57, 58, 59
sC0, sC1, sC2, sC3 = 60, 62, 64, 66
sK0, sK1, sK2, sK3 = 68, 69, 70, 71
sScale, sTmp, sTmp2 = 72, 73, 74
sBad = 76
sDmy = 78
sP1, sP2, sP3 = 80, 81, 82

def srd(r, base, nbytes):
    e(f"  s_mov_b32 s{r}, s{base}")
    e(f"  s_and_b32 s{r+1}, s{base+1}, 0xffff")
    e(f"  s_mov_b32 s{r+2}, {nbytes}")
    e(f"  s_mov_b32 s{r+3}, 0x20000")

def srd_off(r, base, mul, nbytes):
    e(f"  s_mul_i32 s{sTmp}, s{sB}, {mul}")
    e(f"  s_add_u32 s{r}, s{base}, s{sTmp}")
    e(f"  s_addc_u32 s{r+1}, s{base+1}, 0")
    e(f"  s_and_b32 s{r+1}, s{r+1}, 0xffff")
    e(f"  s_mov_b32 s{r+2}, {nbytes}")
    e(f"  s_mov_b32 s{r+3}, 0x20000")

def swz(dst, row, tmp):
    e(f"  v_and_b32 v{tmp}, 14, v{row}")
    e(f"  v_lshlrev_b32 v{tmp}, 1, v{tmp}")
    e(f"  v_lshrrev_b32 v{dst}, v{tmp}, v{vTab}")
    e(f"  v_and_b32 v{dst}, 7, v{dst}")

hdr = open("cdna_kernels/" + NAME + ".s.ref").read().split("; Override launch")[0]
e(hdr.rstrip())
e(f"; @launch grid=(256,1,1) block=(1024,1,1) lds={LDS_BYTES}")
e('.amdgcn_target "amdgcn-amd-amdhsa--gfx950"')
e(".text")
e(f".globl {NAME}_kernel")
e(".p2align 8")
e(f".type {NAME}_kernel,@function")
e(f"{NAME}_kernel:")
e("  s_cmp_ge_u32 s2, 256")
e("  s_cbranch_scc1 L_end")
e("  s_load_dwordx16 s[4:19], s[0:1], 0")
e(f"  v_and_b32 v{vLane}, 63, v0")
e(f"  v_lshrrev_b32 v{vTmp}, 6, v0")
e(f"  s_lshl_b32 s{sB}, s2, 4")
e(f"  v_readfirstlane_b32 s{sWave}, v{vTmp}")
t0, t1, t2, t3, t4, vTab = Z, Z + 1, Z + 2, Z + 3, Z + 4, Z + 5
e(f"  v_mov_b32 v{vTab}, 0x31756420")
e(f"  s_add_u32 s{sB}, s{sB}, s{sWave}")
e(f"  s_mul_i32 s{sRing}, s{sWave}, {RING_PER_WAVE}")
e(f"  s_lshl_b32 s{sList}, s{sWave}, 10")
e(f"  s_add_u32 s{sList}, s{sList}, {LIST}")
e(f"  v_and_b32 v{t0}, 15, v{vLane}")
e(f"  v_lshrrev_b32 v{t1}, 4, v{vLane}")
swz(t2, t0, t3)
e(f"  v_xor_b32 v{t2}, v{t2}, v{t1}")
e(f"  v_lshlrev_b32 v{t2}, 4, v{t2}")
e(f"  v_lshl_add_u32 v{t2}, v{t0}, 7, v{t2}")
e(f"  v_add_u32 v{vA0}, s{sRing}, v{t2}")
e(f"  v_xor_b32 v{vA1}, 64, v{vA0}")
e(f"  v_lshrrev_b32 v{t2}, 2, v{t0}")
e(f"  v_lshl_add_u32 v{t2}, v{t1}, 2, v{t2}")
swz(t4, t2, t3)
e(f"  v_bfe_u32 v{t3}, v{vLane}, 1, 1")
e(f"  v_xor_b32 v{t4}, v{t4}, v{t3}")
e(f"  v_lshlrev_b32 v{t4}, 4, v{t4}")
e(f"  v_lshl_add_u32 v{t4}, v{t2}, 7, v{t4}")
e(f"  v_and_b32 v{t3}, 1, v{vLane}")
e(f"  v_lshl_add_u32 v{t4}, v{t3}, 3, v{t4}")
e(f"  v_add_u32 v{vT[0]}, s{sRing}, v{t4}")
for d in range(1, 4):
    e(f"  v_xor_b32 v{vT[d]}, {32*d}, v{vT[0]}")
e(f"  v_lshrrev_b32 v{t2}, 3, v{vLane}")
e(f"  v_and_b32 v{t1}, 7, v{vLane}")
swz(t4, t2, t3)
e(f"  v_xor_b32 v{t4}, v{t4}, v{t1}")
e(f"  v_lshlrev_b32 v{vDC0}, 4, v{t4}")
e(f"  v_lshl_add_u32 v{vL}, v{t2}, 2, s{sList}")
e(f"  v_add_u32 v{t2}, 8, v{t2}")
swz(t4, t2, t3)
e(f"  v_xor_b32 v{t4}, v{t4}, v{t1}")
e(f"  v_lshlrev_b32 v{vDC1}, 4, v{t4}")
e(f"  v_lshrrev_b32 v{t1}, 4, v{vLane}")
e(f"  v_lshl_add_u32 v{vML}, v{t1}, 4, s{sList}")
for i in range(4):
    e(f"  v_mov_b32 v{HB+i}, 0xff")
e(f"  v_lshl_add_u32 v{t0}, v{vLane}, 4, s{sList}")
e(f"  ds_write_b128 v{t0}, {vr(HB,4)}")
W1R = D3
for i in range(16):
    e(f"  v_mov_b32 v{W1R+i}, 0")
e(f"  v_mov_b32 v{B2}, 0")
e(f"  v_mov_b32 v{D2}, 0")
vMo, vTo, vWo, vW2o, vB1o = Z + 6, Z + 7, Z + 8, Z + 9, Z + 10
e(f"  v_lshlrev_b32 v{vMo}, 3, v{vLane}")
e(f"  v_lshrrev_b32 v{t1}, 4, v{vLane}")
e(f"  v_lshlrev_b32 v{vTo}, 4, v{t1}")
e(f"  v_lshlrev_b32 v{vW2o}, 3, v{t1}")
e(f"  v_lshlrev_b32 v{vB1o}, 1, v{vLane}")
e(f"  s_lshl_b32 s{sTmp2}, s{sWave}, 9")
e(f"  v_add_u32 v{vWo}, s{sTmp2}, v{vB1o}")
vR = [Z + 11, Z + 12, Z + 13, Z + 14]
e(f"  v_lshlrev_b32 v{vR[0]}, 2, v{vLane}")
for i in range(1, 4):
    e(f"  v_add_u32 v{vR[i]}, {i}, v{vR[0]}")
e(f"  s_mov_b32 s{sK0}, 0x7fff7fff")
e(f"  s_mov_b32 s{sK1}, 0xffff")
e(f"  s_mov_b32 s{sK2}, 0xffff0000")
e(f"  s_mov_b32 s{sScale}, 0xbfb8aa3b")
e(f"  s_mov_b32 s{sP1}, 8192")
e(f"  s_mov_b32 s{sP2}, 16384")
e(f"  s_mov_b32 s{sP3}, 24576")
e("  s_waitcnt lgkmcnt(0)")
srd_off(rMk, sMk, 400, 400)
X0 = HB
e(f"  buffer_load_dwordx2 {vr(X0,2)}, v{vMo}, s[{rMk}:{rMk+3}], 0 offen{OPT['nt_mask']}")
srd_off(rT, sT, 128, 128)
e(f"  buffer_load_dwordx4 {vr(HT,4)}, v{vTo}, s[{rT}:{rT+3}], 0 offen")
e(f"  buffer_load_dwordx4 {vr(HT+4,4)}, v{vTo}, s[{rT}:{rT+3}], 0 offen offset:64")
srd(rW1, sW1, 32768)
for part, so in enumerate(["0", f"s{sP1}", f"s{sP2}", f"s{sP3}"]):
    for k in range(4):
        e(f"  buffer_load_short_d16_hi v{W1R+4*part+k}, v{vWo}, s[{rW1}:{rW1+3}], {so} offen offset:{128*k}")
srd(rW2, sW2, 128)
for tau in range(4):
    e(f"  buffer_load_dwordx2 {vr(W2+2*tau,2)}, v{vW2o}, s[{rW2}:{rW2+3}], 0 offen offset:{32*tau}")
srd(rB2, sB2, 2)
e(f"  v_mov_b32 v{vTmp}, 0")
e(f"  buffer_load_short_d16_hi v{B2}, v{vTmp}, s[{rB2}:{rB2+3}], 0 offen")
srd(rB1, sB1, 128)
e(f"  buffer_load_short_d16_hi v{D2}, v{vB1o}, s[{rB1}:{rB1+3}], 0 offen")
srd_off(rH, sH, 25600, 25600)
srd_off(rO, sO, 128, 128)
NLOADS = 1 + 2 + 16 + 4 + 1 + 1
e(f"  s_waitcnt vmcnt({NLOADS-1})")
y0, y1 = Z, Z + 1
pos = [Z + 2, Z + 3, Z + 4, Z + 5]
en = [M, M + 1, M + 2, M + 3]
ad = [M + 4, M + 5, M + 6, M + 7]
e(f"  v_and_b32 v{y0}, s{sK0}, v{X0}")
e(f"  v_and_b32 v{y1}, s{sK0}, v{X0+1}")
e(f"  v_cmp_ne_u16_e64 s[{sC0}:{sC0+1}], 0, v{y0}")
e(f"  v_cmp_lt_u32_e64 s[{sC1}:{sC1+1}], s{sK1}, v{y0}")
e(f"  v_cmp_ne_u16_e64 s[{sC2}:{sC2+1}], 0, v{y1}")
e(f"  v_cmp_lt_u32_e64 s[{sC3}:{sC3+1}], s{sK1}, v{y1}")
e(f"  v_lshl_or_b32 v{en[0]}, v{X0}, 16, v{vR[0]}")
e(f"  v_and_or_b32 v{en[1]}, v{X0}, s{sK2}, v{vR[1]}")
e(f"  v_mbcnt_lo_u32_b32 v{pos[0]}, s{sC0}, 0")
e(f"  v_mbcnt_hi_u32_b32 v{pos[0]}, s{sC0+1}, v{pos[0]}")
for c in (sC1, sC2, sC3):
    e(f"  v_mbcnt_lo_u32_b32 v{pos[0]}, s{c}, v{pos[0]}")
    e(f"  v_mbcnt_hi_u32_b32 v{pos[0]}, s{c+1}, v{pos[0]}")
e(f"  v_lshl_or_b32 v{en[2]}, v{X0+1}, 16, v{vR[2]}")
e(f"  v_and_or_b32 v{en[3]}, v{X0+1}, s{sK2}, v{vR[3]}")
e(f"  v_addc_co_u32_e64 v{pos[1]}, s[{sDmy}:{sDmy+1}], 0, v{pos[0]}, s[{sC0}:{sC0+1}]")
e(f"  v_lshl_add_u32 v{ad[0]}, v{pos[0]}, 2, s{sList}")
e(f"  v_addc_co_u32_e64 v{pos[2]}, s[{sDmy}:{sDmy+1}], 0, v{pos[1]}, s[{sC1}:{sC1+1}]")
e(f"  v_lshl_add_u32 v{ad[1]}, v{pos[1]}, 2, s{sList}")
e(f"  v_addc_co_u32_e64 v{pos[3]}, s[{sDmy}:{sDmy+1}], 0, v{pos[2]}, s[{sC2}:{sC2+1}]")
e(f"  v_lshl_add_u32 v{ad[2]}, v{pos[2]}, 2, s{sList}")
e(f"  v_lshl_add_u32 v{ad[3]}, v{pos[3]}, 2, s{sList}")
for i, c in enumerate((sC0, sC1, sC2, sC3)):
    e(f"  s_mov_b64 exec, s[{c}:{c+1}]")
    e(f"  ds_write_b32 v{ad[i]}, v{en[i]}")
e("  s_mov_b64 exec, -1")
IDX = M + 8
for t in range(NSLOT):
    e(f"  ds_read_u8 v{IDX+2*t}, v{vL} offset:{64*t}")
    e(f"  ds_read_u8 v{IDX+2*t+1}, v{vL} offset:{64*t+32}")
e(f"  s_bcnt1_i32_b64 s{sN}, s[{sC0}:{sC0+1}]")
e(f"  s_bcnt1_i32_b64 s{sTmp}, s[{sC1}:{sC1+1}]")
e(f"  s_add_u32 s{sN}, s{sN}, s{sTmp}")
e(f"  s_bcnt1_i32_b64 s{sTmp}, s[{sC2}:{sC2+1}]")
e(f"  s_add_u32 s{sN}, s{sN}, s{sTmp}")
e(f"  s_bcnt1_i32_b64 s{sTmp}, s[{sC3}:{sC3+1}]")
e(f"  s_add_u32 s{sN}, s{sN}, s{sTmp}")
e(f"  s_add_u32 s{sNT}, s{sN}, 15")
e(f"  s_lshr_b32 s{sNT}, s{sNT}, 4")
for t in range(NSLOT):
    for hf in range(2):
        e(f"  s_waitcnt lgkmcnt({2*NSLOT-1-(2*t+hf)})")
        e(f"  v_lshl_or_b32 v{IDX+2*t+hf}, v{IDX+2*t+hf}, 7, v{vDC0 if hf==0 else vDC1}")
        e(f"  s_add_u32 m0, s{sRing}, {t*2048+hf*1024}")
        e("  s_nop 0")
        e(f"  buffer_load_dwordx4 v{IDX+2*t+hf}, s[{rH}:{rH+3}], 0 offen{OPT['nt_hist']} lds")
e(f"  v_add_u32 v{vL}, {64*NSLOT}, v{vL}")
for i in range(2):
    e(f"  v_lshrrev_b32 v{Z+i}, 7, v{X0+i}")
e(f"  s_mov_b32 s{sK3}, 0x10001")
for i in range(2):
    e(f"  v_and_b32 v{Z+i}, s{sK3}, v{Z+i}")
e(f"  s_mov_b32 s{sTmp}, 0x3f80")
for i in range(2):
    e(f"  v_mul_u32_u24 v{Z+i}, s{sTmp}, v{Z+i}")
e(f"  v_cmp_ne_u32_e64 s[{sBad}:{sBad+1}], v{Z}, v{X0}")
e(f"  v_cmp_ne_u32_e64 s[{sC0}:{sC0+1}], v{Z+1}, v{X0+1}")
e(f"  s_waitcnt vmcnt({2*NSLOT})")
e(f"  s_or_b64 s[{sBad}:{sBad+1}], s[{sBad}:{sBad+1}], s[{sC0}:{sC0+1}]")
Wa, Wb_, Wc, Wd = W1R, W1R + 4, W1R + 8, W1R + 12
for k in range(4):
    e(f"  v_mul_f32 v{Wc+k}, s{sScale}, v{Wc+k}")
for k in range(4):
    e(f"  v_mul_f32 v{Wd+k}, s{sScale}, v{Wd+k}")
for k in range(4):
    e(f"  v_fma_f32 v{Wa+k}, s{sScale}, v{Wa+k}, v{Wc+k}")
for k in range(4):
    e(f"  v_fma_f32 v{Wb_+k}, s{sScale}, v{Wb_+k}, -v{Wc+k}")
e(f"  v_mul_f32 v{D2}, s{sScale}, v{D2}")
e(f"  s_lshr_b32 s{sTmp}, s{sWave}, 3")
e(f"  s_lshl_b32 s{sTmp2}, s{sTmp}, 11")
e(f"  s_and_b32 s{sK3}, s{sWave}, 1")
e(f"  s_lshl_b32 s{sK3}, s{sK3}, 10")
e(f"  s_add_u32 s{sTmp2}, s{sTmp2}, s{sK3}")
e(f"  s_bfe_u32 s{sK3}, s{sWave}, 0x20001")
e(f"  s_lshl_b32 s{sK3}, s{sK3}, 8")
e(f"  s_add_u32 s{sTmp2}, s{sTmp2}, s{sK3}")
e(f"  s_add_u32 s{sTmp2}, s{sTmp2}, {PB}")
e(f"  v_lshrrev_b32 v{Z}, 4, v{vLane}")
e(f"  v_and_b32 v{Z+1}, 15, v{vLane}")
e(f"  v_lshlrev_b32 v{Z+1}, 4, v{Z+1}")
e(f"  v_lshl_add_u32 v{Z+2}, v{Z}, 12, v{Z+1}")
e(f"  v_add_u32 v{Z+2}, s{sTmp2}, v{Z+2}")
e(f"  ds_write_b128 v{Z+2}, {vr(Wa,4)}")
e(f"  ds_write_b128 v{Z+2}, {vr(Wd,4)} offset:16384")
e(f"  v_cvt_pk_bf16_f32 v{Wc}, v{Wb_}, v{Wb_+1}")
e(f"  v_cvt_pk_bf16_f32 v{Wc+1}, v{Wb_+2}, v{Wb_+3}")
e(f"  s_lshl_b32 s{sTmp}, s{sTmp}, 10")
e(f"  s_add_u32 s{sTmp}, s{sTmp}, s{sK3}")
e(f"  s_and_b32 s{sK3}, s{sWave}, 1")
e(f"  s_lshl_b32 s{sK3}, s{sK3}, 3")
e(f"  s_add_u32 s{sTmp}, s{sTmp}, s{sK3}")
e(f"  s_add_u32 s{sTmp}, s{sTmp}, {QB}")
e(f"  v_lshl_add_u32 v{Z+3}, v{Z}, 11, v{Z+1}")
e(f"  v_add_u32 v{Z+3}, s{sTmp}, v{Z+3}")
e(f"  ds_write_b64 v{Z+3}, {vr(Wc,2)}")
e(f"  v_lshlrev_b32 v{Z+4}, 2, v{vLane}")
e(f"  v_add_u32 v{Z+4}, {BB}, v{Z+4}")
e(f"  ds_write_b32 v{Z+4}, v{D2}")
for i in range(1, 4):
    e(f"  v_mov_b32 v{B2+i}, v{B2}")
e("  s_waitcnt lgkmcnt(0)")
TF = D3
for s in range(2):
    for r in range(4):
        e(f"  v_lshlrev_b32 v{TF+8*s+2*r}, 16, v{HT+4*s+r}")
        e(f"  v_and_b32 v{TF+8*s+2*r+1}, s{sK2}, v{HT+4*s+r}")
e("  s_barrier")
vLA = Z
e(f"  v_lshlrev_b32 v{vLA}, 4, v{vLane}")
e(f"  v_add_u32 v{vLA+1}, {QB}, v{vLA}")
e(f"  v_lshrrev_b32 v{vLA+2}, 4, v{vLane}")
e(f"  v_lshlrev_b32 v{vLA+2}, 4, v{vLA+2}")
e(f"  v_add_u32 v{vLA+2}, {BB}, v{vLA+2}")
for tau in range(4):
    e(f"  ds_read_b128 {vr(C+4*tau,4)}, v{vLA+2} offset:{64*tau}")
for g in range(8):
    e(f"  ds_read_b128 {vr(M+4*g,4)}, v{vLA+1} offset:{1024*g}")
vPA = vTmp
e(f"  v_add_u32 v{vPA}, {PB}, v{vLA}")
for g in range(8):
    e(f"  s_waitcnt lgkmcnt({7-g})")
    tau, s = g >> 1, g & 1
    e(f"  v_mfma_f32_16x16x32_bf16 {vr(C+4*tau,4)}, {vr(M+4*g,4)}, {vr(HT+4*s,4)}, {vr(C+4*tau,4)}")
BUF = [Z, HB]
def mread(g):
    b = BUF[g & 1]
    for h in range(2):
        off = g * 2048 + h * 1024
        e(f"  ds_read_b128 {vr(b+8*h,4)}, v{vPA} offset:{off}")
        e(f"  ds_read_b128 {vr(b+8*h+4,4)}, v{vPA} offset:{off+16384}")
mread(0)
for g in range(8):
    if g < 7:
        mread(g + 1)
        e("  s_waitcnt lgkmcnt(4)")
    else:
        e("  s_waitcnt lgkmcnt(0)")
    b = BUF[g & 1]
    s = g & 1
    for h in range(2):
        for p in range(2):
            P_, W_ = b + 8*h + 2*p, b + 8*h + 4 + 2*p
            e(f"  v_pk_fma_f32 {vr(P_,2)}, {vr(W_,2)}, {vr(TF+8*s+4*h+2*p,2)}, {vr(P_,2)}")
    for h in range(2):
        for p in range(2):
            P_ = b + 8*h + 2*p
            e(f"  v_cvt_pk_bf16_f32 v{M+4*g+2*h+p}, v{P_}, v{P_+1}")
for i in range(16):
    e(f"  v_mov_b32 v{D3+i}, 0")
e(f"  s_cmp_eq_u32 s{sNT}, 0")
e("  s_cbranch_scc1 L_out")
e(f"  s_cmp_lg_u64 s[{sBad}:{sBad+1}], 0")
e("  s_cbranch_scc1 L_gen0")

def tile(slot, general, lab_next_exit):
    so = slot * 2048
    e(f"  s_waitcnt vmcnt({2*(NSLOT-1)})")
    e(f"  ds_read_b128 {vr(HB,4)}, v{vA0} offset:{so}")
    e(f"  ds_read_b128 {vr(HB+4,4)}, v{vA1} offset:{so}")
    for d in range(4):
        e(f"  ds_read_b64_tr_b16 {vr(HT+2*d,2)}, v{vT[d]} offset:{so}")
    e(f"  ds_read_u8 v{vI0}, v{vL} offset:{64*slot}")
    e(f"  ds_read_u8 v{vI1}, v{vL} offset:{64*slot+32}")
    nrd = 8
    if general:
        e(f"  ds_read_b128 {vr(MK,4)}, v{vML} offset:{64*slot}")
        nrd = 9
    e(f"  s_waitcnt lgkmcnt({nrd-1})")
    for tau in range(4):
        e(f"  v_mfma_f32_16x16x32_bf16 {vr(Z+4*tau,4)}, {vr(M+8*tau,4)}, {vr(HB,4)}, {vr(C+4*tau,4)}")
    e(f"  s_waitcnt lgkmcnt({nrd-2})")
    for tau in range(4):
        e(f"  v_mfma_f32_16x16x32_bf16 {vr(Z+4*tau,4)}, {vr(M+8*tau+4,4)}, {vr(HB+4,4)}, {vr(Z+4*tau,4)}")
    e("  s_waitcnt lgkmcnt(0)")
    e(f"  v_lshl_or_b32 v{vI0}, v{vI0}, 7, v{vDC0}")
    e(f"  v_lshl_or_b32 v{vI1}, v{vI1}, 7, v{vDC1}")
    e(f"  s_add_u32 m0, s{sRing}, {so}")
    e(f"  s_sub_u32 s{sNT}, s{sNT}, 1")
    e(f"  buffer_load_dwordx4 v{vI0}, s[{rH}:{rH+3}], 0 offen{OPT['nt_hist']} lds")
    e(f"  s_add_u32 m0, s{sRing}, {so+1024}")
    e("  s_nop 0")
    e(f"  buffer_load_dwordx4 v{vI1}, s[{rH}:{rH+3}], 0 offen{OPT['nt_hist']} lds")
    for i in range(16):
        e(f"  v_exp_f32 v{Z+i}, v{Z+i}")
    for i in range(16):
        e(f"  v_add_f32 v{Z+i}, 1.0, v{Z+i}")
    for i in range(16):
        e(f"  v_rcp_f32 v{Z+i}, v{Z+i}")
    if general:
        for i in range(4):
            e(f"  v_and_b32 v{MK+i}, s{sK2}, v{MK+i}")
    for i in range(8):
        e(f"  v_cvt_pk_bf16_f32 v{HB+i}, v{Z+2*i}, v{Z+2*i+1}")
    e("  s_nop 0")
    e(f"  v_mfma_f32_16x16x32_bf16 {vr(D2,4)}, {vr(HB,4)}, {vr(W2,4)}, {vr(B2,4)}")
    e(f"  v_mfma_f32_16x16x32_bf16 {vr(D2,4)}, {vr(HB+4,4)}, {vr(W2+4,4)}, {vr(D2,4)}")
    if slot == NSLOT - 1:
        e(f"  v_add_u32 v{vL}, {64*NSLOT}, v{vL}")
        if general:
            e(f"  v_add_u32 v{vML}, {64*NSLOT}, v{vML}")
    e("  s_nop 7")
    if general:
        for i in range(4):
            e(f"  v_mul_f32 v{D2+i}, v{MK+i}, v{D2+i}")
    e(f"  v_cvt_pk_bf16_f32 v{SP}, v{D2}, v{D2+1}")
    e(f"  v_cvt_pk_bf16_f32 v{SP+1}, v{D2+2}, v{D2+3}")
    e(f"  s_cmp_eq_u32 s{sNT}, 0")
    e("  s_nop 0")
    for d in range(4):
        e(f"  v_mfma_f32_16x16x16_bf16 {vr(D3+4*d,4)}, {vr(SP,2)}, {vr(HT+2*d,2)}, {vr(D3+4*d,4)}")
    e(f"  s_cbranch_scc1 {lab_next_exit}")

for general in (False, True):
    pre = "L_gen" if general else "L_bin"
    e(f"{pre}0:")
    for slot in range(NSLOT):
        tile(slot, general, "L_out")
    e(f"  s_branch {pre}0")

e("L_out:")
e("  s_nop 7")
e(f"  v_mbcnt_lo_u32_b32 v{Z}, -1, 0")
e(f"  v_mbcnt_hi_u32_b32 v{Z}, -1, v{Z}")
e(f"  v_lshlrev_b32 v{Z}, 1, v{Z}")
e(f"  s_mov_b32 s{sC0}, 0xffff0000")
e(f"  s_mov_b32 s{sC0+1}, 0")
e(f"  s_mov_b32 s{sC1}, 0")
e(f"  s_mov_b32 s{sC1+1}, 0xffff")
e(f"  s_mov_b32 s{sC2}, 0")
e(f"  s_mov_b32 s{sC2+1}, 0xffff0000")
e(f"  v_cndmask_b32_e64 v{Z+1}, v{D3}, v{D3+4}, s[{sC0}:{sC0+1}]")
e(f"  v_cndmask_b32_e64 v{Z+1}, v{Z+1}, v{D3+8}, s[{sC1}:{sC1+1}]")
e(f"  v_cndmask_b32_e64 v{Z+1}, v{Z+1}, v{D3+12}, s[{sC2}:{sC2+1}]")
e(f"  v_cvt_pk_bf16_f32 v{Z+1}, v{Z+1}, v{Z+1}")
e(f"  buffer_store_short v{Z+1}, v{Z}, s[{rO}:{rO+3}], 0 offen{OPT['nt_out']}")
e("  s_waitcnt vmcnt(0)")
e("L_end:")
e("  s_endpgm")
e('.section .rodata,"a"')
e(".p2align 6")
e(f".amdhsa_kernel {NAME}_kernel")
e("  .amdhsa_next_free_vgpr 128")
e("  .amdhsa_next_free_sgpr 96")
e("  .amdhsa_accum_offset 128")
e("  .amdhsa_group_segment_fixed_size 0")
e("  .amdhsa_kernarg_size 80")
e("  .amdhsa_user_sgpr_count 2")
e("  .amdhsa_user_sgpr_kernarg_segment_ptr 1")
e("  .amdhsa_system_sgpr_workgroup_id_x 1")
e("  .amdhsa_float_denorm_mode_32 3")
e(".end_amdhsa_kernel")
open(sys.argv[1], "w").write("\n".join(out) + "\n")
```

```python
import sys

NAME = "standalone__sequential_behavior_din__recsys"
OPT = dict(nt_hist=" nt", nt_mask=" nt", nt_out="", stamp=0, prio=1, early=0, mprio=3)
for a in sys.argv[2:]:
    k, v = a.split("=", 1)
    if k.startswith("nt_"):
        OPT[k] = (" " + v.replace("+", " ")) if v else ""
    else:
        OPT[k] = int(v)

out = []
def e(s=""):
    out.append(s)

NSLOT = 3
RPW = NSLOT * 2048
LIST = 16 * RPW
MLIST = LIST + 16 * 256
PWB = MLIST + 16 * 1024
QB = PWB + 16384
BB = QB + 8192
W2B = BB + 256
B2B = W2B + 128
TB = B2B + 64
LDS_BYTES = TB + 2048
assert LDS_BYTES <= 163840 and TB % 16 == 0

M, C, D3, W2, B2, Z, HB, HT, D2 = 0, 32, 48, 64, 72, 76, 92, 100, 108
SP = D2
ONE = 112
vA0, vA1 = 114, 115
vT = [116, 117, 118, 119]
vP0, vP1 = 120, 122
vDC0, vDC1 = 121, 123
vL, vML = 124, 125
vLane, vST = 126, 127
MK = Z

def vr(b, n=1):
    return f"v{b}" if n == 1 else f"v[{b}:{b+n-1}]"

sT, sH, sMk, sW1, sB1, sW2, sB2, sO = 4, 6, 8, 10, 12, 14, 16, 18
sWave, sB = 20, 21
rH = 24
sRing, sList, sN, sNT = 56, 57, 58, 59
sC0, sC1, sC2, sC3 = 60, 62, 64, 66
sK1, sK2, sK3 = 69, 70, 71
sScale, sTmp, sTmp2 = 72, 74, 75
sBad, sDmy = 76, 78
STAMP0 = 84
sE0, sE1, sE2, sE3 = 88, 90, 92, 94

def stamp(i):
    if OPT["stamp"]:
        e(f"  s_memrealtime s[{STAMP0}:{STAMP0+1}]")
        e("  s_waitcnt lgkmcnt(0)")
        e(f"  v_writelane_b32 v{vST}, s{STAMP0}, {i}")
        if i in (6, 8):
            e(f"  s_memtime s[{STAMP0}:{STAMP0+1}]")
            e("  s_waitcnt lgkmcnt(0)")
            e(f"  v_writelane_b32 v{vST}, s{STAMP0}, {12 if i == 6 else 13}")

def prio(p):
    if OPT["prio"]:
        e(f"  s_setprio {p}")

hdr = open("cdna_kernels/" + NAME + ".s.ref").read().split("; Override launch")[0]
e(hdr.rstrip())
e(f"; @launch grid=(256,1,1) block=(1024,1,1) lds={LDS_BYTES}")
e('.amdgcn_target "amdgcn-amd-amdhsa--gfx950"')
e(".text")
e(f".globl {NAME}_kernel")
e(".p2align 8")
e(f".type {NAME}_kernel,@function")
e(f"{NAME}_kernel:")
e("  s_cmp_ge_u32 s2, 256")
e("  s_cbranch_scc1 L_end")
stamp(0)
e("  s_load_dwordx16 s[4:19], s[0:1], 0")
if OPT["stamp"]:
    e("  s_load_dwordx2 s[86:87], s[0:1], 72")
prio(3)
X0 = D2
q_ = Z + 1
vMo, vWo = Z + 6, Z + 7
e(f"  v_lshrrev_b32 v{Z}, 6, v0")
e(f"  v_and_b32 v{vLane}, 63, v0")
e(f"  s_lshl_b32 s{sB}, s2, 4")
e(f"  v_readfirstlane_b32 s{sWave}, v{Z}")
e(f"  v_mov_b32 v{X0}, 0")
e(f"  v_mov_b32 v{X0+1}, 0")
e(f"  s_add_u32 s{sB}, s{sB}, s{sWave}")
e(f"  s_mul_i32 s{sTmp}, s{sB}, 400")
e(f"  s_mul_i32 s{sRing}, s{sWave}, {RPW}")
e(f"  v_lshl_add_u32 v{vMo}, v{vLane}, 3, s{sTmp}")
vWo2 = Z + 8
e(f"  v_and_b32 v{Z+2}, 32, v{vLane}")
e(f"  v_and_b32 v{Z+3}, 31, v{vLane}")
e(f"  s_lshl_b32 s{sTmp2}, s{sWave}, 9")
e(f"  v_lshlrev_b32 v{Z+2}, 9, v{Z+2}")
e(f"  s_add_u32 s{sK3}, s{sTmp2}, {24576-1024}")
e(f"  v_lshl_add_u32 v{vWo}, v{Z+3}, 4, s{sTmp2}")
e(f"  v_lshl_add_u32 v{vWo2}, v{Z+3}, 4, s{sK3}")
e(f"  s_bfm_b64 s[{sC0}:{sC0+1}], 50, 0")
e(f"  v_add_u32 v{vWo}, v{vWo}, v{Z+2}")
e(f"  v_sub_u32 v{vWo2}, v{vWo2}, v{Z+2}")
e(f"  s_add_u32 m0, s{sRing}, 4096")
e(f"  s_mov_b64 exec, s[{sC0}:{sC0+1}]")
e("  s_waitcnt lgkmcnt(0)")
stamp(1)
e(f"  global_load_dwordx2 {vr(X0,2)}, v{vMo}, s[{sMk}:{sMk+1}]{OPT['nt_mask']}")
e("  s_mov_b64 exec, -1")
prio(2)
e(f"  global_load_lds_dwordx4 v{vWo}, s[{sW1}:{sW1+1}]")
e(f"  global_load_lds_dwordx4 v{vWo2}, s[{sW1}:{sW1+1}] offset:1024")
e(f"  v_lshrrev_b32 v{q_}, 4, v{vLane}")
SB1, SB2 = M + 16, M + 17
e(f"  s_cmp_lt_u32 s{sWave}, 13")
e("  s_cbranch_scc1 L_nosmall")
e(f"  s_cmp_eq_u32 s{sWave}, 14")
e("  s_cbranch_scc1 L_w14")
e(f"  s_cmp_eq_u32 s{sWave}, 15")
e("  s_cbranch_scc1 L_w15")
e(f"  v_mov_b32 v{SB1}, 0")
e(f"  v_lshlrev_b32 v{M+20}, 1, v{vLane}")
e(f"  global_load_short_d16_hi v{SB1}, v{M+20}, s[{sB1}:{sB1+1}]")
e("  s_branch L_nosmall")
e("L_w14:")
e(f"  s_lshl_b32 s{sTmp2}, s2, 11")
e(f"  v_lshl_add_u32 v{M+20}, v{vLane}, 4, s{sTmp2}")
e(f"  s_mov_b32 m0, {TB}")
e("  s_nop 0")
e(f"  global_load_lds_dwordx4 v{M+20}, s[{sT}:{sT+1}]")
e(f"  global_load_lds_dwordx4 v{M+20}, s[{sT}:{sT+1}] offset:1024")
e("  s_branch L_nosmall")
e("L_w15:")
e(f"  v_bfe_u32 v{M+20}, v{vLane}, 1, 2")
e(f"  v_lshlrev_b32 v{M+20}, 5, v{M+20}")
e(f"  v_lshrrev_b32 v{M+21}, 3, v{vLane}")
e(f"  v_lshl_add_u32 v{M+20}, v{M+21}, 3, v{M+20}")
e(f"  v_and_b32 v{M+21}, 1, v{vLane}")
e(f"  v_lshl_add_u32 v{M+20}, v{M+21}, 2, v{M+20}")
e(f"  v_mov_b32 v{SB2}, 0")
e(f"  v_mov_b32 v{M+21}, 0")
e(f"  s_mov_b32 m0, {W2B}")
e(f"  global_load_short_d16_hi v{SB2}, v{M+21}, s[{sB2}:{sB2+1}]")
e(f"  s_bfm_b64 exec, 32, 0")
e(f"  global_load_lds_dword v{M+20}, s[{sW2}:{sW2+1}]")
e("  s_mov_b64 exec, -1")
e("L_nosmall:")
e(f"  s_lshl_b32 s{sList}, s{sWave}, 8")
e(f"  s_add_u32 s{sList}, s{sList}, {LIST}")
e(f"  v_mov_b32 v{M}, -1")
e(f"  v_lshl_add_u32 v{Z+3}, v{vLane}, 2, s{sList}")
e(f"  ds_write_b32 v{Z+3}, v{M}")
t0, t1, t2, t3, t4 = Z, q_, Z + 2, Z + 3, Z + 4
PWA, QWA, RWA = D3, D3 + 1, D3 + 2
e(f"  s_mul_i32 s{sTmp}, s{sB}, 25600")
e(f"  v_and_b32 v{t2}, 7, v{vLane}")
e(f"  s_add_u32 s{rH}, s{sH}, s{sTmp}")
e(f"  v_xor_b32 v{t2}, v{t2}, v{t1}")
e(f"  s_addc_u32 s{rH+1}, s{sH+1}, 0")
e(f"  v_lshlrev_b32 v{vDC0}, 4, v{t2}")
e(f"  s_or_b32 s{rH+1}, s{rH+1}, {128 << 16}")
e(f"  v_xor_b32 v{vDC1}, 64, v{vDC0}")
e(f"  s_mov_b32 s{rH+2}, 200")
e(f"  v_lshrrev_b32 v{t2}, 3, v{vLane}")
e(f"  s_mov_b32 s{rH+3}, 0x20000")
e(f"  v_add_u32 v{vL}, s{sList}, v{t2}")
vR = [Z + 11, Z + 12, Z + 13, Z + 14]
e(f"  v_lshlrev_b32 v{vR[0]}, 2, v{vLane}")
e(f"  s_mov_b32 s{sK1}, 0xffff")
for i in range(1, 4):
    e(f"  v_add_u32 v{vR[i]}, {i}, v{vR[0]}")
pos = [Z + 2, Z + 3, Z + 4, Z + 5]
prio(1)
e(f"  v_and_b32 v{t0}, 15, v{vLane}")
e(f"  s_mov_b32 s{sK2}, 0xffff0000")
e(f"  v_lshrrev_b32 v{t2}, 1, v{t0}")
e(f"  s_mov_b32 s{sScale}, 0xbfb8aa3b")
e(f"  v_xor_b32 v{t2}, v{t2}, v{t1}")
e(f"  s_mov_b32 s{sScale+1}, 0xbfb8aa3b")
e(f"  v_lshlrev_b32 v{t2}, 4, v{t2}")
e(f"  s_lshr_b32 s{sTmp}, s{sWave}, 3")
e(f"  v_lshl_add_u32 v{t2}, v{t0}, 7, v{t2}")
e(f"  s_lshl_b32 s{sTmp2}, s{sTmp}, 11")
e(f"  v_add_u32 v{vA0}, s{sRing}, v{t2}")
e(f"  s_and_b32 s{sK3}, s{sWave}, 1")
e(f"  v_xor_b32 v{vA1}, 64, v{vA0}")
e(f"  s_lshl_b32 s{sK3}, s{sK3}, 10")
e(f"  v_lshrrev_b32 v{t2}, 2, v{t0}")
e(f"  s_add_u32 s{sTmp2}, s{sTmp2}, s{sK3}")
e(f"  v_and_b32 v{RWA}, 3, v{vLane}")
e(f"  s_bfe_u32 s{sK3}, s{sWave}, 0x20001")
e(f"  v_cmp_eq_u32_e64 s[{sC1}:{sC1+1}], v{t2}, v{t1}")
e(f"  s_lshl_b32 s{sK3}, s{sK3}, 8")
e(f"  v_lshlrev_b32 v{RWA}, 3, v{RWA}")
e(f"  s_add_u32 s{sTmp2}, s{sTmp2}, s{sK3}")
e(f"  v_lshl_add_u32 v{RWA}, v{t2}, 7, v{RWA}")
e(f"  s_add_u32 s{sTmp2}, s{sTmp2}, {PWB}")
e(f"  v_lshl_add_u32 v{RWA}, v{t1}, 5, v{RWA}")
e(f"  s_lshl_b32 s{sTmp}, s{sTmp}, 10")
e(f"  v_lshl_add_u32 v{t2}, v{t1}, 2, v{t2}")
e(f"  s_add_u32 s{sTmp}, s{sTmp}, s{sK3}")
e(f"  v_lshrrev_b32 v{t3}, 1, v{t2}")
e(f"  s_and_b32 s{sK3}, s{sWave}, 1")
e(f"  v_bfe_u32 v{t4}, v{vLane}, 1, 1")
e(f"  s_lshl_b32 s{sK3}, s{sK3}, 3")
e(f"  v_xor_b32 v{t3}, v{t3}, v{t4}")
e(f"  s_add_u32 s{sTmp}, s{sTmp}, s{sK3}")
e(f"  v_lshlrev_b32 v{t3}, 4, v{t3}")
e(f"  s_add_u32 s{sTmp}, s{sTmp}, {QB}")
e(f"  v_lshl_add_u32 v{t3}, v{t2}, 7, v{t3}")
e(f"  s_add_u32 s{sK3}, s{sRing}, 4096")
e(f"  v_and_b32 v{t2}, 1, v{vLane}")
e(f"  v_add_u32 v{RWA}, s{sK3}, v{RWA}")
e(f"  v_lshl_add_u32 v{t3}, v{t2}, 3, v{t3}")
e(f"  v_lshlrev_b32 v{t0}, 4, v{t0}")
e(f"  v_add_u32 v{vT[0]}, s{sRing}, v{t3}")
e(f"  v_lshl_add_u32 v{PWA}, v{t1}, 12, v{t0}")
for d in range(1, 4):
    e(f"  v_xor_b32 v{vT[d]}, {32*d}, v{vT[0]}")
e(f"  v_lshl_add_u32 v{QWA}, v{t1}, 11, v{t0}")
e(f"  v_add_u32 v{PWA}, s{sTmp2}, v{PWA}")
e(f"  v_add_u32 v{QWA}, s{sTmp}, v{QWA}")
vM0, vM1 = D2 + 2, D2 + 3
e(f"  v_lshlrev_b32 v{t2}, 4, v{t2}")
e(f"  v_mov_b32 v{t3}, 0xffff")
e(f"  v_lshlrev_b32 v{t3}, v{t2}, v{t3}")
e(f"  v_cndmask_b32_e64 v{t3}, 0, v{t3}, s[{sC1}:{sC1+1}]")
e(f"  v_cmp_eq_u32_e64 s[{sC1}:{sC1+1}], 0, v{t4}")
e(f"  v_mov_b32 v{pos[0]}, s{sList}")
e(f"  v_mov_b32 v{ONE+1}, 0")
e(f"  v_cndmask_b32_e64 v{vM0}, 0, v{t3}, s[{sC1}:{sC1+1}]")
e(f"  v_cndmask_b32_e64 v{vM1}, v{t3}, 0, s[{sC1}:{sC1+1}]")
e("  s_waitcnt vmcnt(2)")
stamp(2)
prio(3)
e(f"  v_cmp_ne_u16_e64 s[{sC0}:{sC0+1}], 0, v{X0}")
e(f"  v_cmp_lt_u32_e64 s[{sC1}:{sC1+1}], s{sK1}, v{X0}")
e(f"  v_cmp_ne_u16_e64 s[{sC2}:{sC2+1}], 0, v{X0+1}")
e(f"  v_cmp_lt_u32_e64 s[{sC3}:{sC3+1}], s{sK1}, v{X0+1}")
e(f"  v_mbcnt_lo_u32_b32 v{pos[0]}, s{sC0}, v{pos[0]}")
e(f"  v_mbcnt_hi_u32_b32 v{pos[0]}, s{sC0+1}, v{pos[0]}")
for c in (sC1, sC2, sC3):
    e(f"  v_mbcnt_lo_u32_b32 v{pos[0]}, s{c}, v{pos[0]}")
    e(f"  v_mbcnt_hi_u32_b32 v{pos[0]}, s{c+1}, v{pos[0]}")
e(f"  s_mov_b64 exec, s[{sC0}:{sC0+1}]")
e(f"  ds_write_b8 v{pos[0]}, v{vR[0]}")
e("  s_mov_b64 exec, -1")
e(f"  v_addc_co_u32_e64 v{pos[1]}, s[{sDmy}:{sDmy+1}], 0, v{pos[0]}, s[{sC0}:{sC0+1}]")
e(f"  v_addc_co_u32_e64 v{pos[2]}, s[{sDmy}:{sDmy+1}], 0, v{pos[1]}, s[{sC1}:{sC1+1}]")
e(f"  v_addc_co_u32_e64 v{pos[3]}, s[{sDmy}:{sDmy+1}], 0, v{pos[2]}, s[{sC2}:{sC2+1}]")
for i, c in ((1, sC1), (2, sC2), (3, sC3)):
    e(f"  s_mov_b64 exec, s[{c}:{c+1}]")
    e(f"  ds_write_b8 v{pos[i]}, v{vR[i]}")
e("  s_mov_b64 exec, -1")
e(f"  ds_read_u8 v{vP0}, v{vL}")
e(f"  ds_read_u8 v{vP1}, v{vL} offset:8")
def dma(pair, slot, hf, filler=None):
    e(f"  s_add_u32 m0, s{sRing}, {slot*2048+hf*1024}")
    e(filler or "  s_nop 0")
    e(f"  buffer_load_dwordx4 {vr(pair,2)}, s[{rH}:{rH+3}], 0 idxen offen{OPT['nt_hist']} lds")
e(f"  s_bcnt1_i32_b64 s{sN}, s[{sC0}:{sC0+1}]")
e(f"  s_bcnt1_i32_b64 s{sK3}, s[{sC1}:{sC1+1}]")
e(f"  s_add_u32 s{sN}, s{sN}, s{sK3}")
e(f"  s_bcnt1_i32_b64 s{sK3}, s[{sC2}:{sC2+1}]")
e(f"  s_add_u32 s{sN}, s{sN}, s{sK3}")
e(f"  s_bcnt1_i32_b64 s{sK3}, s[{sC3}:{sC3+1}]")
e(f"  s_add_u32 s{sN}, s{sN}, s{sK3}")
e("  s_waitcnt lgkmcnt(1)")
dma(vP0, 0, 0)
e("  s_waitcnt lgkmcnt(0)")
dma(vP1, 0, 1)
stamp(3)
prio(2)
RW = HB
e("  s_waitcnt vmcnt(2)")
stamp(4)
for m in range(4):
    e(f"  ds_read_b64_tr_b16 {vr(RW+2*m,2)}, v{RWA} offset:{512*m}")
e(f"  ds_read_u8 v{vP0}, v{vL} offset:16")
e(f"  ds_read_u8 v{vP1}, v{vL} offset:24")
e(f"  s_add_u32 s{sNT}, s{sN}, 15")
e(f"  s_lshr_b32 s{sNT}, s{sNT}, 4")
e(f"  s_movk_i32 s{sTmp}, 0x3f80")
e(f"  v_cmp_eq_u16_e64 s[{sE0}:{sE0+1}], s{sTmp}, v{X0}")
e(f"  v_cmp_eq_u16_e64 s[{sE2}:{sE2+1}], s{sTmp}, v{X0+1}")
e(f"  v_lshrrev_b32 v{Z+6}, 16, v{X0}")
e(f"  v_lshrrev_b32 v{Z+7}, 16, v{X0+1}")
e(f"  v_cmp_eq_u16_e64 s[{sE1}:{sE1+1}], s{sTmp}, v{Z+6}")
e(f"  v_cmp_eq_u16_e64 s[{sE3}:{sE3+1}], s{sTmp}, v{Z+7}")
e(f"  s_xor_b64 s[{sBad}:{sBad+1}], s[{sE0}:{sE0+1}], s[{sC0}:{sC0+1}]")
for a_, b_ in ((sE1, sC1), (sE2, sC2), (sE3, sC3)):
    e(f"  s_xor_b64 s[{a_}:{a_+1}], s[{a_}:{a_+1}], s[{b_}:{b_+1}]")
    e(f"  s_or_b64 s[{sBad}:{sBad+1}], s[{sBad}:{sBad+1}], s[{a_}:{a_+1}]")
e(f"  s_cmp_lg_u64 s[{sBad}:{sBad+1}], 0")
e("  s_cbranch_scc0 L_binmask")
e(f"  s_lshl_b32 s{sTmp}, s{sWave}, 10")
e(f"  s_add_u32 s{sTmp}, s{sTmp}, {MLIST}")
for i in range(4):
    e(f"  v_mov_b32 v{M+i}, 0")
e(f"  v_lshl_add_u32 v{Z+6}, v{vLane}, 4, s{sTmp}")
e(f"  ds_write_b128 v{Z+6}, {vr(M,4)}")
e(f"  v_lshl_add_u32 v{vML}, v{q_}, 4, s{sTmp}")
e(f"  v_lshlrev_b32 v{M+4}, 16, v{X0}")
e(f"  v_and_b32 v{M+5}, s{sK2}, v{X0}")
e(f"  v_lshlrev_b32 v{M+6}, 16, v{X0+1}")
e(f"  v_and_b32 v{M+7}, s{sK2}, v{X0+1}")
for i in range(4):
    e(f"  v_subrev_u32 v{pos[i]}, s{sList}, v{pos[i]}")
    e(f"  v_lshl_add_u32 v{pos[i]}, v{pos[i]}, 2, s{sTmp}")
for i, c in enumerate((sC0, sC1, sC2, sC3)):
    e(f"  s_mov_b64 exec, s[{c}:{c+1}]")
    e(f"  ds_write_b32 v{pos[i]}, v{M+4+i}")
e("  s_mov_b64 exec, -1")
e("L_binmask:")
W1R = M
Wa, Wc, Wd, Wb_ = W1R, W1R + 4, W1R + 8, W1R + 12
e("  s_waitcnt lgkmcnt(0)")
if OPT["early"]:
    dma(vP0, 1, 0)
    dma(vP1, 1, 1)
    e(f"  ds_read_u8 v{vP0}, v{vL} offset:32")
    e(f"  ds_read_u8 v{vP1}, v{vL} offset:40")
for m in range(4):
    for r in range(2):
        e(f"  v_lshlrev_b32 v{W1R+4*m+2*r}, 16, v{RW+2*m+r}")
        e(f"  v_and_b32 v{W1R+4*m+2*r+1}, s{sK2}, v{RW+2*m+r}")
for p in range(2):
    e(f"  v_pk_add_f32 {vr(Wa+2*p,2)}, {vr(Wa+2*p,2)}, {vr(Wc+2*p,2)}")
for p in range(2):
    e(f"  v_pk_add_f32 {vr(Wb_+2*p,2)}, {vr(Wb_+2*p,2)}, {vr(Wc+2*p,2)} neg_lo:[0,1] neg_hi:[0,1]")
for base in (Wd, Wa, Wb_):
    for p in range(2):
        e(f"  v_pk_mul_f32 {vr(base+2*p,2)}, {vr(base+2*p,2)}, s[{sScale}:{sScale+1}]")
e(f"  v_cvt_pk_bf16_f32 v{RW+2}, v{Wd}, v{Wd+1}")
e(f"  v_cvt_pk_bf16_f32 v{RW+3}, v{Wd+2}, v{Wd+3}")
e(f"  v_cvt_pk_bf16_f32 v{RW}, v{Wa}, v{Wa+1}")
e(f"  v_cvt_pk_bf16_f32 v{RW+1}, v{Wa+2}, v{Wa+3}")
e(f"  v_cvt_pk_bf16_f32 v{RW+6}, v{Wb_}, v{Wb_+1}")
e(f"  v_cvt_pk_bf16_f32 v{RW+7}, v{Wb_+2}, v{Wb_+3}")
e(f"  ds_write_b128 v{PWA}, {vr(RW,4)}")
e(f"  ds_write_b64 v{QWA}, {vr(RW+6,2)}")
e(f"  s_cmp_lt_u32 s{sWave}, 13")
e("  s_cbranch_scc1 L_nosmall2")
e(f"  s_cmp_eq_u32 s{sWave}, 13")
e("  s_cbranch_scc0 L_nb1")
e(f"  v_mul_f32 v{SB1}, s{sScale}, v{SB1}")
e(f"  v_lshlrev_b32 v{M+20}, 2, v{vLane}")
e(f"  v_add_u32 v{M+20}, {BB}, v{M+20}")
e(f"  ds_write_b32 v{M+20}, v{SB1}")
e("L_nb1:")
e(f"  s_cmp_eq_u32 s{sWave}, 15")
e("  s_cbranch_scc0 L_nosmall2")
e(f"  v_and_b32 v{M+20}, 3, v{vLane}")
e(f"  v_lshlrev_b32 v{M+20}, 2, v{M+20}")
e(f"  v_add_u32 v{M+20}, {B2B}, v{M+20}")
e(f"  ds_write_b32 v{M+20}, v{SB2}")
e("L_nosmall2:")
AD = HB + 4
vPA, vQA = D2, D2 + 1
e(f"  s_mov_b32 s{sTmp}, 0x3f803f80")
e(f"  v_lshlrev_b32 v{vPA}, 4, v{vLane}")
e(f"  v_and_b32 v{AD}, s{sTmp}, v{vM0}")
e(f"  v_add_u32 v{vQA}, {QB}, v{vPA}")
e(f"  v_and_b32 v{AD+1}, s{sTmp}, v{vM1}")
e(f"  v_add_u32 v{vPA}, {PWB}, v{vPA}")
e(f"  s_lshl_b32 s{sTmp}, s{sWave}, 7")
e(f"  s_add_u32 s{sTmp}, s{sTmp}, {TB}")
e(f"  v_lshl_add_u32 v{Z+9}, v{q_}, 4, s{sTmp}")
e(f"  v_lshlrev_b32 v{Z+10}, 4, v{q_}")
e(f"  v_cmp_gt_u32 vcc, 32, v{vLane}")
e(f"  v_mov_b32 v{Z}, 0x3f80")
e(f"  v_add_u32 v{Z+10}, {BB}, v{Z+10}")
e(f"  v_cndmask_b32 v{ONE}, 0, v{Z}, vcc")
e("  s_waitcnt lgkmcnt(0)")
if OPT["early"]:
    dma(vP0, 2, 0)
    dma(vP1, 2, 1)
e("  s_barrier")
stamp(5)
prio(OPT["mprio"])
e(f"  ds_read_b128 {vr(HT,4)}, v{Z+9}")
e(f"  ds_read_b128 {vr(HT+4,4)}, v{Z+9} offset:64")
for tau in range(4):
    e(f"  ds_read_b128 {vr(C+4*tau,4)}, v{Z+10} offset:{64*tau}")
for g in range(8):
    e(f"  ds_read_b128 {vr(M+4*g,4)}, v{vQA} offset:{1024*g}")
if not OPT["early"]:
    dma(vP0, 1, 0)
    dma(vP1, 1, 1)
B0 = [D3 + 4*i for i in range(4)]
B1 = [W2, W2 + 4, W2 + 8, HB]
BUFS = [B0, B1]
def mread(g):
    s, h = g >> 1, g & 1
    for tau in range(4):
        e(f"  ds_read_b128 {vr(BUFS[g&1][tau],4)}, v{vPA} offset:{tau*4096+s*2048+h*1024}")
for g in range(8):
    e(f"  s_waitcnt lgkmcnt({7-g})")
    tau, s = g >> 1, g & 1
    e(f"  v_mfma_f32_16x16x32_bf16 {vr(C+4*tau,4)}, {vr(M+4*g,4)}, {vr(HT+4*s,4)}, {vr(C+4*tau,4)}")
if not OPT["early"]:
    e(f"  ds_read_u8 v{vP0}, v{vL} offset:32")
    e(f"  ds_read_u8 v{vP1}, v{vL} offset:40")
mread(0)
e(f"  v_add_u32 v{vL}, 48, v{vL}")
DT = [Z, Z + 4, Z + 8, Z + 12]
for g in range(4):
    s, h = g >> 1, g & 1
    if g < 3:
        mread(g + 1)
    e(f"  v_and_b32 v{AD+2}, v{HT+4*s+2*h}, v{vM0}")
    e(f"  v_and_b32 v{AD+3}, v{HT+4*s+2*h+1}, v{vM1}")
    e(f"  s_waitcnt lgkmcnt({4 if g < 3 else 0})")
    e("  s_nop 0")
    for tau in range(4):
        e(f"  v_mfma_f32_16x16x32_bf16 {vr(DT[tau],4)}, {vr(AD,4)}, {vr(BUFS[g&1][tau],4)}, 0")
    if g == 0 and not OPT["early"]:
        dma(vP0, 2, 0)
        dma(vP1, 2, 1)
    elif g == 3:
        e(f"  v_lshrrev_b32 v{D2}, 4, v{vLane}")
        e(f"  v_lshlrev_b32 v{D2}, 5, v{D2}")
        e(f"  v_add_u32 v{D2}, {W2B}, v{D2}")
        e(f"  v_mov_b32 v{D2+1}, {B2B}")
        e("  s_nop 0")
    else:
        e("  s_nop 4")
    for tau in range(4):
        for p in range(2):
            e(f"  v_cvt_pk_bf16_f32 v{M+8*tau+4*s+2*h+p}, v{DT[tau]+2*p}, v{DT[tau]+2*p+1}")
e(f"  ds_read_b128 {vr(W2,4)}, v{D2}")
e(f"  ds_read_b128 {vr(W2+4,4)}, v{D2} offset:16")
e(f"  ds_read_b128 {vr(B2,4)}, v{D2+1}")
e(f"  v_mov_b32 v{D2+2}, 0")
e(f"  v_mov_b32 v{D2+3}, 0")
e("  s_nop 1")
e(f"  v_mfma_f32_32x32x8_bf16 {vr(D3,16)}, {vr(D2+2,2)}, {vr(D2+2,2)}, 0")
e("  s_waitcnt lgkmcnt(0)")
stamp(6)
if OPT["stamp"]:
    e(f"  s_waitcnt vmcnt({2*(NSLOT-1)})")
    stamp(7)
prio(2)
e(f"  s_cmp_eq_u32 s{sNT}, 0")
e("  s_cbranch_scc1 L_out")
e(f"  s_cmp_lg_u64 s[{sBad}:{sBad+1}], 0")
e("  s_cbranch_scc1 L_gen0")

lab = [0]
def tile(slot, general, lab_exit):
    so = slot * 2048
    e(f"  s_waitcnt vmcnt({2*(NSLOT-1)})")
    e(f"  ds_read_b128 {vr(HB,4)}, v{vA0} offset:{so}")
    e(f"  ds_read_b128 {vr(HB+4,4)}, v{vA1} offset:{so}")
    for d in range(4):
        e(f"  ds_read_b64_tr_b16 {vr(HT+2*d,2)}, v{vT[d]} offset:{so}")
    e(f"  ds_read_u8 v{vP0}, v{vL} offset:{16*slot}")
    e(f"  ds_read_u8 v{vP1}, v{vL} offset:{16*slot+8}")
    nrd = 8
    if OPT["prio"]:
        lab[0] += 1
        e(f"  s_cmp_gt_u32 s{sNT}, 2")
        e(f"  s_cbranch_scc1 L_p{lab[0]}")
        e(f"  s_setprio 1")
        e(f"  s_cmp_gt_u32 s{sNT}, 1")
        e(f"  s_cbranch_scc1 L_p{lab[0]}")
        e(f"  s_setprio 0")
        e(f"L_p{lab[0]}:")
    e(f"  s_waitcnt lgkmcnt({nrd-1})")
    for tau in range(4):
        e(f"  v_mfma_f32_16x16x32_bf16 {vr(Z+4*tau,4)}, {vr(M+8*tau,4)}, {vr(HB,4)}, {vr(C+4*tau,4)}")
    e(f"  s_waitcnt lgkmcnt({nrd-2})")
    for tau in range(4):
        e(f"  v_mfma_f32_16x16x32_bf16 {vr(Z+4*tau,4)}, {vr(M+8*tau+4,4)}, {vr(HB+4,4)}, {vr(Z+4*tau,4)}")
    e("  s_nop 4")
    for i in range(16):
        e(f"  v_exp_f32 v{Z+i}, v{Z+i}")
    e("  s_nop 1")
    e(f"  v_mfma_f32_32x32x8_bf16 {vr(Z,16)}, {vr(ONE,2)}, {vr(ONE,2)}, {vr(Z,16)}")
    e("  s_waitcnt lgkmcnt(0)")
    e(f"  s_add_u32 m0, s{sRing}, {so}")
    e(f"  s_sub_u32 s{sNT}, s{sNT}, 1")
    e(f"  buffer_load_dwordx4 {vr(vP0,2)}, s[{rH}:{rH+3}], 0 idxen offen{OPT['nt_hist']} lds")
    e(f"  s_add_u32 m0, s{sRing}, {so+1024}")
    e("  s_nop 0")
    e(f"  buffer_load_dwordx4 {vr(vP1,2)}, s[{rH}:{rH+3}], 0 idxen offen{OPT['nt_hist']} lds")
    e("  s_nop 4")
    for i in range(16):
        e(f"  v_rcp_f32 v{Z+i}, v{Z+i}")
    for i in range(8):
        e(f"  v_cvt_pk_bf16_f32 v{HB+i}, v{Z+2*i}, v{Z+2*i+1}")
    if general:
        e(f"  ds_read_b128 {vr(MK,4)}, v{vML} offset:{64*slot}")
    else:
        e("  s_nop 0")
    e(f"  v_mfma_f32_16x16x32_bf16 {vr(D2,4)}, {vr(HB,4)}, {vr(W2,4)}, {vr(B2,4)}")
    e(f"  v_mfma_f32_16x16x32_bf16 {vr(D2,4)}, {vr(HB+4,4)}, {vr(W2+4,4)}, {vr(D2,4)}")
    if slot == NSLOT - 1:
        e(f"  v_add_u32 v{vL}, {16*NSLOT}, v{vL}")
        if general:
            e(f"  v_add_u32 v{vML}, {64*NSLOT}, v{vML}")
    e("  s_nop 7")
    if general:
        e("  s_waitcnt lgkmcnt(0)")
        for i in range(4):
            e(f"  v_mul_f32 v{D2+i}, v{MK+i}, v{D2+i}")
    e(f"  v_cvt_pk_bf16_f32 v{SP}, v{D2}, v{D2+1}")
    e(f"  v_cvt_pk_bf16_f32 v{SP+1}, v{D2+2}, v{D2+3}")
    e(f"  s_cmp_eq_u32 s{sNT}, 0")
    e("  s_nop 0")
    for d in range(4):
        e(f"  v_mfma_f32_16x16x16_bf16 {vr(D3+4*d,4)}, {vr(SP,2)}, {vr(HT+2*d,2)}, {vr(D3+4*d,4)}")
    e(f"  s_cbranch_scc1 {lab_exit}")

for general in (False, True):
    pre = "L_gen" if general else "L_bin"
    e(f"{pre}0:")
    for slot in range(NSLOT):
        tile(slot, general, "L_out")
    e(f"  s_branch {pre}0")

e("L_out:")
stamp(8)
e("  s_nop 7")
e(f"  s_lshl_b32 s{sTmp}, s{sB}, 7")
e(f"  v_lshl_add_u32 v{Z}, v{vLane}, 1, s{sTmp}")
e(f"  s_mov_b32 s{sC0}, 0xffff0000")
e(f"  s_mov_b32 s{sC0+1}, 0")
e(f"  s_mov_b32 s{sC1}, 0")
e(f"  s_mov_b32 s{sC1+1}, 0xffff")
e(f"  s_mov_b32 s{sC2}, 0")
e(f"  s_mov_b32 s{sC2+1}, 0xffff0000")
e(f"  v_cndmask_b32_e64 v{Z+1}, v{D3}, v{D3+4}, s[{sC0}:{sC0+1}]")
e(f"  v_cndmask_b32_e64 v{Z+1}, v{Z+1}, v{D3+8}, s[{sC1}:{sC1+1}]")
e(f"  v_cndmask_b32_e64 v{Z+1}, v{Z+1}, v{D3+12}, s[{sC2}:{sC2+1}]")
e(f"  v_cvt_pk_bf16_f32 v{Z+1}, v{Z+1}, v{Z+1}")
e(f"  global_store_short v{Z}, v{Z+1}, s[{sO}:{sO+1}]{OPT['nt_out']}")
e("  s_waitcnt vmcnt(0)")
if OPT["stamp"]:
    stamp(9)
    e(f"  s_getreg_b32 s{STAMP0}, hwreg(HW_REG_XCC_ID)")
    e(f"  v_writelane_b32 v{vST}, s{STAMP0}, 10")
    e(f"  v_writelane_b32 v{vST}, s{sN}, 11")
    e(f"  s_lshl_b32 s{sTmp}, s{sB}, 6")
    e(f"  s_add_u32 s88, s86, s{sTmp}")
    e(f"  s_addc_u32 s89, s87, 0")
    e(f"  s_and_b32 s89, s89, 0xffff")
    e(f"  s_mov_b32 s90, 64")
    e(f"  s_mov_b32 s91, 0x20000")
    e(f"  v_lshlrev_b32 v{Z}, 2, v{vLane}")
    e(f"  buffer_store_dword v{vST}, v{Z}, s[88:91], 0 offen")
    e("  s_waitcnt vmcnt(0)")
e("L_end:")
e("  s_endpgm")
e('.section .rodata,"a"')
e(".p2align 6")
e(f".amdhsa_kernel {NAME}_kernel")
e("  .amdhsa_next_free_vgpr 128")
e("  .amdhsa_next_free_sgpr 96")
e("  .amdhsa_accum_offset 128")
e("  .amdhsa_group_segment_fixed_size 0")
e("  .amdhsa_kernarg_size 80")
e("  .amdhsa_user_sgpr_count 2")
e("  .amdhsa_user_sgpr_kernarg_segment_ptr 1")
e("  .amdhsa_system_sgpr_workgroup_id_x 1")
e("  .amdhsa_float_denorm_mode_32 3")
e(".end_amdhsa_kernel")
open(sys.argv[1], "w").write("\n".join(x for x in out if x is not None) + "\n")
```

```python
import sys

NAME = "standalone__sequential_behavior_din__recsys"
OPT = dict(nt_hist=" nt", nt_mask=" nt", nt_out="", stamp=0, prio=1, early=0, mprio=3, dbg=0, late=0, dmapos=1, lprio=1, p1=-2, p2=0, q1=-2, q2=0, t2=2, t1=1, ns=4, p3=4, q3=4, acc=0, swz=1, gl=0)
for a in sys.argv[2:]:
    k, v = a.split("=", 1)
    if k.startswith("nt_"):
        OPT[k] = (" " + v.replace("+", " ")) if v else ""
    else:
        OPT[k] = int(v)

out = []
def e(s=""):
    out.append(s)

NS = OPT["ns"]
NG = 3
RPW = 4 * 2048 if NS == 4 else 3 * 2048 + 1024
MOFF = 3 * 2048
LIST = 16 * RPW
PWB = LIST + 16 * 256
QB = PWB + 16384
BB = QB + 8192
W2B = BB + 256
B2B = W2B + 128
TB = B2B + 64
LDS_BYTES = TB + 2048
assert LDS_BYTES <= 163840 and TB % 16 == 0

M, C, D3, W2, B2, Z, HB, HT, D2 = 0, 32, 48, 64, 72, 76, 92, 100, 108
SP = D2
ONE = 112
vA0, vA1 = 114, 115
vT = [116, 117, 118, 119]
vP0, vP1 = 120, 122
vDC0, vDC1 = 121, 123
vL, vML = 124, 125
vLane, vST = 126, 127
MK = Z

def vr(b, n=1):
    return f"v{b}" if n == 1 else f"v[{b}:{b+n-1}]"

sT, sH, sMk, sW1, sB1, sW2, sB2, sO = 4, 6, 8, 10, 12, 14, 16, 18
sWave, sB = 20, 21
rH = 24
sRing, sList, sN, sNT = 56, 57, 58, 59
sC0, sC1, sC2, sC3 = 60, 62, 64, 66
sK1, sK2, sK3 = 69, 70, 71
sScale, sTmp, sTmp2 = 72, 74, 75
sBad, sDmy = 76, 78
STAMP0 = 84
sE0, sE1, sE2, sE3 = 88, 90, 92, 94

def stamp(i):
    if OPT["stamp"]:
        e(f"  s_memrealtime s[{STAMP0}:{STAMP0+1}]")
        e("  s_waitcnt lgkmcnt(0)")
        e(f"  v_writelane_b32 v{vST}, s{STAMP0}, {i}")
        if i in (6, 8):
            e(f"  s_memtime s[{STAMP0}:{STAMP0+1}]")
            e("  s_waitcnt lgkmcnt(0)")
            e(f"  v_writelane_b32 v{vST}, s{STAMP0}, {12 if i == 6 else 13}")

def prio(p):
    if OPT["prio"]:
        e(f"  s_setprio {p}")

hdr = open("cdna_kernels/" + NAME + ".s.ref").read().split("; Override launch")[0]
e(hdr.rstrip())
e(f"; @launch grid=(256,1,1) block=(1024,1,1) lds={LDS_BYTES}")
e('.amdgcn_target "amdgcn-amd-amdhsa--gfx950"')
e(".text")
e(f".globl {NAME}_kernel")
e(".p2align 8")
e(f".type {NAME}_kernel,@function")
e(f"{NAME}_kernel:")
e("  s_cmp_ge_u32 s2, 256")
e("  s_cbranch_scc1 L_end")
stamp(0)
e("  s_load_dwordx16 s[4:19], s[0:1], 0")
if OPT["stamp"]:
    e("  s_load_dwordx2 s[86:87], s[0:1], 72")
prio(3)
X0 = D2
q_ = Z + 1
vMo, vWo = Z + 6, Z + 7
e(f"  v_lshrrev_b32 v{Z}, 6, v0")
e(f"  v_and_b32 v{vLane}, 63, v0")
e(f"  s_lshl_b32 s{sB}, s2, 4")
e(f"  v_readfirstlane_b32 s{sWave}, v{Z}")
e(f"  v_mov_b32 v{X0}, 0")
e(f"  v_mov_b32 v{X0+1}, 0")
e(f"  s_add_u32 s{sB}, s{sB}, s{sWave}")
e(f"  s_mul_i32 s{sTmp}, s{sB}, 400")
e(f"  s_mul_i32 s{sRing}, s{sWave}, {RPW}")
e(f"  v_lshl_add_u32 v{vMo}, v{vLane}, 3, s{sTmp}")
vWo2 = Z + 8
e(f"  v_and_b32 v{Z+2}, 32, v{vLane}")
e(f"  v_and_b32 v{Z+3}, 31, v{vLane}")
e(f"  s_lshl_b32 s{sTmp2}, s{sWave}, 9")
e(f"  v_lshlrev_b32 v{Z+2}, 9, v{Z+2}")
e(f"  s_add_u32 s{sK3}, s{sTmp2}, {24576-1024}")
e(f"  v_lshl_add_u32 v{vWo}, v{Z+3}, 4, s{sTmp2}")
e(f"  v_lshl_add_u32 v{vWo2}, v{Z+3}, 4, s{sK3}")
e(f"  s_bfm_b64 s[{sC0}:{sC0+1}], 50, 0")
e(f"  v_add_u32 v{vWo}, v{vWo}, v{Z+2}")
e(f"  v_sub_u32 v{vWo2}, v{vWo2}, v{Z+2}")
e(f"  s_add_u32 m0, s{sRing}, 4096")
e(f"  s_mov_b64 exec, s[{sC0}:{sC0+1}]")
e("  s_waitcnt lgkmcnt(0)")
stamp(1)
e(f"  global_load_dwordx2 {vr(X0,2)}, v{vMo}, s[{sMk}:{sMk+1}]{OPT['nt_mask']}")
e("  s_mov_b64 exec, -1")
prio(2)
e(f"  global_load_lds_dwordx4 v{vWo}, s[{sW1}:{sW1+1}]")
e(f"  global_load_lds_dwordx4 v{vWo2}, s[{sW1}:{sW1+1}] offset:1024")
e(f"  v_lshrrev_b32 v{q_}, 4, v{vLane}")
SB1, SB2 = M + 16, M + 17
e(f"  s_cmp_lt_u32 s{sWave}, 13")
e("  s_cbranch_scc1 L_nosmall")
e(f"  s_cmp_eq_u32 s{sWave}, 14")
e("  s_cbranch_scc1 L_w14")
e(f"  s_cmp_eq_u32 s{sWave}, 15")
e("  s_cbranch_scc1 L_w15")
e(f"  v_mov_b32 v{SB1}, 0")
e(f"  v_lshlrev_b32 v{M+20}, 1, v{vLane}")
e(f"  global_load_short_d16_hi v{SB1}, v{M+20}, s[{sB1}:{sB1+1}]")
e("  s_branch L_nosmall")
e("L_w14:")
e(f"  s_lshl_b32 s{sTmp2}, s2, 11")
e(f"  v_lshl_add_u32 v{M+20}, v{vLane}, 4, s{sTmp2}")
e(f"  s_mov_b32 m0, {TB}")
e("  s_nop 0")
e(f"  global_load_lds_dwordx4 v{M+20}, s[{sT}:{sT+1}]")
e(f"  global_load_lds_dwordx4 v{M+20}, s[{sT}:{sT+1}] offset:1024")
e("  s_branch L_nosmall")
e("L_w15:")
e(f"  v_bfe_u32 v{M+20}, v{vLane}, 1, 2")
e(f"  v_lshlrev_b32 v{M+20}, 5, v{M+20}")
e(f"  v_lshrrev_b32 v{M+21}, 3, v{vLane}")
e(f"  v_lshl_add_u32 v{M+20}, v{M+21}, 3, v{M+20}")
e(f"  v_and_b32 v{M+21}, 1, v{vLane}")
e(f"  v_lshl_add_u32 v{M+20}, v{M+21}, 2, v{M+20}")
e(f"  v_mov_b32 v{SB2}, 0")
e(f"  v_mov_b32 v{M+21}, 0")
e(f"  s_mov_b32 m0, {W2B}")
e(f"  global_load_short_d16_hi v{SB2}, v{M+21}, s[{sB2}:{sB2+1}]")
e(f"  s_bfm_b64 exec, 32, 0")
e(f"  global_load_lds_dword v{M+20}, s[{sW2}:{sW2+1}]")
e("  s_mov_b64 exec, -1")
e("L_nosmall:")
e(f"  s_lshl_b32 s{sList}, s{sWave}, 8")
e(f"  s_add_u32 s{sList}, s{sList}, {LIST}")
e(f"  v_mov_b32 v{M}, -1")
e(f"  v_lshl_add_u32 v{Z+3}, v{vLane}, 2, s{sList}")
e(f"  ds_write_b32 v{Z+3}, v{M}")
t0, t1, t2, t3, t4 = Z, q_, Z + 2, Z + 3, Z + 4
PWA, QWA, RWA = D3, D3 + 1, D3 + 2
e(f"  s_mul_i32 s{sTmp}, s{sB}, 25600")
e(f"  v_and_b32 v{t2}, 7, v{vLane}")
e(f"  s_add_u32 s{rH}, s{sH}, s{sTmp}")
e(f"  v_xor_b32 v{t2}, v{t2}, v{t1}") if OPT["swz"] else e("  s_nop 0")
e(f"  s_addc_u32 s{rH+1}, s{sH+1}, 0")
e(f"  v_lshlrev_b32 v{vDC0}, 4, v{t2}")
e(f"  s_or_b32 s{rH+1}, s{rH+1}, {128 << 16}")
e(f"  v_xor_b32 v{vDC1}, {64 if OPT['swz'] else 0}, v{vDC0}")
e(f"  s_mov_b32 s{rH+2}, 200")
e(f"  v_lshrrev_b32 v{t2}, 3, v{vLane}")
e(f"  s_mov_b32 s{rH+3}, 0x20000")
e(f"  v_add_u32 v{vL}, s{sList}, v{t2}")
vR = [Z + 11, Z + 12, Z + 13, Z + 14]
e(f"  v_lshlrev_b32 v{vR[0]}, 2, v{vLane}")
e(f"  s_mov_b32 s{sK1}, 0xffff")
for i in range(1, 4):
    e(f"  v_add_u32 v{vR[i]}, {i}, v{vR[0]}")
pos = [Z + 2, Z + 3, Z + 4, Z + 5]
prio(1)
e(f"  v_and_b32 v{t0}, 15, v{vLane}")
e(f"  s_mov_b32 s{sK2}, 0xffff0000")
e(f"  v_lshrrev_b32 v{t2}, 1, v{t0}") if OPT["swz"] else e(f"  v_mov_b32 v{t2}, 0")
e(f"  s_mov_b32 s{sScale}, 0xbfb8aa3b")
e(f"  v_xor_b32 v{t2}, v{t2}, v{t1}")
e(f"  s_mov_b32 s{sScale+1}, 0xbfb8aa3b")
e(f"  v_lshlrev_b32 v{t2}, 4, v{t2}")
e(f"  s_lshr_b32 s{sTmp}, s{sWave}, 3")
e(f"  v_lshl_add_u32 v{t2}, v{t0}, 7, v{t2}")
e(f"  s_lshl_b32 s{sTmp2}, s{sTmp}, 11")
e(f"  v_add_u32 v{vA0}, s{sRing}, v{t2}")
e(f"  s_and_b32 s{sK3}, s{sWave}, 1")
e(f"  v_xor_b32 v{vA1}, 64, v{vA0}")
e(f"  s_lshl_b32 s{sK3}, s{sK3}, 10")
e(f"  v_lshrrev_b32 v{t2}, 2, v{t0}")
e(f"  s_add_u32 s{sTmp2}, s{sTmp2}, s{sK3}")
e(f"  v_and_b32 v{RWA}, 3, v{vLane}")
e(f"  s_bfe_u32 s{sK3}, s{sWave}, 0x20001")
e(f"  v_cmp_eq_u32_e64 s[{sC1}:{sC1+1}], v{t2}, v{t1}")
e(f"  s_lshl_b32 s{sK3}, s{sK3}, 8")
e(f"  v_lshlrev_b32 v{RWA}, 3, v{RWA}")
e(f"  s_add_u32 s{sTmp2}, s{sTmp2}, s{sK3}")
e(f"  v_lshl_add_u32 v{RWA}, v{t2}, 7, v{RWA}")
e(f"  s_add_u32 s{sTmp2}, s{sTmp2}, {PWB}")
e(f"  v_lshl_add_u32 v{RWA}, v{t1}, 5, v{RWA}")
e(f"  s_lshl_b32 s{sTmp}, s{sTmp}, 10")
e(f"  v_lshl_add_u32 v{t2}, v{t1}, 2, v{t2}")
e(f"  s_add_u32 s{sTmp}, s{sTmp}, s{sK3}")
e(f"  v_lshrrev_b32 v{t3}, 1, v{t2}") if OPT["swz"] else e(f"  v_mov_b32 v{t3}, 0")
e(f"  s_and_b32 s{sK3}, s{sWave}, 1")
e(f"  v_bfe_u32 v{t4}, v{vLane}, 1, 1")
e(f"  s_lshl_b32 s{sK3}, s{sK3}, 3")
e(f"  v_xor_b32 v{t3}, v{t3}, v{t4}")
e(f"  s_add_u32 s{sTmp}, s{sTmp}, s{sK3}")
e(f"  v_lshlrev_b32 v{t3}, 4, v{t3}")
e(f"  s_add_u32 s{sTmp}, s{sTmp}, {QB}")
e(f"  v_lshl_add_u32 v{t3}, v{t2}, 7, v{t3}")
e(f"  s_add_u32 s{sK3}, s{sRing}, 4096")
e(f"  v_and_b32 v{t2}, 1, v{vLane}")
e(f"  v_add_u32 v{RWA}, s{sK3}, v{RWA}")
e(f"  v_lshl_add_u32 v{t3}, v{t2}, 3, v{t3}")
e(f"  v_lshlrev_b32 v{t0}, 4, v{t0}")
e(f"  v_add_u32 v{vT[0]}, s{sRing}, v{t3}")
e(f"  v_lshl_add_u32 v{PWA}, v{t1}, 12, v{t0}")
for d in range(1, 4):
    e(f"  v_xor_b32 v{vT[d]}, {32*d}, v{vT[0]}")
e(f"  v_lshl_add_u32 v{QWA}, v{t1}, 11, v{t0}")
e(f"  v_add_u32 v{PWA}, s{sTmp2}, v{PWA}")
e(f"  v_add_u32 v{QWA}, s{sTmp}, v{QWA}")
vM0, vM1 = D2 + 2, D2 + 3
e(f"  v_lshlrev_b32 v{t2}, 4, v{t2}")
e(f"  v_mov_b32 v{t3}, 0xffff")
e(f"  v_lshlrev_b32 v{t3}, v{t2}, v{t3}")
e(f"  v_cndmask_b32_e64 v{t3}, 0, v{t3}, s[{sC1}:{sC1+1}]")
e(f"  v_cmp_eq_u32_e64 s[{sC1}:{sC1+1}], 0, v{t4}")
e(f"  v_mov_b32 v{pos[0]}, s{sList}")
e(f"  v_mov_b32 v{ONE+1}, 0")
e(f"  v_cndmask_b32_e64 v{vM0}, 0, v{t3}, s[{sC1}:{sC1+1}]")
e(f"  v_cndmask_b32_e64 v{vM1}, v{t3}, 0, s[{sC1}:{sC1+1}]")
e("  s_waitcnt vmcnt(2)")
stamp(2)
prio(3)
e(f"  v_cmp_ne_u16_e64 s[{sC0}:{sC0+1}], 0, v{X0}")
e(f"  v_cmp_lt_u32_e64 s[{sC1}:{sC1+1}], s{sK1}, v{X0}")
e(f"  v_cmp_ne_u16_e64 s[{sC2}:{sC2+1}], 0, v{X0+1}")
e(f"  v_cmp_lt_u32_e64 s[{sC3}:{sC3+1}], s{sK1}, v{X0+1}")
e(f"  v_mbcnt_lo_u32_b32 v{pos[0]}, s{sC0}, v{pos[0]}")
e(f"  v_mbcnt_hi_u32_b32 v{pos[0]}, s{sC0+1}, v{pos[0]}")
for c in (sC1, sC2, sC3):
    e(f"  v_mbcnt_lo_u32_b32 v{pos[0]}, s{c}, v{pos[0]}")
    e(f"  v_mbcnt_hi_u32_b32 v{pos[0]}, s{c+1}, v{pos[0]}")
e(f"  s_mov_b64 exec, s[{sC0}:{sC0+1}]")
e(f"  ds_write_b8 v{pos[0]}, v{vR[0]}")
e("  s_mov_b64 exec, -1")
e(f"  v_addc_co_u32_e64 v{pos[1]}, s[{sDmy}:{sDmy+1}], 0, v{pos[0]}, s[{sC0}:{sC0+1}]")
e(f"  v_addc_co_u32_e64 v{pos[2]}, s[{sDmy}:{sDmy+1}], 0, v{pos[1]}, s[{sC1}:{sC1+1}]")
e(f"  v_addc_co_u32_e64 v{pos[3]}, s[{sDmy}:{sDmy+1}], 0, v{pos[2]}, s[{sC2}:{sC2+1}]")
for i, c in ((1, sC1), (2, sC2), (3, sC3)):
    e(f"  s_mov_b64 exec, s[{c}:{c+1}]")
    e(f"  ds_write_b8 v{pos[i]}, v{vR[i]}")
e("  s_mov_b64 exec, -1")
e(f"  ds_read_u8 v{vP0}, v{vL}")
e(f"  ds_read_u8 v{vP1}, v{vL} offset:8")
def dma(pair, slot, hf, filler=None):
    e(f"  s_add_u32 m0, s{sRing}, {slot*2048+hf*1024}")
    e(filler or "  s_nop 0")
    e(f"  buffer_load_dwordx4 {vr(pair,2)}, s[{rH}:{rH+3}], 0 idxen offen{OPT['nt_hist']} lds")
e(f"  s_bcnt1_i32_b64 s{sN}, s[{sC0}:{sC0+1}]")
e(f"  s_bcnt1_i32_b64 s{sK3}, s[{sC1}:{sC1+1}]")
e(f"  s_add_u32 s{sN}, s{sN}, s{sK3}")
e(f"  s_bcnt1_i32_b64 s{sK3}, s[{sC2}:{sC2+1}]")
e(f"  s_add_u32 s{sN}, s{sN}, s{sK3}")
e(f"  s_bcnt1_i32_b64 s{sK3}, s[{sC3}:{sC3+1}]")
e(f"  s_add_u32 s{sN}, s{sN}, s{sK3}")
e("  s_waitcnt lgkmcnt(1)")
dma(vP0, 0, 0)
e("  s_waitcnt lgkmcnt(0)")
dma(vP1, 0, 1)
stamp(3)
prio(2)
RW = HB
e("  s_waitcnt vmcnt(2)")
stamp(4)
for m in range(4):
    e(f"  ds_read_b64_tr_b16 {vr(RW+2*m,2)}, v{RWA} offset:{512*m}")
e(f"  ds_read_u8 v{vP0}, v{vL} offset:16")
e(f"  ds_read_u8 v{vP1}, v{vL} offset:24")
e(f"  s_add_u32 s{sNT}, s{sN}, 15")
e(f"  s_lshr_b32 s{sNT}, s{sNT}, 4")
e(f"  s_movk_i32 s{sTmp}, 0x3f80")
e(f"  v_cmp_eq_u16_e64 s[{sE0}:{sE0+1}], s{sTmp}, v{X0}")
e(f"  v_cmp_eq_u16_e64 s[{sE2}:{sE2+1}], s{sTmp}, v{X0+1}")
e(f"  v_lshrrev_b32 v{Z+6}, 16, v{X0}")
e(f"  v_lshrrev_b32 v{Z+7}, 16, v{X0+1}")
e(f"  v_cmp_eq_u16_e64 s[{sE1}:{sE1+1}], s{sTmp}, v{Z+6}")
e(f"  v_cmp_eq_u16_e64 s[{sE3}:{sE3+1}], s{sTmp}, v{Z+7}")
e(f"  s_xor_b64 s[{sBad}:{sBad+1}], s[{sE0}:{sE0+1}], s[{sC0}:{sC0+1}]")
for a_, b_ in ((sE1, sC1), (sE2, sC2), (sE3, sC3)):
    e(f"  s_xor_b64 s[{a_}:{a_+1}], s[{a_}:{a_+1}], s[{b_}:{b_+1}]")
    e(f"  s_or_b64 s[{sBad}:{sBad+1}], s[{sBad}:{sBad+1}], s[{a_}:{a_+1}]")
e(f"  s_cmp_lg_u64 s[{sBad}:{sBad+1}], 0")
e("  s_cbranch_scc0 L_binmask")
e(f"  s_add_u32 s{sTmp}, s{sRing}, {MOFF}")
for i in range(4):
    e(f"  v_mov_b32 v{M+i}, 0")
e(f"  v_lshl_add_u32 v{Z+6}, v{vLane}, 4, s{sTmp}")
e(f"  ds_write_b128 v{Z+6}, {vr(M,4)}")
e(f"  v_lshl_add_u32 v{vML}, v{q_}, 4, s{sTmp}")
e(f"  v_lshlrev_b32 v{M+4}, 16, v{X0}")
e(f"  v_and_b32 v{M+5}, s{sK2}, v{X0}")
e(f"  v_lshlrev_b32 v{M+6}, 16, v{X0+1}")
e(f"  v_and_b32 v{M+7}, s{sK2}, v{X0+1}")
for i in range(4):
    e(f"  v_subrev_u32 v{pos[i]}, s{sList}, v{pos[i]}")
    e(f"  v_lshl_add_u32 v{pos[i]}, v{pos[i]}, 2, s{sTmp}")
for i, c in enumerate((sC0, sC1, sC2, sC3)):
    e(f"  s_mov_b64 exec, s[{c}:{c+1}]")
    e(f"  ds_write_b32 v{pos[i]}, v{M+4+i}")
e("  s_mov_b64 exec, -1")
e("L_binmask:")
W1R = M
Wa, Wc, Wd, Wb_ = W1R, W1R + 4, W1R + 8, W1R + 12
e("  s_waitcnt lgkmcnt(0)")
if OPT["early"]:
    dma(vP0, 1, 0)
    dma(vP1, 1, 1)
    e(f"  ds_read_u8 v{vP0}, v{vL} offset:32")
    e(f"  ds_read_u8 v{vP1}, v{vL} offset:40")
for m in range(4):
    for r in range(2):
        e(f"  v_lshlrev_b32 v{W1R+4*m+2*r}, 16, v{RW+2*m+r}")
        e(f"  v_and_b32 v{W1R+4*m+2*r+1}, s{sK2}, v{RW+2*m+r}")
for p in range(2):
    e(f"  v_pk_add_f32 {vr(Wa+2*p,2)}, {vr(Wa+2*p,2)}, {vr(Wc+2*p,2)}")
for p in range(2):
    e(f"  v_pk_add_f32 {vr(Wb_+2*p,2)}, {vr(Wb_+2*p,2)}, {vr(Wc+2*p,2)} neg_lo:[0,1] neg_hi:[0,1]")
for base in (Wd, Wa, Wb_):
    for p in range(2):
        e(f"  v_pk_mul_f32 {vr(base+2*p,2)}, {vr(base+2*p,2)}, s[{sScale}:{sScale+1}]")
e(f"  v_cvt_pk_bf16_f32 v{RW+2}, v{Wd}, v{Wd+1}")
e(f"  v_cvt_pk_bf16_f32 v{RW+3}, v{Wd+2}, v{Wd+3}")
e(f"  v_cvt_pk_bf16_f32 v{RW}, v{Wa}, v{Wa+1}")
e(f"  v_cvt_pk_bf16_f32 v{RW+1}, v{Wa+2}, v{Wa+3}")
e(f"  v_cvt_pk_bf16_f32 v{RW+6}, v{Wb_}, v{Wb_+1}")
e(f"  v_cvt_pk_bf16_f32 v{RW+7}, v{Wb_+2}, v{Wb_+3}")
e(f"  ds_write_b128 v{PWA}, {vr(RW,4)}")
e(f"  ds_write_b64 v{QWA}, {vr(RW+6,2)}")
e(f"  s_cmp_lt_u32 s{sWave}, 13")
e("  s_cbranch_scc1 L_nosmall2")
e(f"  s_cmp_eq_u32 s{sWave}, 13")
e("  s_cbranch_scc0 L_nb1")
e(f"  v_mul_f32 v{SB1}, s{sScale}, v{SB1}")
e(f"  v_lshlrev_b32 v{M+20}, 2, v{vLane}")
e(f"  v_add_u32 v{M+20}, {BB}, v{M+20}")
e(f"  ds_write_b32 v{M+20}, v{SB1}")
e("L_nb1:")
e(f"  s_cmp_eq_u32 s{sWave}, 15")
e("  s_cbranch_scc0 L_nosmall2")
e(f"  v_and_b32 v{M+20}, 3, v{vLane}")
e(f"  v_lshlrev_b32 v{M+20}, 2, v{M+20}")
e(f"  v_add_u32 v{M+20}, {B2B}, v{M+20}")
e(f"  ds_write_b32 v{M+20}, v{SB2}")
e("L_nosmall2:")
AD = HB + 4
vPA, vQA = D2, D2 + 1
e(f"  s_mov_b32 s{sTmp}, 0x3f803f80")
e(f"  v_lshlrev_b32 v{vPA}, 4, v{vLane}")
e(f"  v_and_b32 v{AD}, s{sTmp}, v{vM0}")
e(f"  v_add_u32 v{vQA}, {QB}, v{vPA}")
e(f"  v_and_b32 v{AD+1}, s{sTmp}, v{vM1}")
e(f"  v_add_u32 v{vPA}, {PWB}, v{vPA}")
e(f"  s_lshl_b32 s{sTmp}, s{sWave}, 7")
e(f"  s_add_u32 s{sTmp}, s{sTmp}, {TB}")
e(f"  v_lshl_add_u32 v{Z+9}, v{q_}, 4, s{sTmp}")
e(f"  v_lshlrev_b32 v{Z+10}, 4, v{q_}")
e(f"  v_cmp_gt_u32 vcc, 32, v{vLane}")
e(f"  v_mov_b32 v{Z}, 0x3f80")
e(f"  v_add_u32 v{Z+10}, {BB}, v{Z+10}")
e(f"  v_cndmask_b32 v{ONE}, 0, v{Z}, vcc")
e("  s_waitcnt lgkmcnt(0)")
if OPT["early"]:
    dma(vP0, 2, 0)
    dma(vP1, 2, 1)
e("  s_barrier")
stamp(5)
prio(OPT["mprio"])
e(f"  ds_read_b128 {vr(HT,4)}, v{Z+9}")
e(f"  ds_read_b128 {vr(HT+4,4)}, v{Z+9} offset:64")
for tau in range(4):
    e(f"  ds_read_b128 {vr(C+4*tau,4)}, v{Z+10} offset:{64*tau}")
for g in range(8):
    e(f"  ds_read_b128 {vr(M+4*g,4)}, v{vQA} offset:{1024*g}")
nlab = [0]
def cond_block(old_here, young_here, body):
    if not (old_here or young_here):
        return
    nlab[0] += 1
    lab_ = nlab[0]
    if old_here != young_here:
        e(f"  s_cmp_lt_u32 s{sWave}, 8")
        e(f"  s_cbranch_scc{0 if old_here else 1} L_rd{lab_}")
    body()
    if old_here != young_here:
        e(f"L_rd{lab_}:")
def idx2():
    e(f"  ds_read_u8 v{vP0}, v{vL} offset:32")
    e(f"  ds_read_u8 v{vP1}, v{vL} offset:40")
def ring_dma(posn):
    def t1():
        dma(vP0, 1, 0)
        dma(vP1, 1, 1)
        if posn != -2:
            idx2()
    def t2():
        e("  s_waitcnt lgkmcnt(0)")
        dma(vP0, 2, 0)
        dma(vP1, 2, 1)
    if posn == -1:
        cond_block(OPT["p1"] == -2, OPT["q1"] == -2, idx2)
    cond_block(OPT["p1"] == posn, OPT["q1"] == posn, t1)
    cond_block(OPT["p2"] == posn, OPT["q2"] == posn, t2)
B0 = [D3 + 4*i for i in range(4)]
B1 = [W2, W2 + 4, W2 + 8, HB]
BUFS = [B0, B1]
def mread(g):
    s, h = g >> 1, g & 1
    for tau in range(4):
        e(f"  ds_read_b128 {vr(BUFS[g&1][tau],4)}, v{vPA} offset:{tau*4096+s*2048+h*1024}")
ring_dma(-2)
for g in range(8):
    e(f"  s_waitcnt lgkmcnt({7-g})")
    tau, s = g >> 1, g & 1
    e(f"  v_mfma_f32_16x16x32_bf16 {vr(C+4*tau,4)}, {vr(M+4*g,4)}, {vr(HT+4*s,4)}, {vr(C+4*tau,4)}")
ring_dma(-1)
mread(0)
DT = [Z, Z + 4, Z + 8, Z + 12]
for g in range(4):
    s, h = g >> 1, g & 1
    if g < 3:
        mread(g + 1)
    e(f"  v_and_b32 v{AD+2}, v{HT+4*s+2*h}, v{vM0}")
    e(f"  v_and_b32 v{AD+3}, v{HT+4*s+2*h+1}, v{vM1}")
    e(f"  s_waitcnt lgkmcnt({4 if g < 3 else 0})")
    e("  s_nop 0")
    for tau in range(4):
        e(f"  v_mfma_f32_16x16x32_bf16 {vr(DT[tau],4)}, {vr(AD,4)}, {vr(BUFS[g&1][tau],4)}, 0")
    if g == 3:
        e(f"  v_lshrrev_b32 v{D2}, 4, v{vLane}")
        e(f"  v_lshlrev_b32 v{D2}, 5, v{D2}")
        e(f"  v_add_u32 v{D2}, {W2B}, v{D2}")
        e(f"  v_mov_b32 v{D2+1}, {B2B}")
        e("  s_nop 0")
    else:
        e("  s_nop 4")
    for tau in range(4):
        for p in range(2):
            e(f"  v_cvt_pk_bf16_f32 v{M+8*tau+4*s+2*h+p}, v{DT[tau]+2*p}, v{DT[tau]+2*p+1}")
    ring_dma(g)
e(f"  ds_read_b128 {vr(W2,4)}, v{D2}")
e(f"  ds_read_b128 {vr(W2+4,4)}, v{D2} offset:16")
e(f"  ds_read_b128 {vr(B2,4)}, v{D2+1}")
ring_dma(4)
e(f"  v_mov_b32 v{D2+2}, 0")
e(f"  v_mov_b32 v{D2+3}, 0")
e("  s_nop 1")
e(f"  v_mfma_f32_32x32x8_bf16 {vr(D3,16)}, {vr(D2+2,2)}, {vr(D2+2,2)}, 0")
e("  s_waitcnt lgkmcnt(0)")
stamp(6)
if OPT["stamp"]:
    e(f"  s_waitcnt vmcnt(4)")
    stamp(7)
if OPT["acc"]:
    e("  s_mov_b32 s44, 0")
    e("  s_mov_b32 s45, 0")
prio(2)
e(f"  s_cmp_eq_u32 s{sNT}, 0")
e("  s_cbranch_scc1 L_out")
e(f"  s_cmp_lg_u64 s[{sBad}:{sBad+1}], 0")
e("  s_cbranch_scc1 L_genpre")
if NS == 4:
    e(f"  ds_read_u8 v{vP0}, v{vL} offset:48")
    e(f"  ds_read_u8 v{vP1}, v{vL} offset:56")
    e("  s_waitcnt lgkmcnt(0)")
    dma(vP0, 3, 0)
    dma(vP1, 3, 1)
e(f"  v_add_u32 v{vL}, {16*NS}, v{vL}")

lab = [0]
tails = []
def tile(slot, general, lab_exit, ns):
    so = slot * 2048
    lab[0] += 1
    k = lab[0]
    if OPT["acc"]:
        e("  s_memtime s[40:41]")
        e("  s_waitcnt lgkmcnt(0)")
    e(f"  s_cmp_ge_u32 s{sNT}, {ns}")
    e(f"  s_cbranch_scc0 L_tw{k}")
    e(f"  s_waitcnt vmcnt({2*(ns-1)})")
    e(f"L_aw{k}:")
    if OPT["acc"]:
        e("  s_memtime s[42:43]")
        e("  s_waitcnt lgkmcnt(0)")
        e("  s_sub_u32 s40, s42, s40")
        e("  s_add_u32 s44, s44, s40")
    tails.append((k, ns))
    e(f"  ds_read_b128 {vr(HB,4)}, v{vA0} offset:{so}")
    e(f"  ds_read_b128 {vr(HB+4,4)}, v{vA1} offset:{so}")
    for d in range(4):
        e(f"  ds_read_b64_tr_b16 {vr(HT+2*d,2)}, v{vT[d]} offset:{so}")
    e(f"  ds_read_u8 v{vP0}, v{vL} offset:{16*slot}")
    e(f"  ds_read_u8 v{vP1}, v{vL} offset:{16*slot+8}")
    nrd = 8
    if OPT["prio"] and OPT["lprio"]:
        e(f"  s_cmp_gt_u32 s{sNT}, {OPT['t2']}")
        e(f"  s_cbranch_scc1 L_p{k}")
        e(f"  s_setprio 1")
        e(f"  s_cmp_gt_u32 s{sNT}, {OPT['t1']}")
        e(f"  s_cbranch_scc1 L_p{k}")
        e(f"  s_setprio 0")
        e(f"L_p{k}:")
    e(f"  s_waitcnt lgkmcnt({nrd-1})")
    for tau in range(4):
        e(f"  v_mfma_f32_16x16x32_bf16 {vr(Z+4*tau,4)}, {vr(M+8*tau,4)}, {vr(HB,4)}, {vr(C+4*tau,4)}")
    e(f"  s_waitcnt lgkmcnt({nrd-2})")
    for tau in range(4):
        e(f"  v_mfma_f32_16x16x32_bf16 {vr(Z+4*tau,4)}, {vr(M+8*tau+4,4)}, {vr(HB+4,4)}, {vr(Z+4*tau,4)}")
    def issue_dma():
        e("  s_waitcnt lgkmcnt(0)")
        if OPT["acc"]:
            e("  s_memtime s[40:41]")
            e("  s_waitcnt lgkmcnt(0)")
        e(f"  s_cmp_gt_u32 s{sNT}, {ns}")
        e(f"  s_cbranch_scc0 L_nd{k}")
        e(f"  s_add_u32 m0, s{sRing}, {so}")
        e("  s_nop 0")
        e(f"  buffer_load_dwordx4 {vr(vP0,2)}, s[{rH}:{rH+3}], 0 idxen offen{OPT['nt_hist']} lds")
        e(f"  s_add_u32 m0, s{sRing}, {so+1024}")
        e("  s_nop 0")
        e(f"  buffer_load_dwordx4 {vr(vP1,2)}, s[{rH}:{rH+3}], 0 idxen offen{OPT['nt_hist']} lds")
        e(f"L_nd{k}:")
        if OPT["acc"]:
            e("  s_memtime s[42:43]")
            e("  s_waitcnt lgkmcnt(0)")
            e("  s_sub_u32 s40, s42, s40")
            e("  s_add_u32 s45, s45, s40")
        e(f"  s_sub_u32 s{sNT}, s{sNT}, 1")
    if OPT["dmapos"] == 0:
        issue_dma()
        e("  s_nop 1")
    else:
        e("  s_nop 4")
    for i in range(16):
        e(f"  v_exp_f32 v{Z+i}, v{Z+i}")
    e("  s_nop 1")
    e(f"  v_mfma_f32_32x32x8_bf16 {vr(Z,16)}, {vr(ONE,2)}, {vr(ONE,2)}, {vr(Z,16)}")
    if OPT["dmapos"] == 1:
        issue_dma()
        e("  s_nop 7")
    else:
        e("  s_nop 11")
    for i in range(16):
        e(f"  v_rcp_f32 v{Z+i}, v{Z+i}")
    for i in range(8):
        e(f"  v_cvt_pk_bf16_f32 v{HB+i}, v{Z+2*i}, v{Z+2*i+1}")
    if general:
        e(f"  ds_read_b128 {vr(MK,4)}, v{vML} offset:{64*slot}")
    else:
        e("  s_nop 0")
    e(f"  v_mfma_f32_16x16x32_bf16 {vr(D2,4)}, {vr(HB,4)}, {vr(W2,4)}, {vr(B2,4)}")
    e(f"  v_mfma_f32_16x16x32_bf16 {vr(D2,4)}, {vr(HB+4,4)}, {vr(W2+4,4)}, {vr(D2,4)}")
    if slot == ns - 1:
        e(f"  v_add_u32 v{vL}, {16*ns}, v{vL}")
        if general:
            e(f"  v_add_u32 v{vML}, {64*ns}, v{vML}")
    if OPT["dmapos"] == 2:
        issue_dma()
        e("  s_nop 3")
    else:
        e("  s_nop 7")
    if general:
        e("  s_waitcnt lgkmcnt(0)")
        for i in range(4):
            e(f"  v_mul_f32 v{D2+i}, v{MK+i}, v{D2+i}")
    e(f"  v_cvt_pk_bf16_f32 v{SP}, v{D2}, v{D2+1}")
    e(f"  v_cvt_pk_bf16_f32 v{SP+1}, v{D2+2}, v{D2+3}")
    e(f"  s_cmp_eq_u32 s{sNT}, 0")
    e("  s_nop 0")
    for d in range(4):
        e(f"  v_mfma_f32_16x16x16_bf16 {vr(D3+4*d,4)}, {vr(SP,2)}, {vr(HT+2*d,2)}, {vr(D3+4*d,4)}")
    e(f"  s_cbranch_scc1 {lab_exit}")

e("L_bin0:")
for slot in range(NS):
    tile(slot, False, "L_out", NS)
e("  s_branch L_bin0")
e("L_genpre:")
e(f"  v_add_u32 v{vL}, {16*NG}, v{vL}")
e("L_gen0:")
for slot in range(NG):
    tile(slot, True, "L_out", NG)
e("  s_branch L_gen0")
for k, ns in tails:
    e(f"L_tw{k}:")
    for r in range(ns - 1, 1, -1):
        e(f"  s_cmp_eq_u32 s{sNT}, {r}")
        e(f"  s_cbranch_scc0 L_tw{k}_{r}")
        e(f"  s_waitcnt vmcnt({2*(r-1)})")
        e(f"  s_branch L_aw{k}")
        e(f"L_tw{k}_{r}:")
    e("  s_waitcnt vmcnt(0)")
    e(f"  s_branch L_aw{k}")

e("L_out:")
stamp(8)
e("  s_nop 7")
e(f"  s_lshl_b32 s{sTmp}, s{sB}, 7")
e(f"  v_lshl_add_u32 v{Z}, v{vLane}, 1, s{sTmp}")
e(f"  s_mov_b32 s{sC0}, 0xffff0000")
e(f"  s_mov_b32 s{sC0+1}, 0")
e(f"  s_mov_b32 s{sC1}, 0")
e(f"  s_mov_b32 s{sC1+1}, 0xffff")
e(f"  s_mov_b32 s{sC2}, 0")
e(f"  s_mov_b32 s{sC2+1}, 0xffff0000")
e(f"  v_cndmask_b32_e64 v{Z+1}, v{D3}, v{D3+4}, s[{sC0}:{sC0+1}]")
e(f"  v_cndmask_b32_e64 v{Z+1}, v{Z+1}, v{D3+8}, s[{sC1}:{sC1+1}]")
e(f"  v_cndmask_b32_e64 v{Z+1}, v{Z+1}, v{D3+12}, s[{sC2}:{sC2+1}]")
e(f"  v_cvt_pk_bf16_f32 v{Z+1}, v{Z+1}, v{Z+1}")
e(f"  global_store_short v{Z}, v{Z+1}, s[{sO}:{sO+1}]{OPT['nt_out']}")
e("  s_waitcnt vmcnt(0)")
if OPT["dbg"]:
    stamp(9)
    e("  s_load_dwordx2 s[86:87], s[0:1], 64")
    e(f"  v_readlane_b32 s{STAMP0}, v{vST}, 0")
    e("  s_nop 3")
    e("  s_waitcnt lgkmcnt(0)")
    e(f"  v_mov_b32 v{Z}, s{STAMP0}")
    e(f"  v_sub_u32 v{Z+1}, v{vST}, v{Z}")
    e(f"  v_lshlrev_b32 v{Z+2}, 2, v{vLane}")
    e(f"  v_cmp_eq_u32 vcc, 0, v{vLane}")
    e(f"  v_not_b32 v{Z+3}, v{vST}")
    e("  s_nop 0")
    e(f"  v_cndmask_b32 v{Z+1}, v{Z+1}, v{Z+3}, vcc")
    e(f"  s_bfm_b64 exec, 10, 0")
    e(f"  global_atomic_umax v{Z+2}, v{Z+1}, s[86:87]")
    e("  s_mov_b64 exec, -1")
    e(f"  v_readlane_b32 s{STAMP0}, v{vST}, 9")
    e("  s_nop 3")
    e(f"  v_mov_b32 v{Z+4}, 40")
    e(f"  v_mov_b32 v{Z+5}, s{STAMP0}")
    e(f"  v_readlane_b32 s{sTmp}, v{vST}, 12")
    e(f"  v_readlane_b32 s{sTmp2}, v{vST}, 13")
    e(f"  s_bfm_b64 exec, 1, 0")
    e(f"  global_atomic_umax v{Z+4}, v{Z+5}, s[86:87]")
    e(f"  s_sub_u32 s{sTmp2}, s{sTmp2}, s{sTmp}")
    e(f"  v_readlane_b32 s{sTmp}, v{vST}, 6")
    e(f"  v_readlane_b32 s{STAMP0}, v{vST}, 8")
    e("  s_nop 3")
    e(f"  s_cmp_eq_u32 s{sB}, 777")
    e("  s_cbranch_scc0 L_dbg_done")
    e(f"  s_sub_u32 s{STAMP0}, s{STAMP0}, s{sTmp}")
    e(f"  v_mov_b32 v{Z+4}, 44")
    e(f"  v_mov_b32 v{Z+5}, s{sTmp2}")
    e(f"  global_atomic_umax v{Z+4}, v{Z+5}, s[86:87]")
    e(f"  v_mov_b32 v{Z+4}, 48")
    e(f"  v_mov_b32 v{Z+5}, s{STAMP0}")
    e(f"  global_atomic_umax v{Z+4}, v{Z+5}, s[86:87]")
    e("L_dbg_done:")
    e("  s_mov_b64 exec, -1")
    e("  s_waitcnt vmcnt(0)")
elif OPT["stamp"]:
    stamp(9)
    e(f"  s_getreg_b32 s{STAMP0}, hwreg(HW_REG_XCC_ID)")
    e(f"  v_writelane_b32 v{vST}, s{STAMP0}, 10")
    e(f"  v_writelane_b32 v{vST}, s{sN}, 11")
    if OPT["acc"]:
        e(f"  v_writelane_b32 v{vST}, s44, 14")
        e(f"  v_writelane_b32 v{vST}, s45, 15")
    e(f"  s_lshl_b32 s{sTmp}, s{sB}, 6")
    e(f"  s_add_u32 s88, s86, s{sTmp}")
    e(f"  s_addc_u32 s89, s87, 0")
    e(f"  s_and_b32 s89, s89, 0xffff")
    e(f"  s_mov_b32 s90, 64")
    e(f"  s_mov_b32 s91, 0x20000")
    e(f"  v_lshlrev_b32 v{Z}, 2, v{vLane}")
    e(f"  buffer_store_dword v{vST}, v{Z}, s[88:91], 0 offen")
    e("  s_waitcnt vmcnt(0)")
e("L_end:")
e("  s_endpgm")
e('.section .rodata,"a"')
e(".p2align 6")
e(f".amdhsa_kernel {NAME}_kernel")
e("  .amdhsa_next_free_vgpr 128")
e("  .amdhsa_next_free_sgpr 96")
e("  .amdhsa_accum_offset 128")
e("  .amdhsa_group_segment_fixed_size 0")
e("  .amdhsa_kernarg_size 80")
e("  .amdhsa_user_sgpr_count 2")
e("  .amdhsa_user_sgpr_kernarg_segment_ptr 1")
e("  .amdhsa_system_sgpr_workgroup_id_x 1")
e("  .amdhsa_float_denorm_mode_32 3")
e(".end_amdhsa_kernel")
open(sys.argv[1], "w").write("\n".join(x for x in out if x is not None) + "\n")
```

```python
import sys

NAME = "standalone__sequential_behavior_din__recsys"
OPT = dict(nt_hist=" nt", nt_mask=" nt", nt_out="", stamp=0, prio=1, mprio=3, lprio=1,
           p1=-2, p2=0, q1=-2, q2=0, t2=2, t1=1, split=8, acc=0, mbar=0, sp0=13, pf=0, pfn=44, endwait=1, sharec=1, cw0=4)
for a in sys.argv[2:]:
    k, v = a.split("=", 1)
    if k.startswith("nt_"):
        OPT[k] = (" " + v.replace("+", " ")) if v else ""
    else:
        OPT[k] = int(v)

out = []
def e(s=""):
    out.append(s)

NS = 3
BB = 0
W2A = 256
W2C = 320
B2B = 384
TB = 512
LIST = TB + 2048
RING = LIST + 16 * 256
RPW = NS * 2048 + 1024
MOFF = NS * 2048
PFB = RING + 16 * RPW
QB = PFB + 16384
CSTR = 272
CB = QB + 8192
LDS_BYTES = CB + 16 * CSTR
CFLAG = 448
assert LDS_BYTES <= 163840 and RING % 16 == 0

M, C, D3, W2, B2, Z, HB, HT, D2 = 0, 32, 48, 64, 72, 76, 92, 100, 108
SP = D2
ONE = 112
vA0, vA1 = 114, 115
vT = [116, 117, 118, 119]
vP0, vP1 = 120, 122
vDC0, vDC1 = 121, 123
vL, vML = 124, 125
vLane, vQ16 = 126, 127
vST = vML
MK = Z

def vr(b, n=1):
    return f"v{b}" if n == 1 else f"v[{b}:{b+n-1}]"

sT, sH, sMk, sW1, sB1, sW2, sB2, sO = 4, 6, 8, 10, 12, 14, 16, 18
sWave, sB = 20, 21
rH = 24
sRing, sList, sN, sNT = 56, 57, 58, 59
sC0, sC1, sC2, sC3 = 60, 62, 64, 66
sK1, sK2, sK3 = 69, 70, 71
sScale, sTmp, sTmp2 = 72, 74, 75
sBad, sDmy = 76, 78
STAMP0 = 84
sE0, sE1, sE2, sE3 = 88, 90, 92, 94

def stamp(i):
    if OPT["stamp"]:
        e(f"  s_memrealtime s[{STAMP0}:{STAMP0+1}]")
        e("  s_waitcnt lgkmcnt(0)")
        e(f"  v_writelane_b32 v{vST}, s{STAMP0}, {i}")
        if i in (6, 8):
            e(f"  s_memtime s[{STAMP0}:{STAMP0+1}]")
            e("  s_waitcnt lgkmcnt(0)")
            e(f"  v_writelane_b32 v{vST}, s{STAMP0}, {12 if i == 6 else 13}")

def prio(p):
    if OPT["prio"]:
        e(f"  s_setprio {p}")

def dma(pair, slot, hf, filler="  s_nop 0"):
    e(f"  s_add_u32 m0, s{sRing}, {slot*2048+hf*1024}")
    e(filler)
    e(f"  buffer_load_dwordx4 {vr(pair,2)}, s[{rH}:{rH+3}], 0 idxen offen{OPT['nt_hist']} lds")

hdr = open("cdna_kernels/" + NAME + ".s.ref").read().split("; Override launch")[0]
e(hdr.rstrip())
e(f"; @launch grid=(256,1,1) block=(1024,1,1) lds={LDS_BYTES}")
e('.amdgcn_target "amdgcn-amd-amdhsa--gfx950"')
e(".text")
e(f".globl {NAME}_kernel")
e(".p2align 8")
e(f".type {NAME}_kernel,@function")
e(f"{NAME}_kernel:")
e("  s_cmp_ge_u32 s2, 256")
e("  s_cbranch_scc1 L_end")
stamp(0)
e("  s_load_dwordx16 s[4:19], s[0:1], 0")
if OPT["stamp"]:
    e("  s_load_dwordx2 s[86:87], s[0:1], 72")
prio(3)
X0 = W2
q_ = Z + 1
vMo, vWo, vWo2 = Z + 6, Z + 7, Z + 8
e(f"  v_lshrrev_b32 v{Z}, 6, v0")
e(f"  v_and_b32 v{vLane}, 63, v0")
e(f"  s_lshl_b32 s{sB}, s2, 4")
e(f"  v_readfirstlane_b32 s{sWave}, v{Z}")
e(f"  v_mov_b32 v{X0}, 0")
e(f"  v_mov_b32 v{X0+1}, 0")
e(f"  s_add_u32 s{sB}, s{sB}, s{sWave}")
e(f"  s_mul_i32 s{sTmp}, s{sB}, 400")
e(f"  s_mul_i32 s{sRing}, s{sWave}, {RPW}")
e(f"  v_lshl_add_u32 v{vMo}, v{vLane}, 3, s{sTmp}")
e(f"  v_and_b32 v{Z+2}, 32, v{vLane}")
e(f"  v_and_b32 v{Z+3}, 31, v{vLane}")
e(f"  s_lshl_b32 s{sTmp2}, s{sWave}, 9")
e(f"  v_lshlrev_b32 v{Z+2}, 9, v{Z+2}")
e(f"  s_add_u32 s{sK3}, s{sTmp2}, {24576-1024}")
e(f"  v_lshl_add_u32 v{vWo}, v{Z+3}, 4, s{sTmp2}")
e(f"  v_lshl_add_u32 v{vWo2}, v{Z+3}, 4, s{sK3}")
e(f"  s_bfm_b64 s[{sC0}:{sC0+1}], 50, 0")
e(f"  v_add_u32 v{vWo}, v{vWo}, v{Z+2}")
e(f"  v_sub_u32 v{vWo2}, v{vWo2}, v{Z+2}")
e(f"  s_add_u32 s{sRing}, s{sRing}, {RING}")
e(f"  s_add_u32 m0, s{sRing}, 4096")
e(f"  s_mov_b64 exec, s[{sC0}:{sC0+1}]")
e("  s_waitcnt lgkmcnt(0)")
stamp(1)
e(f"  global_load_dwordx2 {vr(X0,2)}, v{vMo}, s[{sMk}:{sMk+1}]{OPT['nt_mask']}")
e("  s_mov_b64 exec, -1")
if OPT["mbar"]:
    e("  s_barrier")
prio(2)
e(f"  global_load_lds_dwordx4 v{vWo}, s[{sW1}:{sW1+1}]")
e(f"  global_load_lds_dwordx4 v{vWo2}, s[{sW1}:{sW1+1}] offset:1024")
e(f"  v_lshrrev_b32 v{q_}, 4, v{vLane}")
if OPT["pf"]:
    e(f"  s_cmp_lt_u32 s2, {OPT['pf']}")
    e("  s_cbranch_scc0 L_nopf")
    e(f"  s_cmp_eq_u32 s{sWave}, 3")
    e("  s_cbranch_scc0 L_nopf")
    e("  s_getpc_b64 s[78:79]")
    e("L_pc:")
    e(f"  s_sub_u32 s78, s78, L_pc-{NAME}_kernel")
    e("  s_subb_u32 s79, s79, 0")
    e(f"  v_lshlrev_b32 v{M+28}, 7, v{vLane}")
    e(f"  s_bfm_b64 exec, {OPT['pfn']}, 0")
    e(f"  global_load_dword v{M+29}, v{M+28}, s[78:79]")
    e("  s_mov_b64 exec, -1")
    e("L_nopf:")
SB1, SB2 = M + 24, M + 25
SP0 = OPT["sp0"]
e(f"  s_sub_u32 s{sE2}, s{sWave}, {SP0}")
e(f"  s_cmp_gt_u32 s{sE2}, 2")
e("  s_cbranch_scc1 L_nosmall")
e(f"  s_cmp_eq_u32 s{sE2}, 1")
e("  s_cbranch_scc1 L_w14")
e(f"  s_cmp_eq_u32 s{sE2}, 2")
e("  s_cbranch_scc1 L_w15")
e(f"  v_mov_b32 v{SB1}, 0")
e(f"  v_lshlrev_b32 v{M+26}, 1, v{vLane}")
e(f"  global_load_short_d16_hi v{SB1}, v{M+26}, s[{sB1}:{sB1+1}]")
e("  s_branch L_nosmall")
e("L_w14:")
e(f"  s_lshl_b32 s{sTmp2}, s2, 11")
e(f"  v_lshl_add_u32 v{M+26}, v{vLane}, 4, s{sTmp2}")
e(f"  s_mov_b32 m0, {TB}")
e("  s_nop 0")
e(f"  global_load_lds_dwordx4 v{M+26}, s[{sT}:{sT+1}]")
e(f"  global_load_lds_dwordx4 v{M+26}, s[{sT}:{sT+1}] offset:1024")
e("  s_branch L_nosmall")
e("L_w15:")
e(f"  v_bfe_u32 v{M+26}, v{vLane}, 4, 1")
e(f"  v_lshlrev_b32 v{M+26}, 6, v{M+26}")
e(f"  v_bfe_u32 v{M+27}, v{vLane}, 1, 1")
e(f"  v_lshl_add_u32 v{M+26}, v{M+27}, 5, v{M+26}")
e(f"  v_bfe_u32 v{M+27}, v{vLane}, 2, 2")
e(f"  v_lshl_add_u32 v{M+26}, v{M+27}, 3, v{M+26}")
e(f"  v_and_b32 v{M+27}, 1, v{vLane}")
e(f"  v_lshl_add_u32 v{M+26}, v{M+27}, 2, v{M+26}")
e(f"  v_mov_b32 v{SB2}, 0")
e(f"  v_mov_b32 v{M+27}, 0")
e(f"  s_mov_b32 m0, {W2A}")
e(f"  global_load_short_d16_hi v{SB2}, v{M+27}, s[{sB2}:{sB2+1}]")
e(f"  s_bfm_b64 exec, 32, 0")
e(f"  global_load_lds_dword v{M+26}, s[{sW2}:{sW2+1}]")
e("  s_mov_b64 exec, -1")
e("L_nosmall:")
e(f"  s_lshl_b32 s{sList}, s{sWave}, 8")
e(f"  s_add_u32 s{sList}, s{sList}, {LIST}")
e(f"  v_mov_b32 v{M}, -1")
e(f"  v_lshl_add_u32 v{Z+3}, v{vLane}, 2, s{sList}")
e(f"  ds_write_b32 v{Z+3}, v{M}")
t0, t1, t2, t3, t4 = Z, q_, Z + 2, Z + 3, Z + 4
PFA, QWA, RWA = D3, D3 + 2, D3 + 3
e(f"  s_mul_i32 s{sTmp}, s{sB}, 25600")
e(f"  v_and_b32 v{t2}, 7, v{vLane}")
e(f"  s_add_u32 s{rH}, s{sH}, s{sTmp}")
e(f"  v_xor_b32 v{t2}, v{t2}, v{t1}")
e(f"  s_addc_u32 s{rH+1}, s{sH+1}, 0")
e(f"  v_lshlrev_b32 v{vDC0}, 4, v{t2}")
e(f"  s_or_b32 s{rH+1}, s{rH+1}, {128 << 16}")
e(f"  v_xor_b32 v{vDC1}, 64, v{vDC0}")
e(f"  s_mov_b32 s{rH+2}, 200")
e(f"  v_lshrrev_b32 v{t2}, 3, v{vLane}")
e(f"  s_mov_b32 s{rH+3}, 0x20000")
e(f"  v_add_u32 v{vL}, s{sList}, v{t2}")
vR = [Z + 11, Z + 12, Z + 13, Z + 14]
e(f"  v_lshlrev_b32 v{vR[0]}, 2, v{vLane}")
e(f"  s_mov_b32 s{sK1}, 0xffff")
for i in range(1, 4):
    e(f"  v_add_u32 v{vR[i]}, {i}, v{vR[0]}")
pos = [Z + 2, Z + 3, Z + 4, Z + 5]
prio(1)
vPA = D2
vTA, vQA = Z + 9, Z + 15
vM0, vM1 = D2 + 2, D2 + 3
S = []
S.append(f"  s_mov_b32 s{sK2}, 0xffff0000")
S.append(f"  s_mov_b32 s{sScale}, 0xbfb8aa3b")
S.append(f"  s_mov_b32 s{sScale+1}, 0xbfb8aa3b")
S.append(f"  s_lshr_b32 s{sE0}, s{sWave}, 3")
S.append(f"  s_and_b32 s{sE0+1}, s{sWave}, 1")
S.append(f"  s_bfe_u32 s{sE1}, s{sWave}, 0x20001")
S.append(f"  s_lshl_b32 s{sTmp}, s{sE0}, 11")
S.append(f"  s_lshl_b32 s{sK3}, s{sE0+1}, 10")
S.append(f"  s_add_u32 s{sTmp}, s{sTmp}, s{sK3}")
S.append(f"  s_lshl_b32 s{sK3}, s{sE1}, 8")
S.append(f"  s_add_u32 s{sTmp}, s{sTmp}, s{sK3}")
S.append(f"  s_add_u32 s{sTmp}, s{sTmp}, {PFB}")
S.append(f"  s_lshl_b32 s{sE0}, s{sE0}, 10")
S.append(f"  s_add_u32 s{sE0}, s{sE0}, s{sK3}")
S.append(f"  s_lshl_b32 s{sE0+1}, s{sE0+1}, 3")
S.append(f"  s_add_u32 s{sE0}, s{sE0}, s{sE0+1}")
S.append(f"  s_add_u32 s{sE0}, s{sE0}, {QB}")
S.append(f"  s_add_u32 s{sK3}, s{sRing}, 4096")
S.append(f"  s_lshl_b32 s{sE1}, s{sWave}, 7")
S.append(f"  s_add_u32 s{sE1}, s{sE1}, {TB}")
V = []
V.append(f"  v_and_b32 v{t0}, 15, v{vLane}")
V.append(f"  v_lshrrev_b32 v{t2}, 1, v{t0}")
V.append(f"  v_xor_b32 v{t2}, v{t2}, v{t1}")
V.append(f"  v_lshlrev_b32 v{t2}, 4, v{t2}")
V.append(f"  v_lshl_add_u32 v{t2}, v{t0}, 7, v{t2}")
V.append(f"  v_add_u32 v{vA0}, s{sRing}, v{t2}")
V.append(f"  v_xor_b32 v{vA1}, 64, v{vA0}")
V.append(f"  v_lshrrev_b32 v{t2}, 2, v{t0}")
V.append(f"  v_and_b32 v{RWA}, 3, v{vLane}")
V.append(f"  v_cmp_eq_u32_e64 s[{sC1}:{sC1+1}], v{t2}, v{t1}")
V.append(f"  v_lshlrev_b32 v{RWA}, 3, v{RWA}")
V.append(f"  v_lshl_add_u32 v{RWA}, v{t2}, 7, v{RWA}")
V.append(f"  v_lshl_add_u32 v{RWA}, v{t1}, 5, v{RWA}")
V.append(f"  v_lshl_add_u32 v{t2}, v{t1}, 2, v{t2}")
V.append(f"  v_lshrrev_b32 v{t3}, 1, v{t2}")
V.append(f"  v_bfe_u32 v{t4}, v{vLane}, 1, 1")
V.append(f"  v_xor_b32 v{t3}, v{t3}, v{t4}")
V.append(f"  v_lshlrev_b32 v{t3}, 4, v{t3}")
V.append(f"  v_lshl_add_u32 v{t3}, v{t2}, 7, v{t3}")
V.append(f"  v_and_b32 v{t2}, 1, v{vLane}")
V.append(f"  v_lshl_add_u32 v{t3}, v{t2}, 3, v{t3}")
V.append(f"  v_lshlrev_b32 v{vQ16}, 4, v{t1}")
V.append(f"  v_add_u32 v{vT[0]}, s{sRing}, v{t3}")
V.append(f"  v_lshlrev_b32 v{t0}, 4, v{t0}")
for d in range(1, 4):
    V.append(f"  v_xor_b32 v{vT[d]}, {32*d}, v{vT[0]}")
for i in range(max(len(S), len(V))):
    if i < len(V): e(V[i])
    if i < len(S): e(S[i])
e(f"  v_lshl_add_u32 v{PFA}, v{t1}, 12, v{t0}")
e(f"  v_lshl_add_u32 v{QWA}, v{t1}, 11, v{t0}")
e(f"  v_add_u32 v{RWA}, s{sK3}, v{RWA}")
e(f"  v_add_u32 v{PFA}, s{sTmp}, v{PFA}")
e(f"  v_add_u32 v{QWA}, s{sE0}, v{QWA}")
e(f"  v_add_u32 v{vTA}, s{sE1}, v{vQ16}")
e(f"  v_lshlrev_b32 v{vPA}, 4, v{vLane}")
e(f"  v_add_u32 v{vQA}, {QB}, v{vPA}")
e(f"  v_add_u32 v{vPA}, {PFB}, v{vPA}")
e(f"  v_lshlrev_b32 v{t2}, 4, v{t2}")
e(f"  v_mov_b32 v{t3}, 0xffff")
e(f"  v_lshlrev_b32 v{t3}, v{t2}, v{t3}")
e(f"  v_cmp_gt_u32 vcc, 32, v{vLane}")
e(f"  v_cndmask_b32_e64 v{t3}, 0, v{t3}, s[{sC1}:{sC1+1}]")
e(f"  v_cmp_eq_u32_e64 s[{sC1}:{sC1+1}], 0, v{t4}")
e(f"  v_mov_b32 v{t0}, 0x3f80")
e(f"  v_mov_b32 v{pos[0]}, s{sList}")
e(f"  v_cndmask_b32 v{ONE}, 0, v{t0}, vcc")
e(f"  v_mov_b32 v{ONE+1}, 0")
e(f"  v_cndmask_b32_e64 v{vM0}, 0, v{t3}, s[{sC1}:{sC1+1}]")
e(f"  v_cndmask_b32_e64 v{vM1}, v{t3}, 0, s[{sC1}:{sC1+1}]")
AD = HB + 4
e(f"  s_mov_b32 s{sTmp}, 0x3f803f80")
e(f"  v_and_b32 v{AD}, s{sTmp}, v{vM0}")
e(f"  v_and_b32 v{AD+1}, s{sTmp}, v{vM1}")
e("  s_waitcnt vmcnt(2)")
stamp(2)
prio(3)
e(f"  v_cmp_ne_u16_e64 s[{sC0}:{sC0+1}], 0, v{X0}")
e(f"  v_cmp_lt_u32_e64 s[{sC1}:{sC1+1}], s{sK1}, v{X0}")
e(f"  v_cmp_ne_u16_e64 s[{sC2}:{sC2+1}], 0, v{X0+1}")
e(f"  v_cmp_lt_u32_e64 s[{sC3}:{sC3+1}], s{sK1}, v{X0+1}")
e(f"  v_mbcnt_lo_u32_b32 v{pos[0]}, s{sC0}, v{pos[0]}")
e(f"  v_mbcnt_hi_u32_b32 v{pos[0]}, s{sC0+1}, v{pos[0]}")
for c in (sC1, sC2, sC3):
    e(f"  v_mbcnt_lo_u32_b32 v{pos[0]}, s{c}, v{pos[0]}")
    e(f"  v_mbcnt_hi_u32_b32 v{pos[0]}, s{c+1}, v{pos[0]}")
e(f"  s_mov_b64 exec, s[{sC0}:{sC0+1}]")
e(f"  ds_write_b8 v{pos[0]}, v{vR[0]}")
e("  s_mov_b64 exec, -1")
e(f"  v_addc_co_u32_e64 v{pos[1]}, s[{sDmy}:{sDmy+1}], 0, v{pos[0]}, s[{sC0}:{sC0+1}]")
e(f"  v_addc_co_u32_e64 v{pos[2]}, s[{sDmy}:{sDmy+1}], 0, v{pos[1]}, s[{sC1}:{sC1+1}]")
e(f"  v_addc_co_u32_e64 v{pos[3]}, s[{sDmy}:{sDmy+1}], 0, v{pos[2]}, s[{sC2}:{sC2+1}]")
for i, c in ((1, sC1), (2, sC2), (3, sC3)):
    e(f"  s_mov_b64 exec, s[{c}:{c+1}]")
    e(f"  ds_write_b8 v{pos[i]}, v{vR[i]}")
e("  s_mov_b64 exec, -1")
e(f"  ds_read_u8 v{vP0}, v{vL}")
e(f"  ds_read_u8 v{vP1}, v{vL} offset:8")
e(f"  s_bcnt1_i32_b64 s{sN}, s[{sC0}:{sC0+1}]")
e(f"  s_bcnt1_i32_b64 s{sK3}, s[{sC1}:{sC1+1}]")
e(f"  s_add_u32 s{sN}, s{sN}, s{sK3}")
e(f"  s_bcnt1_i32_b64 s{sK3}, s[{sC2}:{sC2+1}]")
e(f"  s_add_u32 s{sN}, s{sN}, s{sK3}")
e(f"  s_bcnt1_i32_b64 s{sK3}, s[{sC3}:{sC3+1}]")
e(f"  s_add_u32 s{sN}, s{sN}, s{sK3}")
e("  s_waitcnt lgkmcnt(1)")
dma(vP0, 0, 0)
e("  s_waitcnt lgkmcnt(0)")
dma(vP1, 0, 1)
stamp(3)
prio(2)
RW = M + 16
e("  s_waitcnt vmcnt(2)")
stamp(4)
for m in range(4):
    e(f"  ds_read_b64_tr_b16 {vr(RW+2*m,2)}, v{RWA} offset:{512*m}")
e(f"  ds_read_u8 v{vP0}, v{vL} offset:16")
e(f"  ds_read_u8 v{vP1}, v{vL} offset:24")
e(f"  s_add_u32 s{sNT}, s{sN}, 15")
e(f"  s_lshr_b32 s{sNT}, s{sNT}, 4")
e(f"  s_movk_i32 s{sTmp}, 0x3f80")
e(f"  v_cmp_eq_u16_e64 s[{sE0}:{sE0+1}], s{sTmp}, v{X0}")
e(f"  v_cmp_eq_u16_e64 s[{sE2}:{sE2+1}], s{sTmp}, v{X0+1}")
e(f"  v_cmp_eq_u16_sdwa s[{sE1}:{sE1+1}], v{X0}, s{sTmp} src0_sel:WORD_1 src1_sel:WORD_0")
e(f"  v_cmp_eq_u16_sdwa s[{sE3}:{sE3+1}], v{X0+1}, s{sTmp} src0_sel:WORD_1 src1_sel:WORD_0")
e(f"  s_xor_b64 s[{sBad}:{sBad+1}], s[{sE0}:{sE0+1}], s[{sC0}:{sC0+1}]")
e(f"  s_xor_b64 s[{sE2}:{sE2+1}], s[{sE2}:{sE2+1}], s[{sC2}:{sC2+1}]")
e(f"  s_or_b64 s[{sBad}:{sBad+1}], s[{sBad}:{sBad+1}], s[{sE2}:{sE2+1}]")
for a_, b_ in ((sE1, sC1), (sE3, sC3)):
    e(f"  s_xor_b64 s[{a_}:{a_+1}], s[{a_}:{a_+1}], s[{b_}:{b_+1}]")
    e(f"  s_or_b64 s[{sBad}:{sBad+1}], s[{sBad}:{sBad+1}], s[{a_}:{a_+1}]")
e(f"  s_cmp_lg_u64 s[{sBad}:{sBad+1}], 0")
e("  s_cbranch_scc0 L_binmask")
e(f"  s_add_u32 s{sTmp}, s{sRing}, {MOFF}")
for i in range(4):
    e(f"  v_mov_b32 v{M+i}, 0")
e(f"  v_lshl_add_u32 v{Z+6}, v{vLane}, 4, s{sTmp}")
e(f"  ds_write_b128 v{Z+6}, {vr(M,4)}")
e(f"  v_add_u32 v{vML}, s{sTmp}, v{vQ16}")
e(f"  v_lshlrev_b32 v{M+4}, 16, v{X0}")
e(f"  v_and_b32 v{M+5}, s{sK2}, v{X0}")
e(f"  v_lshlrev_b32 v{M+6}, 16, v{X0+1}")
e(f"  v_and_b32 v{M+7}, s{sK2}, v{X0+1}")
for i in range(4):
    e(f"  v_subrev_u32 v{pos[i]}, s{sList}, v{pos[i]}")
    e(f"  v_lshl_add_u32 v{pos[i]}, v{pos[i]}, 2, s{sTmp}")
for i, c in enumerate((sC0, sC1, sC2, sC3)):
    e(f"  s_mov_b64 exec, s[{c}:{c+1}]")
    e(f"  ds_write_b32 v{pos[i]}, v{M+4+i}")
e("  s_mov_b64 exec, -1")
e("L_binmask:")
W1R = M
Wa, Wc, Wd, Wb_ = W1R, W1R + 4, W1R + 8, W1R + 12
e("  s_waitcnt lgkmcnt(0)")
for m in range(4):
    for r in range(2):
        e(f"  v_lshlrev_b32 v{W1R+4*m+2*r}, 16, v{RW+2*m+r}")
        e(f"  v_and_b32 v{W1R+4*m+2*r+1}, s{sK2}, v{RW+2*m+r}")
for p in range(2):
    e(f"  v_pk_add_f32 {vr(Wa+2*p,2)}, {vr(Wa+2*p,2)}, {vr(Wc+2*p,2)}")
for p in range(2):
    e(f"  v_pk_add_f32 {vr(Wb_+2*p,2)}, {vr(Wb_+2*p,2)}, {vr(Wc+2*p,2)} neg_lo:[0,1] neg_hi:[0,1]")
for base in (Wa, Wd, Wb_):
    for p in range(2):
        e(f"  v_pk_mul_f32 {vr(base+2*p,2)}, {vr(base+2*p,2)}, s[{sScale}:{sScale+1}]")
e(f"  v_cvt_pk_bf16_f32 v{RW+2}, v{Wd}, v{Wd+1}")
e(f"  v_cvt_pk_bf16_f32 v{RW+3}, v{Wd+2}, v{Wd+3}")
e(f"  v_cvt_pk_bf16_f32 v{RW}, v{Wa}, v{Wa+1}")
e(f"  v_cvt_pk_bf16_f32 v{RW+1}, v{Wa+2}, v{Wa+3}")
e(f"  v_cvt_pk_bf16_f32 v{RW+6}, v{Wb_}, v{Wb_+1}")
e(f"  v_cvt_pk_bf16_f32 v{RW+7}, v{Wb_+2}, v{Wb_+3}")
e(f"  ds_write_b128 v{PFA}, {vr(RW,4)}")
e(f"  ds_write_b64 v{QWA}, {vr(RW+6,2)}")
e(f"  s_cmp_eq_u32 s{sWave}, {SP0}")
e("  s_cbranch_scc0 L_nb1")
e(f"  v_mul_f32 v{SB1}, s{sScale}, v{SB1}")
e(f"  v_lshlrev_b32 v{M+26}, 2, v{vLane}")
e(f"  ds_write_b32 v{M+26}, v{SB1} offset:{BB}")
e("L_nb1:")
e(f"  s_cmp_eq_u32 s{sWave}, {SP0+2}")
e("  s_cbranch_scc0 L_nosmall2")
e(f"  v_and_b32 v{M+26}, 15, v{vLane}")
e(f"  v_lshlrev_b32 v{M+26}, 2, v{M+26}")
e(f"  ds_write_b32 v{M+26}, v{SB2} offset:{B2B}")
if OPT["sharec"]:
    e(f"  v_mov_b32 v{M+26}, 0")
    e(f"  ds_write_b32 v{M+26}, v{M+26} offset:{CFLAG}")
e("L_nosmall2:")
e("  s_waitcnt lgkmcnt(0)")
e("  s_barrier")
stamp(5)
prio(OPT["mprio"])
e(f"  ds_read_b128 {vr(HT,4)}, v{vTA}")
e(f"  ds_read_b128 {vr(HT+4,4)}, v{vTA} offset:64")
if not OPT["sharec"]:
    for tau in range(4):
        e(f"  ds_read_b128 {vr(C+4*tau,4)}, v{vQ16} offset:{BB+64*tau}")
    for g in range(8):
        e(f"  ds_read_b128 {vr(M+4*g,4)}, v{vQA} offset:{1024*g}")
else:
    e(f"  s_sub_u32 s{sE2}, s{sWave}, {OPT['cw0']}")
    e(f"  s_cmp_lt_u32 s{sE2}, 4")
    e("  s_cbranch_scc0 L_noc")
    e(f"  v_and_b32 v{M}, 15, v{vLane}")
    e(f"  s_lshl_b32 s{sTmp}, s{sE2}, 11")
    e(f"  v_lshl_add_u32 v{M+1}, v{M}, 7, v{vQ16}")
    e(f"  v_add_u32 v{M+2}, s{sTmp}, v{vQA}")
    e(f"  s_lshl_b32 s{sTmp}, s{sE2}, 6")
    e(f"  v_add_u32 v{M+3}, s{sTmp}, v{vQ16}")
    e(f"  ds_read_b128 {vr(M+4,4)}, v{M+1} offset:{TB}")
    e(f"  ds_read_b128 {vr(M+8,4)}, v{M+1} offset:{TB+64}")
    e(f"  ds_read_b128 {vr(M+12,4)}, v{M+2}")
    e(f"  ds_read_b128 {vr(M+16,4)}, v{M+2} offset:1024")
    e(f"  ds_read_b128 {vr(M+20,4)}, v{M+3} offset:{BB}")
    e(f"  v_mul_u32_u24 v{M}, {CSTR}, v{M}")
    e(f"  v_add_u32 v{M}, v{M}, v{M+3}")
    e(f"  v_add_u32 v{M}, {CB}, v{M}")
    e(f"  v_mov_b32 v{M+1}, 1")
    e(f"  v_mov_b32 v{M+2}, 0")
    e("  s_waitcnt lgkmcnt(0)")
    e(f"  v_mfma_f32_16x16x32_bf16 {vr(M+20,4)}, {vr(M+12,4)}, {vr(M+4,4)}, {vr(M+20,4)}")
    e(f"  v_mfma_f32_16x16x32_bf16 {vr(M+20,4)}, {vr(M+16,4)}, {vr(M+8,4)}, {vr(M+20,4)}")
    e("  s_nop 7")
    e(f"  ds_write_b128 v{M}, {vr(M+20,4)}")
    e("  s_waitcnt lgkmcnt(0)")
    e("  s_mov_b64 exec, 1")
    e(f"  ds_add_u32 v{M+2}, v{M+1} offset:{CFLAG}")
    e("  s_mov_b64 exec, -1")
    e("L_noc:")
nlab = [0]
def cond_block(old_here, young_here, body):
    if not (old_here or young_here):
        return
    nlab[0] += 1
    lab_ = nlab[0]
    if old_here != young_here:
        e(f"  s_cmp_lt_u32 s{sWave}, {OPT['split']}")
        e(f"  s_cbranch_scc{0 if old_here else 1} L_rd{lab_}")
    body()
    if old_here != young_here:
        e(f"L_rd{lab_}:")
def idx2():
    e(f"  ds_read_u8 v{vP0}, v{vL} offset:32")
    e(f"  ds_read_u8 v{vP1}, v{vL} offset:40")
def ring_dma(posn):
    def t1():
        dma(vP0, 1, 0)
        dma(vP1, 1, 1)
        if posn != -2:
            idx2()
    def t2():
        e("  s_waitcnt lgkmcnt(0)")
        dma(vP0, 2, 0)
        dma(vP1, 2, 1)
    if posn == -1:
        cond_block(OPT["p1"] == -2, OPT["q1"] == -2, idx2)
    cond_block(OPT["p1"] == posn, OPT["q1"] == posn, t1)
    cond_block(OPT["p2"] == posn, OPT["q2"] == posn, t2)
B0 = [D3 + 4*i for i in range(4)]
B1 = [W2, W2 + 4, W2 + 8, HB]
BUFS = [B0, B1]
def mread(g):
    s, h = g >> 1, g & 1
    for tau in range(4):
        e(f"  ds_read_b128 {vr(BUFS[g&1][tau],4)}, v{vPA} offset:{tau*4096+s*2048+h*1024}")
ring_dma(-2)
if not OPT["sharec"]:
    for g in range(8):
        e(f"  s_waitcnt lgkmcnt({7-g})")
        tau, s = g >> 1, g & 1
        e(f"  v_mfma_f32_16x16x32_bf16 {vr(C+4*tau,4)}, {vr(M+4*g,4)}, {vr(HT+4*s,4)}, {vr(C+4*tau,4)}")
ring_dma(-1)
mread(0)
DT = [Z, Z + 4, Z + 8, Z + 12]
if OPT["sharec"]:
    e("  s_waitcnt lgkmcnt(4)")
e(f"  v_and_b32 v{AD+2}, v{HT}, v{vM0}")
e(f"  v_and_b32 v{AD+3}, v{HT+1}, v{vM1}")
for g in range(4):
    s, h = g >> 1, g & 1
    if g < 3:
        mread(g + 1)
    e(f"  s_waitcnt lgkmcnt({4 if g < 3 else 0})")
    for tau in range(4):
        e(f"  v_mfma_f32_16x16x32_bf16 {vr(DT[tau],4)}, {vr(AD,4)}, {vr(BUFS[g&1][tau],4)}, 0")
    if g < 3:
        s2, h2 = (g + 1) >> 1, (g + 1) & 1
        e(f"  v_and_b32 v{AD+2}, v{HT+4*s2+2*h2}, v{vM0}")
        e(f"  v_and_b32 v{AD+3}, v{HT+4*s2+2*h2+1}, v{vM1}")
        e("  s_nop 2")
    else:
        e("  s_nop 4")
    for tau in range(4):
        for p in range(2):
            e(f"  v_cvt_pk_bf16_f32 v{M+8*tau+4*s+2*h+p}, v{DT[tau]+2*p}, v{DT[tau]+2*p+1}")
    ring_dma(g)
if OPT["sharec"]:
    e(f"  v_mov_b32 v{HB}, 0")
    e(f"  s_mul_i32 s{sTmp}, s{sWave}, {CSTR}")
    e(f"  s_add_u32 s{sTmp}, s{sTmp}, {CB}")
    e(f"  v_add_u32 v{HB+1}, s{sTmp}, v{vQ16}")
    e("L_cpoll:")
    e(f"  ds_read_b32 v{HB+2}, v{HB} offset:{CFLAG}")
    e("  s_waitcnt lgkmcnt(0)")
    e(f"  v_readfirstlane_b32 s{sTmp}, v{HB+2}")
    e(f"  s_cmp_lt_u32 s{sTmp}, 4")
    e("  s_cbranch_scc1 L_cpoll")
    for tau in range(4):
        e(f"  ds_read_b128 {vr(C+4*tau,4)}, v{HB+1} offset:{64*tau}")
e(f"  ds_read_b128 {vr(W2,4)}, v{vQ16} offset:{W2A}")
e(f"  ds_read_b128 {vr(W2+4,4)}, v{vQ16} offset:{W2C}")
e(f"  ds_read_b128 {vr(B2,4)}, v{vQ16} offset:{B2B}")
ring_dma(4)
e(f"  s_mov_b32 s{sC0}, 0xffff0000")
e(f"  s_mov_b32 s{sC0+1}, 0")
e(f"  s_mov_b32 s{sC1}, 0")
e(f"  s_mov_b32 s{sC1+1}, 0xffff")
e(f"  s_mov_b32 s{sC2}, 0")
e(f"  s_mov_b32 s{sC2+1}, 0xffff0000")
e(f"  s_lshl_b32 s{sE3}, s{sB}, 7")
e(f"  v_mov_b32 v{D2+2}, 0")
e(f"  v_mov_b32 v{D2+3}, 0")
e(f"  v_add_u32 v{vL}, {16*NS}, v{vL}")
e("  s_nop 0")
e(f"  v_mfma_f32_32x32x8_bf16 {vr(D3,16)}, {vr(D2+2,2)}, {vr(D2+2,2)}, 0")
e("  s_waitcnt lgkmcnt(0)")
stamp(6)
if OPT["stamp"]:
    e(f"  s_waitcnt vmcnt(4)")
    stamp(7)
if OPT["acc"]:
    e("  s_mov_b32 s44, 0")
    e("  s_mov_b32 s45, 0")
prio(2)
e(f"  s_cmp_eq_u32 s{sNT}, 0")
e("  s_cbranch_scc1 L_out")
e(f"  s_cmp_lg_u64 s[{sBad}:{sBad+1}], 0")
e("  s_cbranch_scc1 L_gen0")

lab = [0]
tails = []
def tile(slot, general, lab_exit):
    so = slot * 2048
    lab[0] += 1
    k = lab[0]
    if OPT["acc"]:
        e("  s_memtime s[40:41]")
        e("  s_waitcnt lgkmcnt(0)")
    e(f"  s_cmp_ge_u32 s{sNT}, {NS}")
    e(f"  s_cbranch_scc0 L_tw{k}")
    e(f"  s_waitcnt vmcnt({2*(NS-1)})")
    e(f"L_aw{k}:")
    if OPT["acc"]:
        e("  s_memtime s[42:43]")
        e("  s_waitcnt lgkmcnt(0)")
        e("  s_sub_u32 s40, s42, s40")
        e("  s_add_u32 s44, s44, s40")
    tails.append(k)
    e(f"  ds_read_b128 {vr(HB,4)}, v{vA0} offset:{so}")
    e(f"  ds_read_b128 {vr(HB+4,4)}, v{vA1} offset:{so}")
    for d in range(4):
        e(f"  ds_read_b64_tr_b16 {vr(HT+2*d,2)}, v{vT[d]} offset:{so}")
    e(f"  ds_read_u8 v{vP0}, v{vL} offset:{16*slot}")
    e(f"  ds_read_u8 v{vP1}, v{vL} offset:{16*slot+8}")
    nrd = 8
    if OPT["prio"] and OPT["lprio"]:
        e(f"  s_cmp_gt_u32 s{sNT}, {OPT['t2']}")
        e(f"  s_cbranch_scc1 L_p{k}")
        e(f"  s_setprio 1")
        e(f"  s_cmp_gt_u32 s{sNT}, {OPT['t1']}")
        e(f"  s_cbranch_scc1 L_p{k}")
        e(f"  s_setprio 0")
        e(f"L_p{k}:")
    e(f"  s_waitcnt lgkmcnt({nrd-1})")
    for tau in range(4):
        e(f"  v_mfma_f32_16x16x32_bf16 {vr(Z+4*tau,4)}, {vr(M+8*tau,4)}, {vr(HB,4)}, {vr(C+4*tau,4)}")
    e(f"  s_waitcnt lgkmcnt({nrd-2})")
    for tau in range(4):
        e(f"  v_mfma_f32_16x16x32_bf16 {vr(Z+4*tau,4)}, {vr(M+8*tau+4,4)}, {vr(HB+4,4)}, {vr(Z+4*tau,4)}")
    e("  s_nop 4")
    for i in range(16):
        e(f"  v_exp_f32 v{Z+i}, v{Z+i}")
    e("  s_nop 1")
    e(f"  v_mfma_f32_32x32x8_bf16 {vr(Z,16)}, {vr(ONE,2)}, {vr(ONE,2)}, {vr(Z,16)}")
    e("  s_nop 11")
    for i in range(16):
        e(f"  v_rcp_f32 v{Z+i}, v{Z+i}")
    for i in range(8):
        e(f"  v_cvt_pk_bf16_f32 v{HB+i}, v{Z+2*i}, v{Z+2*i+1}")
    if general:
        e(f"  ds_read_b128 {vr(MK,4)}, v{vML} offset:{64*slot}")
    else:
        e("  s_nop 0")
    e(f"  v_mfma_f32_16x16x32_bf16 {vr(D2,4)}, {vr(HB,4)}, {vr(W2,4)}, {vr(B2,4)}")
    e(f"  v_mfma_f32_16x16x32_bf16 {vr(D2,4)}, {vr(HB+4,4)}, {vr(W2+4,4)}, {vr(D2,4)}")
    if slot == NS - 1 and general:
        e(f"  v_add_u32 v{vML}, {64*NS}, v{vML}")
    e("  s_nop 7")
    e("  s_waitcnt lgkmcnt(0)")
    if general:
        for i in range(4):
            e(f"  v_mul_f32 v{D2+i}, v{MK+i}, v{D2+i}")
    e(f"  v_cvt_pk_bf16_f32 v{SP}, v{D2}, v{D2+1}")
    e(f"  v_cvt_pk_bf16_f32 v{SP+1}, v{D2+2}, v{D2+3}")
    e(f"  s_cmp_gt_u32 s{sNT}, {NS}")
    e(f"  s_add_u32 m0, s{sRing}, {so}") if False else e("  s_nop 0")
    for d in range(4):
        e(f"  v_mfma_f32_16x16x16_bf16 {vr(D3+4*d,4)}, {vr(SP,2)}, {vr(HT+2*d,2)}, {vr(D3+4*d,4)}")
    if OPT["acc"]:
        e("  s_memtime s[40:41]")
        e("  s_waitcnt lgkmcnt(0)")
    e(f"  s_cbranch_scc0 L_nd{k}")
    e(f"  s_add_u32 m0, s{sRing}, {so}")
    e("  s_nop 0")
    e(f"  buffer_load_dwordx4 {vr(vP0,2)}, s[{rH}:{rH+3}], 0 idxen offen{OPT['nt_hist']} lds")
    e(f"  s_add_u32 m0, s{sRing}, {so+1024}")
    e("  s_nop 0")
    e(f"  buffer_load_dwordx4 {vr(vP1,2)}, s[{rH}:{rH+3}], 0 idxen offen{OPT['nt_hist']} lds")
    e(f"L_nd{k}:")
    if OPT["acc"]:
        e("  s_memtime s[42:43]")
        e("  s_waitcnt lgkmcnt(0)")
        e("  s_sub_u32 s40, s42, s40")
        e("  s_add_u32 s45, s45, s40")
    if slot == NS - 1:
        e(f"  v_add_u32 v{vL}, {16*NS}, v{vL}")
    e(f"  s_sub_u32 s{sNT}, s{sNT}, 1")
    e(f"  s_cmp_eq_u32 s{sNT}, 0")
    e(f"  s_cbranch_scc1 {lab_exit}")

e("L_bin0:")
for slot in range(NS):
    tile(slot, False, "L_out")
e("  s_branch L_bin0")
e("L_gen0:")
for slot in range(NS):
    tile(slot, True, "L_out")
e("  s_branch L_gen0")
for k in tails:
    e(f"L_tw{k}:")
    for r in range(NS - 1, 1, -1):
        e(f"  s_cmp_eq_u32 s{sNT}, {r}")
        e(f"  s_cbranch_scc0 L_tw{k}_{r}")
        e(f"  s_waitcnt vmcnt({2*(r-1)})")
        e(f"  s_branch L_aw{k}")
        e(f"L_tw{k}_{r}:")
    e("  s_waitcnt vmcnt(0)")
    e(f"  s_branch L_aw{k}")

e("L_out:")
stamp(8)
e("  s_nop 7")
e(f"  v_lshl_add_u32 v{Z}, v{vLane}, 1, s{sE3}")
e(f"  v_cndmask_b32_e64 v{Z+1}, v{D3}, v{D3+4}, s[{sC0}:{sC0+1}]")
e(f"  v_cndmask_b32_e64 v{Z+1}, v{Z+1}, v{D3+8}, s[{sC1}:{sC1+1}]")
e(f"  v_cndmask_b32_e64 v{Z+1}, v{Z+1}, v{D3+12}, s[{sC2}:{sC2+1}]")
e(f"  v_cvt_pk_bf16_f32 v{Z+1}, v{Z+1}, v{Z+1}")
e(f"  global_store_short v{Z}, v{Z+1}, s[{sO}:{sO+1}]{OPT['nt_out']}")
if OPT["endwait"] or OPT["stamp"]:
    e("  s_waitcnt vmcnt(0)")
if OPT["stamp"]:
    stamp(9)
    e(f"  s_getreg_b32 s{STAMP0}, hwreg(HW_REG_XCC_ID)")
    e(f"  v_writelane_b32 v{vST}, s{STAMP0}, 10")
    e(f"  v_writelane_b32 v{vST}, s{sN}, 11")
    if OPT["acc"]:
        e(f"  v_writelane_b32 v{vST}, s44, 14")
        e(f"  v_writelane_b32 v{vST}, s45, 15")
    e(f"  s_lshl_b32 s{sTmp}, s{sB}, 6")
    e(f"  s_add_u32 s88, s86, s{sTmp}")
    e(f"  s_addc_u32 s89, s87, 0")
    e(f"  s_and_b32 s89, s89, 0xffff")
    e(f"  s_mov_b32 s90, 64")
    e(f"  s_mov_b32 s91, 0x20000")
    e(f"  v_lshlrev_b32 v{Z}, 2, v{vLane}")
    e(f"  buffer_store_dword v{vST}, v{Z}, s[88:91], 0 offen")
    e("  s_waitcnt vmcnt(0)")
e("L_end:")
e("  s_endpgm")
e('.section .rodata,"a"')
e(".p2align 6")
e(f".amdhsa_kernel {NAME}_kernel")
e("  .amdhsa_next_free_vgpr 128")
e("  .amdhsa_next_free_sgpr 96")
e("  .amdhsa_accum_offset 128")
e("  .amdhsa_group_segment_fixed_size 0")
e("  .amdhsa_kernarg_size 80")
e("  .amdhsa_user_sgpr_count 2")
e("  .amdhsa_user_sgpr_kernarg_segment_ptr 1")
e("  .amdhsa_system_sgpr_workgroup_id_x 1")
e("  .amdhsa_float_denorm_mode_32 3")
e(".end_amdhsa_kernel")
open(sys.argv[1], "w").write("\n".join(x for x in out if x is not None) + "\n")
```

```python
import sys

NAME = "standalone__sequential_behavior_din__recsys"
OPT = dict(nt_hist=" nt", nt_mask=" nt", nt_out="", stamp=0, prio=1, mprio=3, lprio=1,
           p1=0, p2=3, q1=-2, q2=2, t2=2, t1=1, split=8, acc=0, mbar=0, sp0=13, pf=0, pfn=44, endwait=1, sharec=1, cw0=4, earlyc=1)
for a in sys.argv[2:]:
    k, v = a.split("=", 1)
    if k.startswith("nt_"):
        OPT[k] = (" " + v.replace("+", " ")) if v else ""
    else:
        OPT[k] = int(v)

out = []
def e(s=""):
    out.append(s)

NS = 3
BB = 0
W2A = 256
W2C = 320
B2B = 384
TB = 512
LIST = TB + 2048
RING = LIST + 16 * 256
RPW = NS * 2048 + 1024
MOFF = NS * 2048
PFB = RING + 16 * RPW
QB = PFB + 16384
CSTR = 272
CB = QB + 8192
LDS_BYTES = CB + 16 * CSTR
CFLAG = 448
assert LDS_BYTES <= 163840 and RING % 16 == 0

M, C, D3, W2, B2, Z, HB, HT, D2 = 0, 32, 48, 64, 72, 76, 92, 100, 108
SP = D2
ONE = 112
vA0, vA1 = 114, 115
vT = [116, 117, 118, 119]
vP0, vP1 = 120, 122
vDC0, vDC1 = 121, 123
vL, vML = 124, 125
vLane, vQ16 = 126, 127
vST = vML
MK = Z

def vr(b, n=1):
    return f"v{b}" if n == 1 else f"v[{b}:{b+n-1}]"

sT, sH, sMk, sW1, sB1, sW2, sB2, sO = 4, 6, 8, 10, 12, 14, 16, 18
sWave, sB = 20, 21
rH = 24
sRing, sList, sN, sNT = 56, 57, 58, 59
sC0, sC1, sC2, sC3 = 60, 62, 64, 66
sK1, sK2, sK3 = 69, 70, 71
sScale, sTmp, sTmp2 = 72, 74, 75
sBad, sDmy = 76, 78
STAMP0 = 84
sE0, sE1, sE2, sE3 = 88, 90, 92, 94

def stamp(i):
    if OPT["stamp"]:
        e(f"  s_memrealtime s[{STAMP0}:{STAMP0+1}]")
        e("  s_waitcnt lgkmcnt(0)")
        e(f"  v_writelane_b32 v{vST}, s{STAMP0}, {i}")
        if i in (6, 8):
            e(f"  s_memtime s[{STAMP0}:{STAMP0+1}]")
            e("  s_waitcnt lgkmcnt(0)")
            e(f"  v_writelane_b32 v{vST}, s{STAMP0}, {12 if i == 6 else 13}")

def prio(p):
    if OPT["prio"]:
        e(f"  s_setprio {p}")

def dma(pair, slot, hf, filler="  s_nop 0"):
    e(f"  s_add_u32 m0, s{sRing}, {slot*2048+hf*1024}")
    e(filler)
    e(f"  buffer_load_dwordx4 {vr(pair,2)}, s[{rH}:{rH+3}], 0 idxen offen{OPT['nt_hist']} lds")

hdr = open("cdna_kernels/" + NAME + ".s.ref").read().split("; Override launch")[0]
e(hdr.rstrip())
e(f"; @launch grid=(256,1,1) block=(1024,1,1) lds={LDS_BYTES}")
e('.amdgcn_target "amdgcn-amd-amdhsa--gfx950"')
e(".text")
e(f".globl {NAME}_kernel")
e(".p2align 8")
e(f".type {NAME}_kernel,@function")
e(f"{NAME}_kernel:")
e("  s_cmp_ge_u32 s2, 256")
e("  s_cbranch_scc1 L_end")
stamp(0)
e("  s_load_dwordx16 s[4:19], s[0:1], 0")
if OPT["stamp"]:
    e("  s_load_dwordx2 s[86:87], s[0:1], 72")
prio(3)
X0 = W2
q_ = Z + 1
vMo, vWo, vWo2 = Z + 6, Z + 7, Z + 8
e(f"  v_lshrrev_b32 v{Z}, 6, v0")
e(f"  v_and_b32 v{vLane}, 63, v0")
e(f"  s_lshl_b32 s{sB}, s2, 4")
e(f"  v_readfirstlane_b32 s{sWave}, v{Z}")
e(f"  v_mov_b32 v{X0}, 0")
e(f"  v_mov_b32 v{X0+1}, 0")
e(f"  s_add_u32 s{sB}, s{sB}, s{sWave}")
e(f"  s_mul_i32 s{sTmp}, s{sB}, 400")
e(f"  s_mul_i32 s{sRing}, s{sWave}, {RPW}")
e(f"  v_lshl_add_u32 v{vMo}, v{vLane}, 3, s{sTmp}")
e(f"  v_and_b32 v{Z+2}, 32, v{vLane}")
e(f"  v_and_b32 v{Z+3}, 31, v{vLane}")
e(f"  s_lshl_b32 s{sTmp2}, s{sWave}, 9")
e(f"  v_lshlrev_b32 v{Z+2}, 9, v{Z+2}")
e(f"  s_add_u32 s{sK3}, s{sTmp2}, {24576-1024}")
e(f"  v_lshl_add_u32 v{vWo}, v{Z+3}, 4, s{sTmp2}")
e(f"  v_lshl_add_u32 v{vWo2}, v{Z+3}, 4, s{sK3}")
e(f"  s_bfm_b64 s[{sC0}:{sC0+1}], 50, 0")
e(f"  v_add_u32 v{vWo}, v{vWo}, v{Z+2}")
e(f"  v_sub_u32 v{vWo2}, v{vWo2}, v{Z+2}")
e(f"  s_add_u32 s{sRing}, s{sRing}, {RING}")
e(f"  s_add_u32 m0, s{sRing}, 4096")
e(f"  s_mov_b64 exec, s[{sC0}:{sC0+1}]")
e("  s_waitcnt lgkmcnt(0)")
stamp(1)
e(f"  global_load_dwordx2 {vr(X0,2)}, v{vMo}, s[{sMk}:{sMk+1}]{OPT['nt_mask']}")
e("  s_mov_b64 exec, -1")
if OPT["mbar"]:
    e("  s_barrier")
prio(2)
e(f"  global_load_lds_dwordx4 v{vWo}, s[{sW1}:{sW1+1}]")
e(f"  global_load_lds_dwordx4 v{vWo2}, s[{sW1}:{sW1+1}] offset:1024")
e(f"  v_lshrrev_b32 v{q_}, 4, v{vLane}")
if OPT["pf"]:
    e(f"  s_cmp_lt_u32 s2, {OPT['pf']}")
    e("  s_cbranch_scc0 L_nopf")
    e(f"  s_cmp_eq_u32 s{sWave}, 3")
    e("  s_cbranch_scc0 L_nopf")
    e("  s_getpc_b64 s[78:79]")
    e("L_pc:")
    e(f"  s_sub_u32 s78, s78, L_pc-{NAME}_kernel")
    e("  s_subb_u32 s79, s79, 0")
    e(f"  v_lshlrev_b32 v{M+28}, 7, v{vLane}")
    e(f"  s_bfm_b64 exec, {OPT['pfn']}, 0")
    e(f"  global_load_dword v{M+29}, v{M+28}, s[78:79]")
    e("  s_mov_b64 exec, -1")
    e("L_nopf:")
SB1, SB2 = M + 24, M + 25
SP0 = OPT["sp0"]
e(f"  s_sub_u32 s{sE2}, s{sWave}, {SP0}")
e(f"  s_cmp_gt_u32 s{sE2}, 2")
e("  s_cbranch_scc1 L_nosmall")
e(f"  s_cmp_eq_u32 s{sE2}, 1")
e("  s_cbranch_scc1 L_w14")
e(f"  s_cmp_eq_u32 s{sE2}, 2")
e("  s_cbranch_scc1 L_w15")
e(f"  v_mov_b32 v{SB1}, 0")
e(f"  v_lshlrev_b32 v{M+26}, 1, v{vLane}")
e(f"  global_load_short_d16_hi v{SB1}, v{M+26}, s[{sB1}:{sB1+1}]")
e("  s_branch L_nosmall")
e("L_w14:")
e(f"  s_lshl_b32 s{sTmp2}, s2, 11")
e(f"  v_lshl_add_u32 v{M+26}, v{vLane}, 4, s{sTmp2}")
e(f"  s_mov_b32 m0, {TB}")
e("  s_nop 0")
e(f"  global_load_lds_dwordx4 v{M+26}, s[{sT}:{sT+1}]")
e(f"  global_load_lds_dwordx4 v{M+26}, s[{sT}:{sT+1}] offset:1024")
e("  s_branch L_nosmall")
e("L_w15:")
e(f"  v_bfe_u32 v{M+26}, v{vLane}, 4, 1")
e(f"  v_lshlrev_b32 v{M+26}, 6, v{M+26}")
e(f"  v_bfe_u32 v{M+27}, v{vLane}, 1, 1")
e(f"  v_lshl_add_u32 v{M+26}, v{M+27}, 5, v{M+26}")
e(f"  v_bfe_u32 v{M+27}, v{vLane}, 2, 2")
e(f"  v_lshl_add_u32 v{M+26}, v{M+27}, 3, v{M+26}")
e(f"  v_and_b32 v{M+27}, 1, v{vLane}")
e(f"  v_lshl_add_u32 v{M+26}, v{M+27}, 2, v{M+26}")
e(f"  v_mov_b32 v{SB2}, 0")
e(f"  v_mov_b32 v{M+27}, 0")
e(f"  s_mov_b32 m0, {W2A}")
e(f"  global_load_short_d16_hi v{SB2}, v{M+27}, s[{sB2}:{sB2+1}]")
e(f"  s_bfm_b64 exec, 32, 0")
e(f"  global_load_lds_dword v{M+26}, s[{sW2}:{sW2+1}]")
e("  s_mov_b64 exec, -1")
e("L_nosmall:")
e(f"  s_lshl_b32 s{sList}, s{sWave}, 8")
e(f"  s_add_u32 s{sList}, s{sList}, {LIST}")
e(f"  v_mov_b32 v{M}, -1")
e(f"  v_lshl_add_u32 v{Z+3}, v{vLane}, 2, s{sList}")
e(f"  ds_write_b32 v{Z+3}, v{M}")
t0, t1, t2, t3, t4 = Z, q_, Z + 2, Z + 3, Z + 4
PFA, QWA, RWA = D3, D3 + 2, D3 + 3
e(f"  s_mul_i32 s{sTmp}, s{sB}, 25600")
e(f"  v_and_b32 v{t2}, 7, v{vLane}")
e(f"  s_add_u32 s{rH}, s{sH}, s{sTmp}")
e(f"  v_xor_b32 v{t2}, v{t2}, v{t1}")
e(f"  s_addc_u32 s{rH+1}, s{sH+1}, 0")
e(f"  v_lshlrev_b32 v{vDC0}, 4, v{t2}")
e(f"  s_or_b32 s{rH+1}, s{rH+1}, {128 << 16}")
e(f"  v_xor_b32 v{vDC1}, 64, v{vDC0}")
e(f"  s_mov_b32 s{rH+2}, 200")
e(f"  v_lshrrev_b32 v{t2}, 3, v{vLane}")
e(f"  s_mov_b32 s{rH+3}, 0x20000")
e(f"  v_add_u32 v{vL}, s{sList}, v{t2}")
vR = [Z + 11, Z + 12, Z + 13, Z + 14]
e(f"  v_lshlrev_b32 v{vR[0]}, 2, v{vLane}")
e(f"  s_mov_b32 s{sK1}, 0xffff")
for i in range(1, 4):
    e(f"  v_add_u32 v{vR[i]}, {i}, v{vR[0]}")
pos = [Z + 2, Z + 3, Z + 4, Z + 5]
prio(1)
vPA = D2
vTA, vQA = Z + 9, Z + 15
vM0, vM1 = D2 + 2, D2 + 3
S = []
S.append(f"  s_mov_b32 s{sK2}, 0xffff0000")
S.append(f"  s_mov_b32 s{sScale}, 0xbfb8aa3b")
S.append(f"  s_mov_b32 s{sScale+1}, 0xbfb8aa3b")
S.append(f"  s_lshr_b32 s{sE0}, s{sWave}, 3")
S.append(f"  s_and_b32 s{sE0+1}, s{sWave}, 1")
S.append(f"  s_bfe_u32 s{sE1}, s{sWave}, 0x20001")
S.append(f"  s_lshl_b32 s{sTmp}, s{sE0}, 11")
S.append(f"  s_lshl_b32 s{sK3}, s{sE0+1}, 10")
S.append(f"  s_add_u32 s{sTmp}, s{sTmp}, s{sK3}")
S.append(f"  s_lshl_b32 s{sK3}, s{sE1}, 8")
S.append(f"  s_add_u32 s{sTmp}, s{sTmp}, s{sK3}")
S.append(f"  s_add_u32 s{sTmp}, s{sTmp}, {PFB}")
S.append(f"  s_lshl_b32 s{sE0}, s{sE0}, 10")
S.append(f"  s_add_u32 s{sE0}, s{sE0}, s{sK3}")
S.append(f"  s_lshl_b32 s{sE0+1}, s{sE0+1}, 3")
S.append(f"  s_add_u32 s{sE0}, s{sE0}, s{sE0+1}")
S.append(f"  s_add_u32 s{sE0}, s{sE0}, {QB}")
S.append(f"  s_add_u32 s{sK3}, s{sRing}, 4096")
S.append(f"  s_lshl_b32 s{sE1}, s{sWave}, 7")
S.append(f"  s_add_u32 s{sE1}, s{sE1}, {TB}")
V = []
V.append(f"  v_and_b32 v{t0}, 15, v{vLane}")
V.append(f"  v_lshrrev_b32 v{t2}, 1, v{t0}")
V.append(f"  v_xor_b32 v{t2}, v{t2}, v{t1}")
V.append(f"  v_lshlrev_b32 v{t2}, 4, v{t2}")
V.append(f"  v_lshl_add_u32 v{t2}, v{t0}, 7, v{t2}")
V.append(f"  v_add_u32 v{vA0}, s{sRing}, v{t2}")
V.append(f"  v_xor_b32 v{vA1}, 64, v{vA0}")
V.append(f"  v_lshrrev_b32 v{t2}, 2, v{t0}")
V.append(f"  v_and_b32 v{RWA}, 3, v{vLane}")
V.append(f"  v_cmp_eq_u32_e64 s[{sC1}:{sC1+1}], v{t2}, v{t1}")
V.append(f"  v_lshlrev_b32 v{RWA}, 3, v{RWA}")
V.append(f"  v_lshl_add_u32 v{RWA}, v{t2}, 7, v{RWA}")
V.append(f"  v_lshl_add_u32 v{RWA}, v{t1}, 5, v{RWA}")
V.append(f"  v_lshl_add_u32 v{t2}, v{t1}, 2, v{t2}")
V.append(f"  v_lshrrev_b32 v{t3}, 1, v{t2}")
V.append(f"  v_bfe_u32 v{t4}, v{vLane}, 1, 1")
V.append(f"  v_xor_b32 v{t3}, v{t3}, v{t4}")
V.append(f"  v_lshlrev_b32 v{t3}, 4, v{t3}")
V.append(f"  v_lshl_add_u32 v{t3}, v{t2}, 7, v{t3}")
V.append(f"  v_and_b32 v{t2}, 1, v{vLane}")
V.append(f"  v_lshl_add_u32 v{t3}, v{t2}, 3, v{t3}")
V.append(f"  v_lshlrev_b32 v{vQ16}, 4, v{t1}")
V.append(f"  v_add_u32 v{vT[0]}, s{sRing}, v{t3}")
V.append(f"  v_lshlrev_b32 v{t0}, 4, v{t0}")
for d in range(1, 4):
    V.append(f"  v_xor_b32 v{vT[d]}, {32*d}, v{vT[0]}")
for i in range(max(len(S), len(V))):
    if i < len(V): e(V[i])
    if i < len(S): e(S[i])
e(f"  v_lshl_add_u32 v{PFA}, v{t1}, 12, v{t0}")
e(f"  v_lshl_add_u32 v{QWA}, v{t1}, 11, v{t0}")
e(f"  v_add_u32 v{RWA}, s{sK3}, v{RWA}")
e(f"  v_add_u32 v{PFA}, s{sTmp}, v{PFA}")
e(f"  v_add_u32 v{QWA}, s{sE0}, v{QWA}")
e(f"  v_add_u32 v{vTA}, s{sE1}, v{vQ16}")
e(f"  v_lshlrev_b32 v{vPA}, 4, v{vLane}")
e(f"  v_add_u32 v{vQA}, {QB}, v{vPA}")
e(f"  v_add_u32 v{vPA}, {PFB}, v{vPA}")
e(f"  v_lshlrev_b32 v{t2}, 4, v{t2}")
e(f"  v_mov_b32 v{t3}, 0xffff")
e(f"  v_lshlrev_b32 v{t3}, v{t2}, v{t3}")
e(f"  v_cmp_gt_u32 vcc, 32, v{vLane}")
e(f"  v_cndmask_b32_e64 v{t3}, 0, v{t3}, s[{sC1}:{sC1+1}]")
e(f"  v_cmp_eq_u32_e64 s[{sC1}:{sC1+1}], 0, v{t4}")
e(f"  v_mov_b32 v{t0}, 0x3f80")
e(f"  v_mov_b32 v{pos[0]}, s{sList}")
e(f"  v_cndmask_b32 v{ONE}, 0, v{t0}, vcc")
e(f"  v_mov_b32 v{ONE+1}, 0")
e(f"  v_cndmask_b32_e64 v{vM0}, 0, v{t3}, s[{sC1}:{sC1+1}]")
e(f"  v_cndmask_b32_e64 v{vM1}, v{t3}, 0, s[{sC1}:{sC1+1}]")
AD = HB + 4
e(f"  s_mov_b32 s{sTmp}, 0x3f803f80")
e(f"  v_and_b32 v{AD}, s{sTmp}, v{vM0}")
e(f"  v_and_b32 v{AD+1}, s{sTmp}, v{vM1}")
e("  s_waitcnt vmcnt(2)")
stamp(2)
prio(3)
e(f"  v_cmp_ne_u16_e64 s[{sC0}:{sC0+1}], 0, v{X0}")
e(f"  v_cmp_lt_u32_e64 s[{sC1}:{sC1+1}], s{sK1}, v{X0}")
e(f"  v_cmp_ne_u16_e64 s[{sC2}:{sC2+1}], 0, v{X0+1}")
e(f"  v_cmp_lt_u32_e64 s[{sC3}:{sC3+1}], s{sK1}, v{X0+1}")
e(f"  v_mbcnt_lo_u32_b32 v{pos[0]}, s{sC0}, v{pos[0]}")
e(f"  v_mbcnt_hi_u32_b32 v{pos[0]}, s{sC0+1}, v{pos[0]}")
for c in (sC1, sC2, sC3):
    e(f"  v_mbcnt_lo_u32_b32 v{pos[0]}, s{c}, v{pos[0]}")
    e(f"  v_mbcnt_hi_u32_b32 v{pos[0]}, s{c+1}, v{pos[0]}")
e(f"  s_mov_b64 exec, s[{sC0}:{sC0+1}]")
e(f"  ds_write_b8 v{pos[0]}, v{vR[0]}")
e("  s_mov_b64 exec, -1")
e(f"  v_addc_co_u32_e64 v{pos[1]}, s[{sDmy}:{sDmy+1}], 0, v{pos[0]}, s[{sC0}:{sC0+1}]")
e(f"  v_addc_co_u32_e64 v{pos[2]}, s[{sDmy}:{sDmy+1}], 0, v{pos[1]}, s[{sC1}:{sC1+1}]")
e(f"  v_addc_co_u32_e64 v{pos[3]}, s[{sDmy}:{sDmy+1}], 0, v{pos[2]}, s[{sC2}:{sC2+1}]")
for i, c in ((1, sC1), (2, sC2), (3, sC3)):
    e(f"  s_mov_b64 exec, s[{c}:{c+1}]")
    e(f"  ds_write_b8 v{pos[i]}, v{vR[i]}")
e("  s_mov_b64 exec, -1")
e(f"  ds_read_u8 v{vP0}, v{vL}")
e(f"  ds_read_u8 v{vP1}, v{vL} offset:8")
e(f"  s_bcnt1_i32_b64 s{sN}, s[{sC0}:{sC0+1}]")
e(f"  s_bcnt1_i32_b64 s{sK3}, s[{sC1}:{sC1+1}]")
e(f"  s_add_u32 s{sN}, s{sN}, s{sK3}")
e(f"  s_bcnt1_i32_b64 s{sK3}, s[{sC2}:{sC2+1}]")
e(f"  s_add_u32 s{sN}, s{sN}, s{sK3}")
e(f"  s_bcnt1_i32_b64 s{sK3}, s[{sC3}:{sC3+1}]")
e(f"  s_add_u32 s{sN}, s{sN}, s{sK3}")
e("  s_waitcnt lgkmcnt(1)")
dma(vP0, 0, 0)
e("  s_waitcnt lgkmcnt(0)")
dma(vP1, 0, 1)
stamp(3)
prio(2)
RW = M + 16
e("  s_waitcnt vmcnt(2)")
stamp(4)
for m in range(4):
    e(f"  ds_read_b64_tr_b16 {vr(RW+2*m,2)}, v{RWA} offset:{512*m}")
e(f"  ds_read_u8 v{vP0}, v{vL} offset:16")
e(f"  ds_read_u8 v{vP1}, v{vL} offset:24")
e(f"  s_add_u32 s{sNT}, s{sN}, 15")
e(f"  s_lshr_b32 s{sNT}, s{sNT}, 4")
e(f"  s_movk_i32 s{sTmp}, 0x3f80")
e(f"  v_cmp_eq_u16_e64 s[{sE0}:{sE0+1}], s{sTmp}, v{X0}")
e(f"  v_cmp_eq_u16_e64 s[{sE2}:{sE2+1}], s{sTmp}, v{X0+1}")
e(f"  v_cmp_eq_u16_sdwa s[{sE1}:{sE1+1}], v{X0}, s{sTmp} src0_sel:WORD_1 src1_sel:WORD_0")
e(f"  v_cmp_eq_u16_sdwa s[{sE3}:{sE3+1}], v{X0+1}, s{sTmp} src0_sel:WORD_1 src1_sel:WORD_0")
e(f"  s_xor_b64 s[{sBad}:{sBad+1}], s[{sE0}:{sE0+1}], s[{sC0}:{sC0+1}]")
e(f"  s_xor_b64 s[{sE2}:{sE2+1}], s[{sE2}:{sE2+1}], s[{sC2}:{sC2+1}]")
e(f"  s_or_b64 s[{sBad}:{sBad+1}], s[{sBad}:{sBad+1}], s[{sE2}:{sE2+1}]")
for a_, b_ in ((sE1, sC1), (sE3, sC3)):
    e(f"  s_xor_b64 s[{a_}:{a_+1}], s[{a_}:{a_+1}], s[{b_}:{b_+1}]")
    e(f"  s_or_b64 s[{sBad}:{sBad+1}], s[{sBad}:{sBad+1}], s[{a_}:{a_+1}]")
e(f"  s_cmp_lg_u64 s[{sBad}:{sBad+1}], 0")
e("  s_cbranch_scc0 L_binmask")
e(f"  s_add_u32 s{sTmp}, s{sRing}, {MOFF}")
for i in range(4):
    e(f"  v_mov_b32 v{M+i}, 0")
e(f"  v_lshl_add_u32 v{Z+6}, v{vLane}, 4, s{sTmp}")
e(f"  ds_write_b128 v{Z+6}, {vr(M,4)}")
e(f"  v_add_u32 v{vML}, s{sTmp}, v{vQ16}")
e(f"  v_lshlrev_b32 v{M+4}, 16, v{X0}")
e(f"  v_and_b32 v{M+5}, s{sK2}, v{X0}")
e(f"  v_lshlrev_b32 v{M+6}, 16, v{X0+1}")
e(f"  v_and_b32 v{M+7}, s{sK2}, v{X0+1}")
for i in range(4):
    e(f"  v_subrev_u32 v{pos[i]}, s{sList}, v{pos[i]}")
    e(f"  v_lshl_add_u32 v{pos[i]}, v{pos[i]}, 2, s{sTmp}")
for i, c in enumerate((sC0, sC1, sC2, sC3)):
    e(f"  s_mov_b64 exec, s[{c}:{c+1}]")
    e(f"  ds_write_b32 v{pos[i]}, v{M+4+i}")
e("  s_mov_b64 exec, -1")
e("L_binmask:")
W1R = M
Wa, Wc, Wd, Wb_ = W1R, W1R + 4, W1R + 8, W1R + 12
e("  s_waitcnt lgkmcnt(0)")
for m in range(4):
    for r in range(2):
        e(f"  v_lshlrev_b32 v{W1R+4*m+2*r}, 16, v{RW+2*m+r}")
        e(f"  v_and_b32 v{W1R+4*m+2*r+1}, s{sK2}, v{RW+2*m+r}")
for p in range(2):
    e(f"  v_pk_add_f32 {vr(Wa+2*p,2)}, {vr(Wa+2*p,2)}, {vr(Wc+2*p,2)}")
for p in range(2):
    e(f"  v_pk_add_f32 {vr(Wb_+2*p,2)}, {vr(Wb_+2*p,2)}, {vr(Wc+2*p,2)} neg_lo:[0,1] neg_hi:[0,1]")
for base in (Wa, Wd, Wb_):
    for p in range(2):
        e(f"  v_pk_mul_f32 {vr(base+2*p,2)}, {vr(base+2*p,2)}, s[{sScale}:{sScale+1}]")
e(f"  v_cvt_pk_bf16_f32 v{RW+2}, v{Wd}, v{Wd+1}")
e(f"  v_cvt_pk_bf16_f32 v{RW+3}, v{Wd+2}, v{Wd+3}")
e(f"  v_cvt_pk_bf16_f32 v{RW}, v{Wa}, v{Wa+1}")
e(f"  v_cvt_pk_bf16_f32 v{RW+1}, v{Wa+2}, v{Wa+3}")
e(f"  v_cvt_pk_bf16_f32 v{RW+6}, v{Wb_}, v{Wb_+1}")
e(f"  v_cvt_pk_bf16_f32 v{RW+7}, v{Wb_+2}, v{Wb_+3}")
e(f"  ds_write_b128 v{PFA}, {vr(RW,4)}")
e(f"  ds_write_b64 v{QWA}, {vr(RW+6,2)}")
e(f"  s_cmp_eq_u32 s{sWave}, {SP0}")
e("  s_cbranch_scc0 L_nb1")
e(f"  v_mul_f32 v{SB1}, s{sScale}, v{SB1}")
e(f"  v_lshlrev_b32 v{M+26}, 2, v{vLane}")
e(f"  ds_write_b32 v{M+26}, v{SB1} offset:{BB}")
e("L_nb1:")
e(f"  s_cmp_eq_u32 s{sWave}, {SP0+2}")
e("  s_cbranch_scc0 L_nosmall2")
e(f"  v_and_b32 v{M+26}, 15, v{vLane}")
e(f"  v_lshlrev_b32 v{M+26}, 2, v{M+26}")
e(f"  ds_write_b32 v{M+26}, v{SB2} offset:{B2B}")
if OPT["sharec"]:
    e(f"  v_mov_b32 v{M+26}, 0")
    e(f"  ds_write_b32 v{M+26}, v{M+26} offset:{CFLAG}")
e("L_nosmall2:")
e("  s_waitcnt lgkmcnt(0)")
e("  s_barrier")
stamp(5)
prio(OPT["mprio"])
e(f"  ds_read_b128 {vr(HT,4)}, v{vTA}")
e(f"  ds_read_b128 {vr(HT+4,4)}, v{vTA} offset:64")
if not OPT["sharec"]:
    for tau in range(4):
        e(f"  ds_read_b128 {vr(C+4*tau,4)}, v{vQ16} offset:{BB+64*tau}")
    for g in range(8):
        e(f"  ds_read_b128 {vr(M+4*g,4)}, v{vQA} offset:{1024*g}")
else:
    e(f"  s_sub_u32 s{sE2}, s{sWave}, {OPT['cw0']}")
    e(f"  s_cmp_lt_u32 s{sE2}, 4")
    e("  s_cbranch_scc0 L_noc")
    e(f"  v_and_b32 v{M}, 15, v{vLane}")
    e(f"  s_lshl_b32 s{sTmp}, s{sE2}, 11")
    e(f"  v_lshl_add_u32 v{M+1}, v{M}, 7, v{vQ16}")
    e(f"  v_add_u32 v{M+2}, s{sTmp}, v{vQA}")
    e(f"  s_lshl_b32 s{sTmp}, s{sE2}, 6")
    e(f"  v_add_u32 v{M+3}, s{sTmp}, v{vQ16}")
    e(f"  ds_read_b128 {vr(M+4,4)}, v{M+1} offset:{TB}")
    e(f"  ds_read_b128 {vr(M+8,4)}, v{M+1} offset:{TB+64}")
    e(f"  ds_read_b128 {vr(M+12,4)}, v{M+2}")
    e(f"  ds_read_b128 {vr(M+16,4)}, v{M+2} offset:1024")
    e(f"  ds_read_b128 {vr(M+20,4)}, v{M+3} offset:{BB}")
    e(f"  v_mul_u32_u24 v{M}, {CSTR}, v{M}")
    e(f"  v_add_u32 v{M}, v{M}, v{M+3}")
    e(f"  v_add_u32 v{M}, {CB}, v{M}")
    e(f"  v_mov_b32 v{M+1}, 1")
    e(f"  v_mov_b32 v{M+2}, 0")
    e("  s_waitcnt lgkmcnt(0)")
    e(f"  v_mfma_f32_16x16x32_bf16 {vr(M+20,4)}, {vr(M+12,4)}, {vr(M+4,4)}, {vr(M+20,4)}")
    e(f"  v_mfma_f32_16x16x32_bf16 {vr(M+20,4)}, {vr(M+16,4)}, {vr(M+8,4)}, {vr(M+20,4)}")
    e("  s_nop 7")
    e(f"  ds_write_b128 v{M}, {vr(M+20,4)}")
    e("  s_waitcnt lgkmcnt(0)")
    e("  s_mov_b64 exec, 1")
    e(f"  ds_add_u32 v{M+2}, v{M+1} offset:{CFLAG}")
    e("  s_mov_b64 exec, -1")
    e("L_noc:")
nlab = [0]
def cond_block(old_here, young_here, body):
    if not (old_here or young_here):
        return
    nlab[0] += 1
    lab_ = nlab[0]
    if old_here != young_here:
        e(f"  s_cmp_lt_u32 s{sWave}, {OPT['split']}")
        e(f"  s_cbranch_scc{0 if old_here else 1} L_rd{lab_}")
    body()
    if old_here != young_here:
        e(f"L_rd{lab_}:")
def idx2():
    e(f"  ds_read_u8 v{vP0}, v{vL} offset:32")
    e(f"  ds_read_u8 v{vP1}, v{vL} offset:40")
def ring_dma(posn):
    def t1():
        dma(vP0, 1, 0)
        dma(vP1, 1, 1)
        if posn != -2:
            idx2()
    def t2():
        e("  s_waitcnt lgkmcnt(0)")
        dma(vP0, 2, 0)
        dma(vP1, 2, 1)
    if posn == -1:
        cond_block(OPT["p1"] == -2, OPT["q1"] == -2, idx2)
    cond_block(OPT["p1"] == posn, OPT["q1"] == posn, t1)
    cond_block(OPT["p2"] == posn, OPT["q2"] == posn, t2)
B0 = [D3 + 4*i for i in range(4)]
B1 = [W2, W2 + 4, W2 + 8, HB]
BUFS = [B0, B1]
def mread(g):
    s, h = g >> 1, g & 1
    for tau in range(4):
        e(f"  ds_read_b128 {vr(BUFS[g&1][tau],4)}, v{vPA} offset:{tau*4096+s*2048+h*1024}")
ring_dma(-2)
if not OPT["sharec"]:
    for g in range(8):
        e(f"  s_waitcnt lgkmcnt({7-g})")
        tau, s = g >> 1, g & 1
        e(f"  v_mfma_f32_16x16x32_bf16 {vr(C+4*tau,4)}, {vr(M+4*g,4)}, {vr(HT+4*s,4)}, {vr(C+4*tau,4)}")
ring_dma(-1)
mread(0)
DT = [Z, Z + 4, Z + 8, Z + 12]
if OPT["sharec"]:
    e("  s_waitcnt lgkmcnt(4)")
e(f"  v_and_b32 v{AD+2}, v{HT}, v{vM0}")
e(f"  v_and_b32 v{AD+3}, v{HT+1}, v{vM1}")
for g in range(4):
    s, h = g >> 1, g & 1
    if g < 3:
        mread(g + 1)
    e(f"  s_waitcnt lgkmcnt({4 if g < 3 else 0})")
    for tau in range(4):
        e(f"  v_mfma_f32_16x16x32_bf16 {vr(DT[tau],4)}, {vr(AD,4)}, {vr(BUFS[g&1][tau],4)}, 0")
    if g < 3:
        s2, h2 = (g + 1) >> 1, (g + 1) & 1
        e(f"  v_and_b32 v{AD+2}, v{HT+4*s2+2*h2}, v{vM0}")
        e(f"  v_and_b32 v{AD+3}, v{HT+4*s2+2*h2+1}, v{vM1}")
        e("  s_nop 2")
    elif OPT["sharec"] and OPT["earlyc"]:
        e(f"  v_mov_b32 v{AD}, 0")
        e(f"  s_mul_i32 s{sTmp2}, s{sWave}, {CSTR}")
        e(f"  ds_read_b32 v{AD+1}, v{AD} offset:{CFLAG}")
        e(f"  ds_read_b128 {vr(W2,4)}, v{vQ16} offset:{W2A}")
        e(f"  ds_read_b128 {vr(W2+4,4)}, v{vQ16} offset:{W2C}")
        e(f"  ds_read_b128 {vr(B2,4)}, v{vQ16} offset:{B2B}")
        e(f"  s_add_u32 s{sTmp2}, s{sTmp2}, {CB}")
        e(f"  v_add_u32 v{AD+2}, s{sTmp2}, v{vQ16}")
    else:
        e("  s_nop 4")
    for tau in range(4):
        for p in range(2):
            e(f"  v_cvt_pk_bf16_f32 v{M+8*tau+4*s+2*h+p}, v{DT[tau]+2*p}, v{DT[tau]+2*p+1}")
    ring_dma(g)
if OPT["sharec"] and OPT["earlyc"]:
    e("  s_waitcnt lgkmcnt(3)")
    e("L_cpoll:")
    e(f"  v_readfirstlane_b32 s{sTmp}, v{AD+1}")
    e(f"  s_cmp_ge_u32 s{sTmp}, 4")
    e("  s_cbranch_scc1 L_cready")
    e(f"  ds_read_b32 v{AD+1}, v{AD} offset:{CFLAG}")
    e("  s_waitcnt lgkmcnt(0)")
    e("  s_branch L_cpoll")
    e("L_cready:")
    for tau in range(4):
        e(f"  ds_read_b128 {vr(C+4*tau,4)}, v{AD+2} offset:{64*tau}")
else:
    if OPT["sharec"]:
        e(f"  v_mov_b32 v{HB}, 0")
        e(f"  s_mul_i32 s{sTmp}, s{sWave}, {CSTR}")
        e(f"  s_add_u32 s{sTmp}, s{sTmp}, {CB}")
        e(f"  v_add_u32 v{HB+1}, s{sTmp}, v{vQ16}")
        e("L_cpoll:")
        e(f"  ds_read_b32 v{HB+2}, v{HB} offset:{CFLAG}")
        e("  s_waitcnt lgkmcnt(0)")
        e(f"  v_readfirstlane_b32 s{sTmp}, v{HB+2}")
        e(f"  s_cmp_lt_u32 s{sTmp}, 4")
        e("  s_cbranch_scc1 L_cpoll")
        for tau in range(4):
            e(f"  ds_read_b128 {vr(C+4*tau,4)}, v{HB+1} offset:{64*tau}")
    e(f"  ds_read_b128 {vr(W2,4)}, v{vQ16} offset:{W2A}")
    e(f"  ds_read_b128 {vr(W2+4,4)}, v{vQ16} offset:{W2C}")
    e(f"  ds_read_b128 {vr(B2,4)}, v{vQ16} offset:{B2B}")
ring_dma(4)
e(f"  s_mov_b32 s{sC0}, 0xffff0000")
e(f"  s_mov_b32 s{sC0+1}, 0")
e(f"  s_mov_b32 s{sC1}, 0")
e(f"  s_mov_b32 s{sC1+1}, 0xffff")
e(f"  s_mov_b32 s{sC2}, 0")
e(f"  s_mov_b32 s{sC2+1}, 0xffff0000")
e(f"  s_lshl_b32 s{sE3}, s{sB}, 7")
e(f"  v_mov_b32 v{D2+2}, 0")
e(f"  v_mov_b32 v{D2+3}, 0")
e(f"  v_add_u32 v{vL}, {16*NS}, v{vL}")
e("  s_nop 0")
e(f"  v_mfma_f32_32x32x8_bf16 {vr(D3,16)}, {vr(D2+2,2)}, {vr(D2+2,2)}, 0")
e("  s_waitcnt lgkmcnt(0)")
stamp(6)
if OPT["stamp"]:
    e(f"  s_waitcnt vmcnt(4)")
    stamp(7)
if OPT["acc"]:
    e("  s_mov_b32 s44, 0")
    e("  s_mov_b32 s45, 0")
prio(2)
e(f"  s_cmp_eq_u32 s{sNT}, 0")
e("  s_cbranch_scc1 L_out")
e(f"  s_cmp_lg_u64 s[{sBad}:{sBad+1}], 0")
e("  s_cbranch_scc1 L_gen0")

lab = [0]
tails = []
def tile(slot, general, lab_exit):
    so = slot * 2048
    lab[0] += 1
    k = lab[0]
    if OPT["acc"]:
        e("  s_memtime s[40:41]")
        e("  s_waitcnt lgkmcnt(0)")
    e(f"  s_cmp_ge_u32 s{sNT}, {NS}")
    e(f"  s_cbranch_scc0 L_tw{k}")
    e(f"  s_waitcnt vmcnt({2*(NS-1)})")
    e(f"L_aw{k}:")
    if OPT["acc"]:
        e("  s_memtime s[42:43]")
        e("  s_waitcnt lgkmcnt(0)")
        e("  s_sub_u32 s40, s42, s40")
        e("  s_add_u32 s44, s44, s40")
    tails.append(k)
    e(f"  ds_read_b128 {vr(HB,4)}, v{vA0} offset:{so}")
    e(f"  ds_read_b128 {vr(HB+4,4)}, v{vA1} offset:{so}")
    for d in range(4):
        e(f"  ds_read_b64_tr_b16 {vr(HT+2*d,2)}, v{vT[d]} offset:{so}")
    e(f"  ds_read_u8 v{vP0}, v{vL} offset:{16*slot}")
    e(f"  ds_read_u8 v{vP1}, v{vL} offset:{16*slot+8}")
    nrd = 8
    if OPT["prio"] and OPT["lprio"]:
        e(f"  s_cmp_gt_u32 s{sNT}, {OPT['t2']}")
        e(f"  s_cbranch_scc1 L_p{k}")
        e(f"  s_setprio 1")
        e(f"  s_cmp_gt_u32 s{sNT}, {OPT['t1']}")
        e(f"  s_cbranch_scc1 L_p{k}")
        e(f"  s_setprio 0")
        e(f"L_p{k}:")
    e(f"  s_waitcnt lgkmcnt({nrd-1})")
    for tau in range(4):
        e(f"  v_mfma_f32_16x16x32_bf16 {vr(Z+4*tau,4)}, {vr(M+8*tau,4)}, {vr(HB,4)}, {vr(C+4*tau,4)}")
    e(f"  s_waitcnt lgkmcnt({nrd-2})")
    for tau in range(4):
        e(f"  v_mfma_f32_16x16x32_bf16 {vr(Z+4*tau,4)}, {vr(M+8*tau+4,4)}, {vr(HB+4,4)}, {vr(Z+4*tau,4)}")
    e("  s_nop 4")
    for i in range(16):
        e(f"  v_exp_f32 v{Z+i}, v{Z+i}")
    e("  s_nop 1")
    e(f"  v_mfma_f32_32x32x8_bf16 {vr(Z,16)}, {vr(ONE,2)}, {vr(ONE,2)}, {vr(Z,16)}")
    e("  s_nop 11")
    for i in range(16):
        e(f"  v_rcp_f32 v{Z+i}, v{Z+i}")
    for i in range(8):
        e(f"  v_cvt_pk_bf16_f32 v{HB+i}, v{Z+2*i}, v{Z+2*i+1}")
    if general:
        e(f"  ds_read_b128 {vr(MK,4)}, v{vML} offset:{64*slot}")
    else:
        e("  s_nop 0")
    e(f"  v_mfma_f32_16x16x32_bf16 {vr(D2,4)}, {vr(HB,4)}, {vr(W2,4)}, {vr(B2,4)}")
    e(f"  v_mfma_f32_16x16x32_bf16 {vr(D2,4)}, {vr(HB+4,4)}, {vr(W2+4,4)}, {vr(D2,4)}")
    if slot == NS - 1 and general:
        e(f"  v_add_u32 v{vML}, {64*NS}, v{vML}")
    e("  s_nop 7")
    e("  s_waitcnt lgkmcnt(0)")
    if general:
        for i in range(4):
            e(f"  v_mul_f32 v{D2+i}, v{MK+i}, v{D2+i}")
    e(f"  v_cvt_pk_bf16_f32 v{SP}, v{D2}, v{D2+1}")
    e(f"  v_cvt_pk_bf16_f32 v{SP+1}, v{D2+2}, v{D2+3}")
    e(f"  s_cmp_gt_u32 s{sNT}, {NS}")
    e(f"  s_add_u32 m0, s{sRing}, {so}") if False else e("  s_nop 0")
    for d in range(4):
        e(f"  v_mfma_f32_16x16x16_bf16 {vr(D3+4*d,4)}, {vr(SP,2)}, {vr(HT+2*d,2)}, {vr(D3+4*d,4)}")
    if OPT["acc"]:
        e("  s_memtime s[40:41]")
        e("  s_waitcnt lgkmcnt(0)")
    e(f"  s_cbranch_scc0 L_nd{k}")
    e(f"  s_add_u32 m0, s{sRing}, {so}")
    e("  s_nop 0")
    e(f"  buffer_load_dwordx4 {vr(vP0,2)}, s[{rH}:{rH+3}], 0 idxen offen{OPT['nt_hist']} lds")
    e(f"  s_add_u32 m0, s{sRing}, {so+1024}")
    e("  s_nop 0")
    e(f"  buffer_load_dwordx4 {vr(vP1,2)}, s[{rH}:{rH+3}], 0 idxen offen{OPT['nt_hist']} lds")
    e(f"L_nd{k}:")
    if OPT["acc"]:
        e("  s_memtime s[42:43]")
        e("  s_waitcnt lgkmcnt(0)")
        e("  s_sub_u32 s40, s42, s40")
        e("  s_add_u32 s45, s45, s40")
    if slot == NS - 1:
        e(f"  v_add_u32 v{vL}, {16*NS}, v{vL}")
    e(f"  s_sub_u32 s{sNT}, s{sNT}, 1")
    e(f"  s_cmp_eq_u32 s{sNT}, 0")
    e(f"  s_cbranch_scc1 {lab_exit}")

e("L_bin0:")
for slot in range(NS):
    tile(slot, False, "L_out")
e("  s_branch L_bin0")
e("L_gen0:")
for slot in range(NS):
    tile(slot, True, "L_out")
e("  s_branch L_gen0")
for k in tails:
    e(f"L_tw{k}:")
    for r in range(NS - 1, 1, -1):
        e(f"  s_cmp_eq_u32 s{sNT}, {r}")
        e(f"  s_cbranch_scc0 L_tw{k}_{r}")
        e(f"  s_waitcnt vmcnt({2*(r-1)})")
        e(f"  s_branch L_aw{k}")
        e(f"L_tw{k}_{r}:")
    e("  s_waitcnt vmcnt(0)")
    e(f"  s_branch L_aw{k}")

e("L_out:")
stamp(8)
e("  s_nop 7")
e(f"  v_lshl_add_u32 v{Z}, v{vLane}, 1, s{sE3}")
e(f"  v_cndmask_b32_e64 v{Z+1}, v{D3}, v{D3+4}, s[{sC0}:{sC0+1}]")
e(f"  v_cndmask_b32_e64 v{Z+1}, v{Z+1}, v{D3+8}, s[{sC1}:{sC1+1}]")
e(f"  v_cndmask_b32_e64 v{Z+1}, v{Z+1}, v{D3+12}, s[{sC2}:{sC2+1}]")
e(f"  v_cvt_pk_bf16_f32 v{Z+1}, v{Z+1}, v{Z+1}")
e(f"  global_store_short v{Z}, v{Z+1}, s[{sO}:{sO+1}]{OPT['nt_out']}")
if OPT["endwait"] or OPT["stamp"]:
    e("  s_waitcnt vmcnt(0)")
if OPT["stamp"]:
    stamp(9)
    e(f"  s_getreg_b32 s{STAMP0}, hwreg(HW_REG_XCC_ID)")
    e(f"  v_writelane_b32 v{vST}, s{STAMP0}, 10")
    e(f"  v_writelane_b32 v{vST}, s{sN}, 11")
    if OPT["acc"]:
        e(f"  v_writelane_b32 v{vST}, s44, 14")
        e(f"  v_writelane_b32 v{vST}, s45, 15")
    e(f"  s_lshl_b32 s{sTmp}, s{sB}, 6")
    e(f"  s_add_u32 s88, s86, s{sTmp}")
    e(f"  s_addc_u32 s89, s87, 0")
    e(f"  s_and_b32 s89, s89, 0xffff")
    e(f"  s_mov_b32 s90, 64")
    e(f"  s_mov_b32 s91, 0x20000")
    e(f"  v_lshlrev_b32 v{Z}, 2, v{vLane}")
    e(f"  buffer_store_dword v{vST}, v{Z}, s[88:91], 0 offen")
    e("  s_waitcnt vmcnt(0)")
e("L_end:")
e("  s_endpgm")
e('.section .rodata,"a"')
e(".p2align 6")
e(f".amdhsa_kernel {NAME}_kernel")
e("  .amdhsa_next_free_vgpr 128")
e("  .amdhsa_next_free_sgpr 96")
e("  .amdhsa_accum_offset 128")
e("  .amdhsa_group_segment_fixed_size 0")
e("  .amdhsa_kernarg_size 80")
e("  .amdhsa_user_sgpr_count 2")
e("  .amdhsa_user_sgpr_kernarg_segment_ptr 1")
e("  .amdhsa_system_sgpr_workgroup_id_x 1")
e("  .amdhsa_float_denorm_mode_32 3")
e(".end_amdhsa_kernel")
open(sys.argv[1], "w").write("\n".join(x for x in out if x is not None) + "\n")
```

```python
import sys

NAME = "standalone__sequential_behavior_din__recsys"
OPT = dict(nt_hist=" nt", nt_mask=" nt", nt_out="", stamp=0, prio=1, mprio=3, lprio=1,
           p1=0, p2=3, q1=-2, q2=2, t2=2, t1=1, split=8, acc=0, mbar=0, sp0=13, pf=0, pfn=44, endwait=1, sharec=1, cw0=4, earlyc=1, exact=0, dsplit=0, e3=0, dist=3)
for a in sys.argv[2:]:
    k, v = a.split("=", 1)
    if k.startswith("nt_"):
        OPT[k] = (" " + v.replace("+", " ")) if v else ""
    else:
        OPT[k] = int(v)

out = []
def e(s=""):
    out.append(s)

NS = 3
BB = 0
W2A = 256
W2C = 320
B2B = 384
TB = 512
LIST = TB + 2048
RING = LIST + 16 * 256
RPW = NS * 2048 + 1024
MOFF = NS * 2048
PFB = RING + 16 * RPW
QB = PFB + 16384
CSTR = 272
CB = QB + 8192
LDS_BYTES = CB + 16 * CSTR
CFLAG = 448
assert LDS_BYTES <= 163840 and RING % 16 == 0

M, C, D3, W2, B2, Z, HB, HT, D2 = 0, 32, 48, 64, 72, 76, 92, 100, 108
SP = D2
ONE = 112
vA0, vA1 = 114, 115
vT = [116, 117, 118, 119]
vP0, vP1 = 120, 122
vDC0, vDC1 = 121, 123
vL, vML = 124, 125
vLane, vQ16 = 126, 127
vST = vML
MK = Z

def vr(b, n=1):
    return f"v{b}" if n == 1 else f"v[{b}:{b+n-1}]"

sT, sH, sMk, sW1, sB1, sW2, sB2, sO = 4, 6, 8, 10, 12, 14, 16, 18
sWave, sB = 20, 21
rH = 24
sRing, sList, sN, sNT = 56, 57, 58, 59
sC0, sC1, sC2, sC3 = 60, 62, 64, 66
sK1, sK2, sK3 = 69, 70, 71
sScale, sTmp, sTmp2 = 72, 74, 75
sBad, sDmy = 76, 78
STAMP0 = 84
sE0, sE1, sE2, sE3 = 88, 90, 92, 94

def stamp(i):
    if OPT["stamp"]:
        e(f"  s_memrealtime s[{STAMP0}:{STAMP0+1}]")
        e("  s_waitcnt lgkmcnt(0)")
        e(f"  v_writelane_b32 v{vST}, s{STAMP0}, {i}")
        if i in (6, 8):
            e(f"  s_memtime s[{STAMP0}:{STAMP0+1}]")
            e("  s_waitcnt lgkmcnt(0)")
            e(f"  v_writelane_b32 v{vST}, s{STAMP0}, {12 if i == 6 else 13}")

def prio(p):
    if OPT["prio"]:
        e(f"  s_setprio {p}")

def dma(pair, slot, hf, filler="  s_nop 0"):
    e(f"  s_add_u32 m0, s{sRing}, {slot*2048+hf*1024}")
    e(filler)
    e(f"  buffer_load_dwordx4 {vr(pair,2)}, s[{rH}:{rH+3}], 0 idxen offen{OPT['nt_hist']} lds")

hdr = open("cdna_kernels/" + NAME + ".s.ref").read().split("; Override launch")[0]
e(hdr.rstrip())
e(f"; @launch grid=(256,1,1) block=(1024,1,1) lds={LDS_BYTES}")
for line in """
 DIN local activation unit, one wave per batch row, 16 waves (rows) per workgroup.
   z = hist (Wa + Wc + diag(t) Wd) + t (Wb - Wc) + b1      (w1 = [Wa; Wb; Wc; Wd], t = target row)
   out = sum_l mask_l (sigmoid(z_l) . w2 + b2) hist_l
 Rows whose mask is zero contribute nothing and are never fetched: each wave compacts the indices of its active
 rows and gathers them, 16 rows per tile, into a three-slot LDS ring with LDS-DMA loads (padding rows read as zero).
 Start-up: every wave converts a 4-row slice of w1 into the shared operand images [P'|Wd'] and Q' (scaled by
 -log2 e); after one barrier it builds its own M' = P' + diag(t) Wd' with MFMAs against a [1|t] selector; four waves
 compute c' = b1' + Q'^T t for all 16 rows and publish it through an LDS counter.
 Tile: Z^T = M'^T H^T + c' (MFMA), exp2, +1 (one 32x32 MFMA against a unit outer product), rcp, bf16 pack,
 scores = sigma w2 + b2 (MFMA), out += scores H (MFMA on transposed LDS reads).
 Masks that are not exactly 0 or 1 take a second loop that multiplies the scores by the mask values.
""".strip("\n").split("\n"):
    e(";" + line)
e('.amdgcn_target "amdgcn-amd-amdhsa--gfx950"')
e(".text")
e(f".globl {NAME}_kernel")
e(".p2align 8")
e(f".type {NAME}_kernel,@function")
e(f"{NAME}_kernel:")
e("  s_cmp_ge_u32 s2, 256")
e("  s_cbranch_scc1 L_end")
stamp(0)
e("  s_load_dwordx16 s[4:19], s[0:1], 0")
if OPT["stamp"]:
    e("  s_load_dwordx2 s[86:87], s[0:1], 72")
prio(3)
X0 = W2
q_ = Z + 1
vMo, vWo, vWo2 = Z + 6, Z + 7, Z + 8
e(f"  v_lshrrev_b32 v{Z}, 6, v0")
e(f"  v_and_b32 v{vLane}, 63, v0")
e(f"  s_lshl_b32 s{sB}, s2, 4")
e(f"  v_readfirstlane_b32 s{sWave}, v{Z}")
e(f"  v_mov_b32 v{X0}, 0")
e(f"  v_mov_b32 v{X0+1}, 0")
e(f"  s_add_u32 s{sB}, s{sB}, s{sWave}")
e(f"  s_mul_i32 s{sTmp}, s{sB}, 400")
e(f"  s_mul_i32 s{sRing}, s{sWave}, {RPW}")
e(f"  v_lshl_add_u32 v{vMo}, v{vLane}, 3, s{sTmp}")
e(f"  v_and_b32 v{Z+2}, 32, v{vLane}")
e(f"  v_and_b32 v{Z+3}, 31, v{vLane}")
e(f"  s_lshl_b32 s{sTmp2}, s{sWave}, 9")
e(f"  v_lshlrev_b32 v{Z+2}, 9, v{Z+2}")
e(f"  s_add_u32 s{sK3}, s{sTmp2}, {24576-1024}")
e(f"  v_lshl_add_u32 v{vWo}, v{Z+3}, 4, s{sTmp2}")
e(f"  v_lshl_add_u32 v{vWo2}, v{Z+3}, 4, s{sK3}")
e(f"  s_bfm_b64 s[{sC0}:{sC0+1}], 50, 0")
e(f"  v_add_u32 v{vWo}, v{vWo}, v{Z+2}")
e(f"  v_sub_u32 v{vWo2}, v{vWo2}, v{Z+2}")
e(f"  s_add_u32 s{sRing}, s{sRing}, {RING}")
e(f"  s_add_u32 m0, s{sRing}, 4096")
e(f"  s_mov_b64 exec, s[{sC0}:{sC0+1}]")
e("  s_waitcnt lgkmcnt(0)")
stamp(1)
e(f"  global_load_dwordx2 {vr(X0,2)}, v{vMo}, s[{sMk}:{sMk+1}]{OPT['nt_mask']}")
e("  s_mov_b64 exec, -1")
if OPT["mbar"]:
    e("  s_barrier")
prio(2)
e(f"  global_load_lds_dwordx4 v{vWo}, s[{sW1}:{sW1+1}]")
e(f"  global_load_lds_dwordx4 v{vWo2}, s[{sW1}:{sW1+1}] offset:1024")
e(f"  v_lshrrev_b32 v{q_}, 4, v{vLane}")
if OPT["pf"]:
    e(f"  s_cmp_lt_u32 s2, {OPT['pf']}")
    e("  s_cbranch_scc0 L_nopf")
    e(f"  s_cmp_eq_u32 s{sWave}, 3")
    e("  s_cbranch_scc0 L_nopf")
    e("  s_getpc_b64 s[78:79]")
    e("L_pc:")
    e(f"  s_sub_u32 s78, s78, L_pc-{NAME}_kernel")
    e("  s_subb_u32 s79, s79, 0")
    e(f"  v_lshlrev_b32 v{M+28}, 7, v{vLane}")
    e(f"  s_bfm_b64 exec, {OPT['pfn']}, 0")
    e(f"  global_load_dword v{M+29}, v{M+28}, s[78:79]")
    e("  s_mov_b64 exec, -1")
    e("L_nopf:")
SB1, SB2 = M + 24, M + 25
SP0 = OPT["sp0"]
e(f"  s_sub_u32 s{sE2}, s{sWave}, {SP0}")
e(f"  s_cmp_gt_u32 s{sE2}, 2")
e("  s_cbranch_scc1 L_nosmall")
e(f"  s_cmp_eq_u32 s{sE2}, 1")
e("  s_cbranch_scc1 L_w14")
e(f"  s_cmp_eq_u32 s{sE2}, 2")
e("  s_cbranch_scc1 L_w15")
e(f"  v_mov_b32 v{SB1}, 0")
e(f"  v_lshlrev_b32 v{M+26}, 1, v{vLane}")
e(f"  global_load_short_d16_hi v{SB1}, v{M+26}, s[{sB1}:{sB1+1}]")
e("  s_branch L_nosmall")
e("L_w14:")
e(f"  s_lshl_b32 s{sTmp2}, s2, 11")
e(f"  v_lshl_add_u32 v{M+26}, v{vLane}, 4, s{sTmp2}")
e(f"  s_mov_b32 m0, {TB}")
e("  s_nop 0")
e(f"  global_load_lds_dwordx4 v{M+26}, s[{sT}:{sT+1}]")
e(f"  global_load_lds_dwordx4 v{M+26}, s[{sT}:{sT+1}] offset:1024")
e("  s_branch L_nosmall")
e("L_w15:")
e(f"  v_bfe_u32 v{M+26}, v{vLane}, 4, 1")
e(f"  v_lshlrev_b32 v{M+26}, 6, v{M+26}")
e(f"  v_bfe_u32 v{M+27}, v{vLane}, 1, 1")
e(f"  v_lshl_add_u32 v{M+26}, v{M+27}, 5, v{M+26}")
e(f"  v_bfe_u32 v{M+27}, v{vLane}, 2, 2")
e(f"  v_lshl_add_u32 v{M+26}, v{M+27}, 3, v{M+26}")
e(f"  v_and_b32 v{M+27}, 1, v{vLane}")
e(f"  v_lshl_add_u32 v{M+26}, v{M+27}, 2, v{M+26}")
e(f"  v_mov_b32 v{SB2}, 0")
e(f"  v_mov_b32 v{M+27}, 0")
e(f"  s_mov_b32 m0, {W2A}")
e(f"  global_load_short_d16_hi v{SB2}, v{M+27}, s[{sB2}:{sB2+1}]")
e(f"  s_bfm_b64 exec, 32, 0")
e(f"  global_load_lds_dword v{M+26}, s[{sW2}:{sW2+1}]")
e("  s_mov_b64 exec, -1")
e("L_nosmall:")
e(f"  s_lshl_b32 s{sList}, s{sWave}, 8")
e(f"  s_add_u32 s{sList}, s{sList}, {LIST}")
e(f"  v_mov_b32 v{M}, -1")
e(f"  v_lshl_add_u32 v{Z+3}, v{vLane}, 2, s{sList}")
e(f"  ds_write_b32 v{Z+3}, v{M}")
t0, t1, t2, t3, t4 = Z, q_, Z + 2, Z + 3, Z + 4
PFA, QWA, RWA = D3, D3 + 2, D3 + 3
e(f"  s_mul_i32 s{sTmp}, s{sB}, 25600")
e(f"  v_and_b32 v{t2}, 7, v{vLane}")
e(f"  s_add_u32 s{rH}, s{sH}, s{sTmp}")
e(f"  v_xor_b32 v{t2}, v{t2}, v{t1}")
e(f"  s_addc_u32 s{rH+1}, s{sH+1}, 0")
e(f"  v_lshlrev_b32 v{vDC0}, 4, v{t2}")
e(f"  s_or_b32 s{rH+1}, s{rH+1}, {128 << 16}")
e(f"  v_xor_b32 v{vDC1}, 64, v{vDC0}")
e(f"  s_mov_b32 s{rH+2}, 200")
e(f"  v_lshrrev_b32 v{t2}, 3, v{vLane}")
e(f"  s_mov_b32 s{rH+3}, 0x20000")
e(f"  v_add_u32 v{vL}, s{sList}, v{t2}")
vR = [Z + 11, Z + 12, Z + 13, Z + 14]
e(f"  v_lshlrev_b32 v{vR[0]}, 2, v{vLane}")
e(f"  s_mov_b32 s{sK1}, 0xffff")
for i in range(1, 4):
    e(f"  v_add_u32 v{vR[i]}, {i}, v{vR[0]}")
pos = [Z + 2, Z + 3, Z + 4, Z + 5]
prio(1)
vPA = D2
vTA, vQA = Z + 9, Z + 15
vM0, vM1 = D2 + 2, D2 + 3
S = []
S.append(f"  s_mov_b32 s{sK2}, 0xffff0000")
S.append(f"  s_mov_b32 s{sScale}, 0xbfb8aa3b")
S.append(f"  s_mov_b32 s{sScale+1}, 0xbfb8aa3b")
S.append(f"  s_lshr_b32 s{sE0}, s{sWave}, 3")
S.append(f"  s_and_b32 s{sE0+1}, s{sWave}, 1")
S.append(f"  s_bfe_u32 s{sE1}, s{sWave}, 0x20001")
S.append(f"  s_lshl_b32 s{sTmp}, s{sE0}, 11")
S.append(f"  s_lshl_b32 s{sK3}, s{sE0+1}, 10")
S.append(f"  s_add_u32 s{sTmp}, s{sTmp}, s{sK3}")
S.append(f"  s_lshl_b32 s{sK3}, s{sE1}, 8")
S.append(f"  s_add_u32 s{sTmp}, s{sTmp}, s{sK3}")
S.append(f"  s_add_u32 s{sTmp}, s{sTmp}, {PFB}")
S.append(f"  s_lshl_b32 s{sE0}, s{sE0}, 10")
S.append(f"  s_add_u32 s{sE0}, s{sE0}, s{sK3}")
S.append(f"  s_lshl_b32 s{sE0+1}, s{sE0+1}, 3")
S.append(f"  s_add_u32 s{sE0}, s{sE0}, s{sE0+1}")
S.append(f"  s_add_u32 s{sE0}, s{sE0}, {QB}")
S.append(f"  s_add_u32 s{sK3}, s{sRing}, 4096")
S.append(f"  s_lshl_b32 s{sE1}, s{sWave}, 7")
S.append(f"  s_add_u32 s{sE1}, s{sE1}, {TB}")
V = []
V.append(f"  v_and_b32 v{t0}, 15, v{vLane}")
V.append(f"  v_lshrrev_b32 v{t2}, 1, v{t0}")
V.append(f"  v_xor_b32 v{t2}, v{t2}, v{t1}")
V.append(f"  v_lshlrev_b32 v{t2}, 4, v{t2}")
V.append(f"  v_lshl_add_u32 v{t2}, v{t0}, 7, v{t2}")
V.append(f"  v_add_u32 v{vA0}, s{sRing}, v{t2}")
V.append(f"  v_xor_b32 v{vA1}, 64, v{vA0}")
V.append(f"  v_lshrrev_b32 v{t2}, 2, v{t0}")
V.append(f"  v_and_b32 v{RWA}, 3, v{vLane}")
V.append(f"  v_cmp_eq_u32_e64 s[{sC1}:{sC1+1}], v{t2}, v{t1}")
V.append(f"  v_lshlrev_b32 v{RWA}, 3, v{RWA}")
V.append(f"  v_lshl_add_u32 v{RWA}, v{t2}, 7, v{RWA}")
V.append(f"  v_lshl_add_u32 v{RWA}, v{t1}, 5, v{RWA}")
V.append(f"  v_lshl_add_u32 v{t2}, v{t1}, 2, v{t2}")
V.append(f"  v_lshrrev_b32 v{t3}, 1, v{t2}")
V.append(f"  v_bfe_u32 v{t4}, v{vLane}, 1, 1")
V.append(f"  v_xor_b32 v{t3}, v{t3}, v{t4}")
V.append(f"  v_lshlrev_b32 v{t3}, 4, v{t3}")
V.append(f"  v_lshl_add_u32 v{t3}, v{t2}, 7, v{t3}")
V.append(f"  v_and_b32 v{t2}, 1, v{vLane}")
V.append(f"  v_lshl_add_u32 v{t3}, v{t2}, 3, v{t3}")
V.append(f"  v_lshlrev_b32 v{vQ16}, 4, v{t1}")
V.append(f"  v_add_u32 v{vT[0]}, s{sRing}, v{t3}")
V.append(f"  v_lshlrev_b32 v{t0}, 4, v{t0}")
for d in range(1, 4):
    V.append(f"  v_xor_b32 v{vT[d]}, {32*d}, v{vT[0]}")
for i in range(max(len(S), len(V))):
    if i < len(V): e(V[i])
    if i < len(S): e(S[i])
e(f"  v_lshl_add_u32 v{PFA}, v{t1}, 12, v{t0}")
e(f"  v_lshl_add_u32 v{QWA}, v{t1}, 11, v{t0}")
e(f"  v_add_u32 v{RWA}, s{sK3}, v{RWA}")
e(f"  v_add_u32 v{PFA}, s{sTmp}, v{PFA}")
e(f"  v_add_u32 v{QWA}, s{sE0}, v{QWA}")
e(f"  v_add_u32 v{vTA}, s{sE1}, v{vQ16}")
e(f"  v_lshlrev_b32 v{vPA}, 4, v{vLane}")
e(f"  v_add_u32 v{vQA}, {QB}, v{vPA}")
e(f"  v_add_u32 v{vPA}, {PFB}, v{vPA}")
e(f"  v_lshlrev_b32 v{t2}, 4, v{t2}")
e(f"  v_mov_b32 v{t3}, 0xffff")
e(f"  v_lshlrev_b32 v{t3}, v{t2}, v{t3}")
e(f"  v_cmp_gt_u32 vcc, 32, v{vLane}")
e(f"  v_cndmask_b32_e64 v{t3}, 0, v{t3}, s[{sC1}:{sC1+1}]")
e(f"  v_cmp_eq_u32_e64 s[{sC1}:{sC1+1}], 0, v{t4}")
e(f"  v_mov_b32 v{t0}, 0x3f80")
e(f"  v_mov_b32 v{pos[0]}, s{sList}")
e(f"  v_cndmask_b32 v{ONE}, 0, v{t0}, vcc")
e(f"  v_mov_b32 v{ONE+1}, 0")
e(f"  v_cndmask_b32_e64 v{vM0}, 0, v{t3}, s[{sC1}:{sC1+1}]")
e(f"  v_cndmask_b32_e64 v{vM1}, v{t3}, 0, s[{sC1}:{sC1+1}]")
AD = HB + 4
e(f"  s_mov_b32 s{sTmp}, 0x3f803f80")
e(f"  v_and_b32 v{AD}, s{sTmp}, v{vM0}")
e(f"  v_and_b32 v{AD+1}, s{sTmp}, v{vM1}")
if OPT["exact"]:
    e(f"  s_cmp_gt_u32 s{sE2}, 2")
    e("  s_cbranch_scc1 L_mw2")
    e(f"  s_cmp_eq_u32 s{sE2}, 0")
    e("  s_cbranch_scc1 L_mw3")
    e("  s_waitcnt vmcnt(4)")
    e("  s_branch L_mwd")
    e("L_mw3:")
    e("  s_waitcnt vmcnt(3)")
    e("  s_branch L_mwd")
    e("L_mw2:")
e("  s_waitcnt vmcnt(2)")
if OPT["exact"]:
    e("L_mwd:")
stamp(2)
prio(3)
e(f"  v_cmp_ne_u16_e64 s[{sC0}:{sC0+1}], 0, v{X0}")
e(f"  v_cmp_lt_u32_e64 s[{sC1}:{sC1+1}], s{sK1}, v{X0}")
e(f"  v_cmp_ne_u16_e64 s[{sC2}:{sC2+1}], 0, v{X0+1}")
e(f"  v_cmp_lt_u32_e64 s[{sC3}:{sC3+1}], s{sK1}, v{X0+1}")
e(f"  v_mbcnt_lo_u32_b32 v{pos[0]}, s{sC0}, v{pos[0]}")
e(f"  v_mbcnt_hi_u32_b32 v{pos[0]}, s{sC0+1}, v{pos[0]}")
for c in (sC1, sC2, sC3):
    e(f"  v_mbcnt_lo_u32_b32 v{pos[0]}, s{c}, v{pos[0]}")
    e(f"  v_mbcnt_hi_u32_b32 v{pos[0]}, s{c+1}, v{pos[0]}")
e(f"  s_mov_b64 exec, s[{sC0}:{sC0+1}]")
e(f"  ds_write_b8 v{pos[0]}, v{vR[0]}")
e("  s_mov_b64 exec, -1")
e(f"  v_addc_co_u32_e64 v{pos[1]}, s[{sDmy}:{sDmy+1}], 0, v{pos[0]}, s[{sC0}:{sC0+1}]")
e(f"  v_addc_co_u32_e64 v{pos[2]}, s[{sDmy}:{sDmy+1}], 0, v{pos[1]}, s[{sC1}:{sC1+1}]")
e(f"  v_addc_co_u32_e64 v{pos[3]}, s[{sDmy}:{sDmy+1}], 0, v{pos[2]}, s[{sC2}:{sC2+1}]")
for i, c in ((1, sC1), (2, sC2), (3, sC3)):
    e(f"  s_mov_b64 exec, s[{c}:{c+1}]")
    e(f"  ds_write_b8 v{pos[i]}, v{vR[i]}")
e("  s_mov_b64 exec, -1")
e(f"  ds_read_u8 v{vP0}, v{vL}")
e(f"  ds_read_u8 v{vP1}, v{vL} offset:8")
if OPT["e3"]:
    e(f"  ds_read_u8 v{M+8}, v{vL} offset:16")
e(f"  s_bcnt1_i32_b64 s{sN}, s[{sC0}:{sC0+1}]")
e(f"  s_bcnt1_i32_b64 s{sK3}, s[{sC1}:{sC1+1}]")
e(f"  s_add_u32 s{sN}, s{sN}, s{sK3}")
e(f"  s_bcnt1_i32_b64 s{sK3}, s[{sC2}:{sC2+1}]")
e(f"  s_add_u32 s{sN}, s{sN}, s{sK3}")
e(f"  s_bcnt1_i32_b64 s{sK3}, s[{sC3}:{sC3+1}]")
e(f"  s_add_u32 s{sN}, s{sN}, s{sK3}")
e(f"  s_waitcnt lgkmcnt({2 if OPT['e3'] else 1})")
dma(vP0, 0, 0)
e(f"  s_waitcnt lgkmcnt({1 if OPT['e3'] else 0})")
dma(vP1, 0, 1)
if OPT["e3"]:
    if OPT["e3"] > 1:
        e(f"  s_cmp_lt_u32 s{sWave}, {OPT['split']}")
        e(f"  s_cbranch_scc{0 if OPT['e3'] == 2 else 1} L_noe3")
    e("  s_waitcnt lgkmcnt(0)")
    dma(M + 8, 1, 0, f"  v_mov_b32 v{M+9}, v{vDC0}")
    if OPT["e3"] > 1:
        e("  s_waitcnt vmcnt(3)")
        e("  s_branch L_e3d")
        e("L_noe3:")
        e("  s_waitcnt vmcnt(2)")
        e("L_e3d:")
    else:
        e("  s_waitcnt vmcnt(3)")
stamp(3)
prio(2)
RW = M + 16
if not OPT["e3"]:
    e("  s_waitcnt vmcnt(2)")
stamp(4)
for m in range(4):
    e(f"  ds_read_b64_tr_b16 {vr(RW+2*m,2)}, v{RWA} offset:{512*m}")
e(f"  ds_read_u8 v{vP0}, v{vL} offset:16")
e(f"  ds_read_u8 v{vP1}, v{vL} offset:24")
e(f"  s_add_u32 s{sNT}, s{sN}, 15")
e(f"  s_lshr_b32 s{sNT}, s{sNT}, 4")
e(f"  s_movk_i32 s{sTmp}, 0x3f80")
e(f"  v_cmp_eq_u16_e64 s[{sE0}:{sE0+1}], s{sTmp}, v{X0}")
e(f"  v_cmp_eq_u16_e64 s[{sE2}:{sE2+1}], s{sTmp}, v{X0+1}")
e(f"  v_cmp_eq_u16_sdwa s[{sE1}:{sE1+1}], v{X0}, s{sTmp} src0_sel:WORD_1 src1_sel:WORD_0")
e(f"  v_cmp_eq_u16_sdwa s[{sE3}:{sE3+1}], v{X0+1}, s{sTmp} src0_sel:WORD_1 src1_sel:WORD_0")
e(f"  s_xor_b64 s[{sBad}:{sBad+1}], s[{sE0}:{sE0+1}], s[{sC0}:{sC0+1}]")
e(f"  s_xor_b64 s[{sE2}:{sE2+1}], s[{sE2}:{sE2+1}], s[{sC2}:{sC2+1}]")
e(f"  s_or_b64 s[{sBad}:{sBad+1}], s[{sBad}:{sBad+1}], s[{sE2}:{sE2+1}]")
for a_, b_ in ((sE1, sC1), (sE3, sC3)):
    e(f"  s_xor_b64 s[{a_}:{a_+1}], s[{a_}:{a_+1}], s[{b_}:{b_+1}]")
    e(f"  s_or_b64 s[{sBad}:{sBad+1}], s[{sBad}:{sBad+1}], s[{a_}:{a_+1}]")
e(f"  s_cmp_lg_u64 s[{sBad}:{sBad+1}], 0")
e("  s_cbranch_scc0 L_binmask")
e(f"  s_add_u32 s{sTmp}, s{sRing}, {MOFF}")
for i in range(4):
    e(f"  v_mov_b32 v{M+i}, 0")
e(f"  v_lshl_add_u32 v{Z+6}, v{vLane}, 4, s{sTmp}")
e(f"  ds_write_b128 v{Z+6}, {vr(M,4)}")
e(f"  v_add_u32 v{vML}, s{sTmp}, v{vQ16}")
e(f"  v_lshlrev_b32 v{M+4}, 16, v{X0}")
e(f"  v_and_b32 v{M+5}, s{sK2}, v{X0}")
e(f"  v_lshlrev_b32 v{M+6}, 16, v{X0+1}")
e(f"  v_and_b32 v{M+7}, s{sK2}, v{X0+1}")
for i in range(4):
    e(f"  v_subrev_u32 v{pos[i]}, s{sList}, v{pos[i]}")
    e(f"  v_lshl_add_u32 v{pos[i]}, v{pos[i]}, 2, s{sTmp}")
for i, c in enumerate((sC0, sC1, sC2, sC3)):
    e(f"  s_mov_b64 exec, s[{c}:{c+1}]")
    e(f"  ds_write_b32 v{pos[i]}, v{M+4+i}")
e("  s_mov_b64 exec, -1")
e("L_binmask:")
W1R = M
Wa, Wc, Wd, Wb_ = W1R, W1R + 4, W1R + 8, W1R + 12
e("  s_waitcnt lgkmcnt(0)")
for m in range(4):
    for r in range(2):
        e(f"  v_lshlrev_b32 v{W1R+4*m+2*r}, 16, v{RW+2*m+r}")
        e(f"  v_and_b32 v{W1R+4*m+2*r+1}, s{sK2}, v{RW+2*m+r}")
for p in range(2):
    e(f"  v_pk_add_f32 {vr(Wa+2*p,2)}, {vr(Wa+2*p,2)}, {vr(Wc+2*p,2)}")
for p in range(2):
    e(f"  v_pk_add_f32 {vr(Wb_+2*p,2)}, {vr(Wb_+2*p,2)}, {vr(Wc+2*p,2)} neg_lo:[0,1] neg_hi:[0,1]")
for base in (Wa, Wd, Wb_):
    for p in range(2):
        e(f"  v_pk_mul_f32 {vr(base+2*p,2)}, {vr(base+2*p,2)}, s[{sScale}:{sScale+1}]")
e(f"  v_cvt_pk_bf16_f32 v{RW+2}, v{Wd}, v{Wd+1}")
e(f"  v_cvt_pk_bf16_f32 v{RW+3}, v{Wd+2}, v{Wd+3}")
e(f"  v_cvt_pk_bf16_f32 v{RW}, v{Wa}, v{Wa+1}")
e(f"  v_cvt_pk_bf16_f32 v{RW+1}, v{Wa+2}, v{Wa+3}")
e(f"  v_cvt_pk_bf16_f32 v{RW+6}, v{Wb_}, v{Wb_+1}")
e(f"  v_cvt_pk_bf16_f32 v{RW+7}, v{Wb_+2}, v{Wb_+3}")
e(f"  ds_write_b128 v{PFA}, {vr(RW,4)}")
e(f"  ds_write_b64 v{QWA}, {vr(RW+6,2)}")
e(f"  s_cmp_eq_u32 s{sWave}, {SP0}")
e("  s_cbranch_scc0 L_nb1")
e(f"  v_mul_f32 v{SB1}, s{sScale}, v{SB1}")
e(f"  v_lshlrev_b32 v{M+26}, 2, v{vLane}")
e(f"  ds_write_b32 v{M+26}, v{SB1} offset:{BB}")
e("L_nb1:")
e(f"  s_cmp_eq_u32 s{sWave}, {SP0+2}")
e("  s_cbranch_scc0 L_nosmall2")
e(f"  v_and_b32 v{M+26}, 15, v{vLane}")
e(f"  v_lshlrev_b32 v{M+26}, 2, v{M+26}")
e(f"  ds_write_b32 v{M+26}, v{SB2} offset:{B2B}")
if OPT["sharec"]:
    e(f"  v_mov_b32 v{M+26}, 0")
    e(f"  ds_write_b32 v{M+26}, v{M+26} offset:{CFLAG}")
e("L_nosmall2:")
e("  s_waitcnt lgkmcnt(0)")
e("  s_barrier")
stamp(5)
prio(OPT["mprio"])
e(f"  ds_read_b128 {vr(HT,4)}, v{vTA}")
e(f"  ds_read_b128 {vr(HT+4,4)}, v{vTA} offset:64")
if not OPT["sharec"]:
    for tau in range(4):
        e(f"  ds_read_b128 {vr(C+4*tau,4)}, v{vQ16} offset:{BB+64*tau}")
    for g in range(8):
        e(f"  ds_read_b128 {vr(M+4*g,4)}, v{vQA} offset:{1024*g}")
else:
    e(f"  s_sub_u32 s{sE2}, s{sWave}, {OPT['cw0']}")
    e(f"  s_cmp_lt_u32 s{sE2}, 4")
    e("  s_cbranch_scc0 L_noc")
    e(f"  v_and_b32 v{M}, 15, v{vLane}")
    e(f"  s_lshl_b32 s{sTmp}, s{sE2}, 11")
    e(f"  v_lshl_add_u32 v{M+1}, v{M}, 7, v{vQ16}")
    e(f"  v_add_u32 v{M+2}, s{sTmp}, v{vQA}")
    e(f"  s_lshl_b32 s{sTmp}, s{sE2}, 6")
    e(f"  v_add_u32 v{M+3}, s{sTmp}, v{vQ16}")
    e(f"  ds_read_b128 {vr(M+4,4)}, v{M+1} offset:{TB}")
    e(f"  ds_read_b128 {vr(M+8,4)}, v{M+1} offset:{TB+64}")
    e(f"  ds_read_b128 {vr(M+12,4)}, v{M+2}")
    e(f"  ds_read_b128 {vr(M+16,4)}, v{M+2} offset:1024")
    e(f"  ds_read_b128 {vr(M+20,4)}, v{M+3} offset:{BB}")
    e(f"  v_mul_u32_u24 v{M}, {CSTR}, v{M}")
    e(f"  v_add_u32 v{M}, v{M}, v{M+3}")
    e(f"  v_add_u32 v{M}, {CB}, v{M}")
    e(f"  v_mov_b32 v{M+1}, 1")
    e(f"  v_mov_b32 v{M+2}, 0")
    e("  s_waitcnt lgkmcnt(0)")
    e(f"  v_mfma_f32_16x16x32_bf16 {vr(M+20,4)}, {vr(M+12,4)}, {vr(M+4,4)}, {vr(M+20,4)}")
    e(f"  v_mfma_f32_16x16x32_bf16 {vr(M+20,4)}, {vr(M+16,4)}, {vr(M+8,4)}, {vr(M+20,4)}")
    e("  s_nop 7")
    e(f"  ds_write_b128 v{M}, {vr(M+20,4)}")
    e("  s_waitcnt lgkmcnt(0)")
    e("  s_mov_b64 exec, 1")
    e(f"  ds_add_u32 v{M+2}, v{M+1} offset:{CFLAG}")
    e("  s_mov_b64 exec, -1")
    e("L_noc:")
nlab = [0]
def cond_block(old_here, young_here, body):
    if not (old_here or young_here):
        return
    nlab[0] += 1
    lab_ = nlab[0]
    if old_here != young_here:
        e(f"  s_cmp_lt_u32 s{sWave}, {OPT['split']}")
        e(f"  s_cbranch_scc{0 if old_here else 1} L_rd{lab_}")
    body()
    if old_here != young_here:
        e(f"L_rd{lab_}:")
def idx2():
    e(f"  ds_read_u8 v{vP0}, v{vL} offset:32")
    e(f"  ds_read_u8 v{vP1}, v{vL} offset:40")
def ring_dma(posn):
    def t1():
        if OPT["e3"] == 0:
            dma(vP0, 1, 0)
        elif OPT["e3"] > 1:
            nlab[0] += 1
            l_ = nlab[0]
            e(f"  s_cmp_lt_u32 s{sWave}, {OPT['split']}")
            e(f"  s_cbranch_scc{1 if OPT['e3'] == 2 else 0} L_e3s{l_}")
            dma(vP0, 1, 0)
            e(f"L_e3s{l_}:")
        dma(vP1, 1, 1)
        if posn != -2:
            idx2()
    def t2():
        e("  s_waitcnt lgkmcnt(0)")
        dma(vP0, 2, 0)
        if OPT["dist"] != 25:
            dma(vP1, 2, 1)
    if posn == -1:
        cond_block(OPT["p1"] == -2, OPT["q1"] == -2, idx2)
    cond_block(OPT["p1"] == posn, OPT["q1"] == posn, t1)
    if OPT["dist"] in (3, 25):
        cond_block(OPT["p2"] == posn, OPT["q2"] == posn, t2)
B0 = [D3 + 4*i for i in range(4)]
B1 = [W2, W2 + 4, W2 + 8, HB]
BUFS = [B0, B1]
def mread(g):
    s, h = g >> 1, g & 1
    for tau in range(4):
        e(f"  ds_read_b128 {vr(BUFS[g&1][tau],4)}, v{vPA} offset:{tau*4096+s*2048+h*1024}")
ring_dma(-2)
if not OPT["sharec"]:
    for g in range(8):
        e(f"  s_waitcnt lgkmcnt({7-g})")
        tau, s = g >> 1, g & 1
        e(f"  v_mfma_f32_16x16x32_bf16 {vr(C+4*tau,4)}, {vr(M+4*g,4)}, {vr(HT+4*s,4)}, {vr(C+4*tau,4)}")
ring_dma(-1)
mread(0)
DT = [Z, Z + 4, Z + 8, Z + 12]
if OPT["sharec"]:
    e("  s_waitcnt lgkmcnt(4)")
e(f"  v_and_b32 v{AD+2}, v{HT}, v{vM0}")
e(f"  v_and_b32 v{AD+3}, v{HT+1}, v{vM1}")
for g in range(4):
    s, h = g >> 1, g & 1
    if g < 3:
        mread(g + 1)
    e(f"  s_waitcnt lgkmcnt({4 if g < 3 else 0})")
    for tau in range(4):
        e(f"  v_mfma_f32_16x16x32_bf16 {vr(DT[tau],4)}, {vr(AD,4)}, {vr(BUFS[g&1][tau],4)}, 0")
    if g < 3:
        s2, h2 = (g + 1) >> 1, (g + 1) & 1
        e(f"  v_and_b32 v{AD+2}, v{HT+4*s2+2*h2}, v{vM0}")
        e(f"  v_and_b32 v{AD+3}, v{HT+4*s2+2*h2+1}, v{vM1}")
        e("  s_nop 2")
    elif OPT["sharec"] and OPT["earlyc"]:
        e(f"  v_mov_b32 v{AD}, 0")
        e(f"  s_mul_i32 s{sTmp2}, s{sWave}, {CSTR}")
        e(f"  ds_read_b32 v{AD+1}, v{AD} offset:{CFLAG}")
        e(f"  ds_read_b128 {vr(W2,4)}, v{vQ16} offset:{W2A}")
        e(f"  ds_read_b128 {vr(W2+4,4)}, v{vQ16} offset:{W2C}")
        e(f"  ds_read_b128 {vr(B2,4)}, v{vQ16} offset:{B2B}")
        e(f"  s_add_u32 s{sTmp2}, s{sTmp2}, {CB}")
        e(f"  v_add_u32 v{AD+2}, s{sTmp2}, v{vQ16}")
    else:
        e("  s_nop 4")
    for tau in range(4):
        for p in range(2):
            e(f"  v_cvt_pk_bf16_f32 v{M+8*tau+4*s+2*h+p}, v{DT[tau]+2*p}, v{DT[tau]+2*p+1}")
    ring_dma(g)
if OPT["sharec"] and OPT["earlyc"]:
    e("  s_waitcnt lgkmcnt(3)")
    e("L_cpoll:")
    e(f"  v_readfirstlane_b32 s{sTmp}, v{AD+1}")
    e(f"  s_cmp_ge_u32 s{sTmp}, 4")
    e("  s_cbranch_scc1 L_cready")
    e(f"  ds_read_b32 v{AD+1}, v{AD} offset:{CFLAG}")
    e("  s_waitcnt lgkmcnt(0)")
    e("  s_branch L_cpoll")
    e("L_cready:")
    for tau in range(4):
        e(f"  ds_read_b128 {vr(C+4*tau,4)}, v{AD+2} offset:{64*tau}")
else:
    if OPT["sharec"]:
        e(f"  v_mov_b32 v{HB}, 0")
        e(f"  s_mul_i32 s{sTmp}, s{sWave}, {CSTR}")
        e(f"  s_add_u32 s{sTmp}, s{sTmp}, {CB}")
        e(f"  v_add_u32 v{HB+1}, s{sTmp}, v{vQ16}")
        e("L_cpoll:")
        e(f"  ds_read_b32 v{HB+2}, v{HB} offset:{CFLAG}")
        e("  s_waitcnt lgkmcnt(0)")
        e(f"  v_readfirstlane_b32 s{sTmp}, v{HB+2}")
        e(f"  s_cmp_lt_u32 s{sTmp}, 4")
        e("  s_cbranch_scc1 L_cpoll")
        for tau in range(4):
            e(f"  ds_read_b128 {vr(C+4*tau,4)}, v{HB+1} offset:{64*tau}")
    e(f"  ds_read_b128 {vr(W2,4)}, v{vQ16} offset:{W2A}")
    e(f"  ds_read_b128 {vr(W2+4,4)}, v{vQ16} offset:{W2C}")
    e(f"  ds_read_b128 {vr(B2,4)}, v{vQ16} offset:{B2B}")
ring_dma(4)
e(f"  s_mov_b32 s{sC0}, 0xffff0000")
e(f"  s_mov_b32 s{sC0+1}, 0")
e(f"  s_mov_b32 s{sC1}, 0")
e(f"  s_mov_b32 s{sC1+1}, 0xffff")
e(f"  s_mov_b32 s{sC2}, 0")
e(f"  s_mov_b32 s{sC2+1}, 0xffff0000")
e(f"  s_lshl_b32 s{sE3}, s{sB}, 7")
e(f"  v_mov_b32 v{D2+2}, 0")
e(f"  v_mov_b32 v{D2+3}, 0")
e(f"  v_add_u32 v{vL}, {32 if OPT['dist'] == 25 else 16*OPT['dist']}, v{vL}")
e("  s_nop 0")
e(f"  v_mfma_f32_32x32x8_bf16 {vr(D3,16)}, {vr(D2+2,2)}, {vr(D2+2,2)}, 0")
e("  s_waitcnt lgkmcnt(0)")
stamp(6)
if OPT["stamp"]:
    e(f"  s_waitcnt vmcnt(4)")
    stamp(7)
if OPT["acc"]:
    e("  s_mov_b32 s44, 0")
    e("  s_mov_b32 s45, 0")
prio(2)
e(f"  s_cmp_eq_u32 s{sNT}, 0")
e("  s_cbranch_scc1 L_out")
e(f"  s_cmp_lg_u64 s[{sBad}:{sBad+1}], 0")
e("  s_cbranch_scc1 L_gen0")

lab = [0]
tails = []
D25 = OPT["dist"] == 25
DIST = 3 if D25 else OPT["dist"]
def tile(slot, general, lab_exit):
    so = slot * 2048
    sd_ = ((slot + DIST) % NS) * 2048
    lab[0] += 1
    k = lab[0]
    if OPT["acc"]:
        e("  s_memtime s[40:41]")
        e("  s_waitcnt lgkmcnt(0)")
    e(f"  s_cmp_ge_u32 s{sNT}, {DIST}")
    e(f"  s_cbranch_scc0 L_tw{k}")
    e(f"  s_waitcnt vmcnt({3 if D25 else 2*(DIST-1)})")
    e(f"L_aw{k}:")
    if OPT["acc"]:
        e("  s_memtime s[42:43]")
        e("  s_waitcnt lgkmcnt(0)")
        e("  s_sub_u32 s40, s42, s40")
        e("  s_add_u32 s44, s44, s40")
    tails.append(k)
    e(f"  ds_read_b128 {vr(HB,4)}, v{vA0} offset:{so}")
    e(f"  ds_read_b128 {vr(HB+4,4)}, v{vA1} offset:{so}")
    for d in range(4):
        e(f"  ds_read_b64_tr_b16 {vr(HT+2*d,2)}, v{vT[d]} offset:{so}")
    if D25:
        e(f"  ds_read_u8 v{vP0}, v{vL} offset:{16*slot+16}")
        e(f"  ds_read_u8 v{vP1}, v{vL} offset:{16*slot+8}")
    else:
        e(f"  ds_read_u8 v{vP0}, v{vL} offset:{16*slot}")
        e(f"  ds_read_u8 v{vP1}, v{vL} offset:{16*slot+8}")
    nrd = 8
    if OPT["prio"] and OPT["lprio"]:
        e(f"  s_cmp_gt_u32 s{sNT}, {OPT['t2']}")
        e(f"  s_cbranch_scc1 L_p{k}")
        e(f"  s_setprio 1")
        e(f"  s_cmp_gt_u32 s{sNT}, {OPT['t1']}")
        e(f"  s_cbranch_scc1 L_p{k}")
        e(f"  s_setprio 0")
        e(f"L_p{k}:")
    e(f"  s_waitcnt lgkmcnt({nrd-1})")
    for tau in range(4):
        e(f"  v_mfma_f32_16x16x32_bf16 {vr(Z+4*tau,4)}, {vr(M+8*tau,4)}, {vr(HB,4)}, {vr(C+4*tau,4)}")
    e(f"  s_waitcnt lgkmcnt({nrd-2})")
    for tau in range(4):
        e(f"  v_mfma_f32_16x16x32_bf16 {vr(Z+4*tau,4)}, {vr(M+8*tau+4,4)}, {vr(HB+4,4)}, {vr(Z+4*tau,4)}")
    e("  s_nop 4")
    for i in range(16):
        e(f"  v_exp_f32 v{Z+i}, v{Z+i}")
    e("  s_nop 1")
    e(f"  v_mfma_f32_32x32x8_bf16 {vr(Z,16)}, {vr(ONE,2)}, {vr(ONE,2)}, {vr(Z,16)}")
    if OPT["dsplit"]:
        e("  s_waitcnt lgkmcnt(0)")
        e(f"  s_cmp_gt_u32 s{sNT}, {NS}")
        e(f"  s_cbranch_scc0 L_nh{k}")
        e(f"  s_add_u32 m0, s{sRing}, {so}")
        e("  s_nop 0")
        e(f"  buffer_load_dwordx4 {vr(vP0,2)}, s[{rH}:{rH+3}], 0 idxen offen{OPT['nt_hist']} lds")
        e(f"L_nh{k}:")
        e("  s_nop 8")
    else:
        e("  s_nop 11")
    for i in range(16):
        e(f"  v_rcp_f32 v{Z+i}, v{Z+i}")
    for i in range(8):
        e(f"  v_cvt_pk_bf16_f32 v{HB+i}, v{Z+2*i}, v{Z+2*i+1}")
    if general:
        e(f"  ds_read_b128 {vr(MK,4)}, v{vML} offset:{64*slot}")
    else:
        e("  s_nop 0")
    e(f"  v_mfma_f32_16x16x32_bf16 {vr(D2,4)}, {vr(HB,4)}, {vr(W2,4)}, {vr(B2,4)}")
    e(f"  v_mfma_f32_16x16x32_bf16 {vr(D2,4)}, {vr(HB+4,4)}, {vr(W2+4,4)}, {vr(D2,4)}")
    if slot == NS - 1 and general:
        e(f"  v_add_u32 v{vML}, {64*NS}, v{vML}")
    e("  s_nop 7")
    e("  s_waitcnt lgkmcnt(0)")
    if general:
        for i in range(4):
            e(f"  v_mul_f32 v{D2+i}, v{MK+i}, v{D2+i}")
    e(f"  v_cvt_pk_bf16_f32 v{SP}, v{D2}, v{D2+1}")
    e(f"  v_cvt_pk_bf16_f32 v{SP+1}, v{D2+2}, v{D2+3}")
    e(f"  s_cmp_gt_u32 s{sNT}, {2 if D25 else DIST}")
    e("  s_nop 0")
    for d in range(4):
        e(f"  v_mfma_f32_16x16x16_bf16 {vr(D3+4*d,4)}, {vr(SP,2)}, {vr(HT+2*d,2)}, {vr(D3+4*d,4)}")
    if OPT["acc"]:
        e("  s_memtime s[40:41]")
        e("  s_waitcnt lgkmcnt(0)")
    e(f"  s_cbranch_scc0 L_nd{k}")
    if D25:
        e(f"  s_add_u32 m0, s{sRing}, {((slot + 2) % NS) * 2048 + 1024}")
        e(f"  s_cmp_gt_u32 s{sNT}, 3")
        e(f"  buffer_load_dwordx4 {vr(vP1,2)}, s[{rH}:{rH+3}], 0 idxen offen{OPT['nt_hist']} lds")
        e(f"  s_cbranch_scc0 L_nd{k}")
        e(f"  s_add_u32 m0, s{sRing}, {so}")
        e("  s_nop 0")
        e(f"  buffer_load_dwordx4 {vr(vP0,2)}, s[{rH}:{rH+3}], 0 idxen offen{OPT['nt_hist']} lds")
    elif not OPT["dsplit"]:
        e(f"  s_add_u32 m0, s{sRing}, {sd_}")
        e("  s_nop 0")
        e(f"  buffer_load_dwordx4 {vr(vP0,2)}, s[{rH}:{rH+3}], 0 idxen offen{OPT['nt_hist']} lds")
    if not D25:
        e(f"  s_add_u32 m0, s{sRing}, {sd_+1024}")
        e("  s_nop 0")
        e(f"  buffer_load_dwordx4 {vr(vP1,2)}, s[{rH}:{rH+3}], 0 idxen offen{OPT['nt_hist']} lds")
    e(f"L_nd{k}:")
    if OPT["acc"]:
        e("  s_memtime s[42:43]")
        e("  s_waitcnt lgkmcnt(0)")
        e("  s_sub_u32 s40, s42, s40")
        e("  s_add_u32 s45, s45, s40")
    if slot == NS - 1:
        e(f"  v_add_u32 v{vL}, {16*NS}, v{vL}")
    e(f"  s_sub_u32 s{sNT}, s{sNT}, 1")
    e(f"  s_cmp_eq_u32 s{sNT}, 0")
    e(f"  s_cbranch_scc1 {lab_exit}")

e("L_bin0:")
for slot in range(NS):
    tile(slot, False, "L_out")
e("  s_branch L_bin0")
e("L_gen0:")
for slot in range(NS):
    tile(slot, True, "L_out")
e("  s_branch L_gen0")
for k in tails:
    e(f"L_tw{k}:")
    for r in range(DIST - 1, 1, -1):
        e(f"  s_cmp_eq_u32 s{sNT}, {r}")
        e(f"  s_cbranch_scc0 L_tw{k}_{r}")
        e(f"  s_waitcnt vmcnt({2*(r-1)})")
        e(f"  s_branch L_aw{k}")
        e(f"L_tw{k}_{r}:")
    e("  s_waitcnt vmcnt(0)")
    e(f"  s_branch L_aw{k}")

e("L_out:")
stamp(8)
e("  s_nop 7")
e(f"  v_lshl_add_u32 v{Z}, v{vLane}, 1, s{sE3}")
e(f"  v_cndmask_b32_e64 v{Z+1}, v{D3}, v{D3+4}, s[{sC0}:{sC0+1}]")
e(f"  v_cndmask_b32_e64 v{Z+1}, v{Z+1}, v{D3+8}, s[{sC1}:{sC1+1}]")
e(f"  v_cndmask_b32_e64 v{Z+1}, v{Z+1}, v{D3+12}, s[{sC2}:{sC2+1}]")
e(f"  v_cvt_pk_bf16_f32 v{Z+1}, v{Z+1}, v{Z+1}")
e(f"  global_store_short v{Z}, v{Z+1}, s[{sO}:{sO+1}]{OPT['nt_out']}")
if OPT["endwait"] or OPT["stamp"]:
    e("  s_waitcnt vmcnt(0)")
if OPT["stamp"]:
    stamp(9)
    e(f"  s_getreg_b32 s{STAMP0}, hwreg(HW_REG_XCC_ID)")
    e(f"  v_writelane_b32 v{vST}, s{STAMP0}, 10")
    e(f"  v_writelane_b32 v{vST}, s{sN}, 11")
    if OPT["acc"]:
        e(f"  v_writelane_b32 v{vST}, s44, 14")
        e(f"  v_writelane_b32 v{vST}, s45, 15")
    e(f"  s_lshl_b32 s{sTmp}, s{sB}, 6")
    e(f"  s_add_u32 s88, s86, s{sTmp}")
    e(f"  s_addc_u32 s89, s87, 0")
    e(f"  s_and_b32 s89, s89, 0xffff")
    e(f"  s_mov_b32 s90, 64")
    e(f"  s_mov_b32 s91, 0x20000")
    e(f"  v_lshlrev_b32 v{Z}, 2, v{vLane}")
    e(f"  buffer_store_dword v{vST}, v{Z}, s[88:91], 0 offen")
    e("  s_waitcnt vmcnt(0)")
e("L_end:")
e("  s_endpgm")
e('.section .rodata,"a"')
e(".p2align 6")
e(f".amdhsa_kernel {NAME}_kernel")
e("  .amdhsa_next_free_vgpr 128")
e("  .amdhsa_next_free_sgpr 96")
e("  .amdhsa_accum_offset 128")
e("  .amdhsa_group_segment_fixed_size 0")
e("  .amdhsa_kernarg_size 80")
e("  .amdhsa_user_sgpr_count 2")
e("  .amdhsa_user_sgpr_kernarg_segment_ptr 1")
e("  .amdhsa_system_sgpr_workgroup_id_x 1")
e("  .amdhsa_float_denorm_mode_32 3")
e(".end_amdhsa_kernel")
open(sys.argv[1], "w").write("\n".join(x for x in out if x is not None) + "\n")
```

```python
import sys

NAME = "standalone__sequential_behavior_din__recsys"
OPT = dict(nt_hist=" nt", nt_mask=" nt", nt_out="", stamp=0, prio=1, mprio=3, lprio=1,
           p1=0, p2=2, q1=-2, q2=1, t2=3, t1=1, split=8, acc=0, mbar=0, sp0=13, pf=0, pfn=44, endwait=1, sharec=1, cw0=4, earlyc=1, exact=0, dsplit=0, e3=0, dist=3, hyb=6)
for a in sys.argv[2:]:
    k, v = a.split("=", 1)
    if k.startswith("nt_"):
        OPT[k] = (" " + v.replace("+", " ")) if v else ""
    else:
        OPT[k] = int(v)

out = []
def e(s=""):
    out.append(s)

NS = 3
BB = 0
W2A = 256
W2C = 320
B2B = 384
TB = 512
LIST = TB + 2048
RING = LIST + 16 * 256
RPW = NS * 2048 + 1024
MOFF = NS * 2048
PFB = RING + 16 * RPW
QB = PFB + 16384
CSTR = 272
CB = QB + 8192
LDS_BYTES = CB + 16 * CSTR
CFLAG = 448
assert LDS_BYTES <= 163840 and RING % 16 == 0

M, C, D3, W2, B2, Z, HB, HT, D2 = 0, 32, 48, 64, 72, 76, 92, 100, 108
SP = D2
ONE = 112
vA0, vA1 = 114, 115
vT = [116, 117, 118, 119]
vP0, vP1 = 120, 122
vDC0, vDC1 = 121, 123
vL, vML = 124, 125
vLane, vQ16 = 126, 127
vST = vML
MK = Z

def vr(b, n=1):
    return f"v{b}" if n == 1 else f"v[{b}:{b+n-1}]"

sT, sH, sMk, sW1, sB1, sW2, sB2, sO = 4, 6, 8, 10, 12, 14, 16, 18
sWave, sB = 20, 21
rH = 24
sRing, sList, sN, sNT = 56, 57, 58, 59
sC0, sC1, sC2, sC3 = 60, 62, 64, 66
sK1, sK2, sK3 = 69, 70, 71
sScale, sTmp, sTmp2 = 72, 74, 75
sBad, sDmy = 76, 78
STAMP0 = 84
sE0, sE1, sE2, sE3 = 88, 90, 92, 94

def stamp(i):
    if OPT["stamp"]:
        e(f"  s_memrealtime s[{STAMP0}:{STAMP0+1}]")
        e("  s_waitcnt lgkmcnt(0)")
        e(f"  v_writelane_b32 v{vST}, s{STAMP0}, {i}")
        if i in (6, 8):
            e(f"  s_memtime s[{STAMP0}:{STAMP0+1}]")
            e("  s_waitcnt lgkmcnt(0)")
            e(f"  v_writelane_b32 v{vST}, s{STAMP0}, {12 if i == 6 else 13}")

def prio(p):
    if OPT["prio"]:
        e(f"  s_setprio {p}")

def dma(pair, slot, hf, filler="  s_nop 0"):
    e(f"  s_add_u32 m0, s{sRing}, {slot*2048+hf*1024}")
    e(filler)
    e(f"  buffer_load_dwordx4 {vr(pair,2)}, s[{rH}:{rH+3}], 0 idxen offen{OPT['nt_hist']} lds")

hdr = open("cdna_kernels/" + NAME + ".s.ref").read().split("; Override launch")[0]
e(hdr.rstrip())
e(f"; @launch grid=(256,1,1) block=(1024,1,1) lds={LDS_BYTES}")
for line in """
 DIN local activation unit, one wave per batch row, 16 waves (rows) per workgroup.
   z = hist (Wa + Wc + diag(t) Wd) + t (Wb - Wc) + b1      (w1 = [Wa; Wb; Wc; Wd], t = target row)
   out = sum_l mask_l (sigmoid(z_l) . w2 + b2) hist_l
 Rows whose mask is zero contribute nothing and are never fetched: each wave compacts the indices of its active
 rows and gathers them, 16 rows per tile, into a three-slot LDS ring with LDS-DMA loads (padding rows read as zero).
 Start-up: every wave converts a 4-row slice of w1 into the shared operand images [P'|Wd'] and Q' (scaled by
 -log2 e); after one barrier it builds its own M' = P' + diag(t) Wd' with MFMAs against a [1|t] selector; four waves
 compute c' = b1' + Q'^T t for all 16 rows and publish it through an LDS counter.
 Tile: Z^T = M'^T H^T + c' (MFMA), exp2, +1 (one 32x32 MFMA against a unit outer product), rcp, bf16 pack,
 scores = sigma w2 + b2 (MFMA), out += scores H (MFMA on transposed LDS reads).
 Masks that are not exactly 0 or 1 take a second loop that multiplies the scores by the mask values.
""".strip("\n").split("\n"):
    e(";" + line)
e('.amdgcn_target "amdgcn-amd-amdhsa--gfx950"')
e(".text")
e(f".globl {NAME}_kernel")
e(".p2align 8")
e(f".type {NAME}_kernel,@function")
e(f"{NAME}_kernel:")
e("  s_cmp_ge_u32 s2, 256")
e("  s_cbranch_scc1 L_end")
stamp(0)
e("  s_load_dwordx16 s[4:19], s[0:1], 0")
if OPT["stamp"]:
    e("  s_load_dwordx2 s[86:87], s[0:1], 72")
prio(3)
X0 = W2
q_ = Z + 1
vMo, vWo, vWo2 = Z + 6, Z + 7, Z + 8
e(f"  v_lshrrev_b32 v{Z}, 6, v0")
e(f"  v_and_b32 v{vLane}, 63, v0")
e(f"  s_lshl_b32 s{sB}, s2, 4")
e(f"  v_readfirstlane_b32 s{sWave}, v{Z}")
e(f"  v_mov_b32 v{X0}, 0")
e(f"  v_mov_b32 v{X0+1}, 0")
e(f"  s_add_u32 s{sB}, s{sB}, s{sWave}")
e(f"  s_mul_i32 s{sTmp}, s{sB}, 400")
e(f"  s_mul_i32 s{sRing}, s{sWave}, {RPW}")
e(f"  v_lshl_add_u32 v{vMo}, v{vLane}, 3, s{sTmp}")
e(f"  v_and_b32 v{Z+2}, 32, v{vLane}")
e(f"  v_and_b32 v{Z+3}, 31, v{vLane}")
e(f"  s_lshl_b32 s{sTmp2}, s{sWave}, 9")
e(f"  v_lshlrev_b32 v{Z+2}, 9, v{Z+2}")
e(f"  s_add_u32 s{sK3}, s{sTmp2}, {24576-1024}")
e(f"  v_lshl_add_u32 v{vWo}, v{Z+3}, 4, s{sTmp2}")
e(f"  v_lshl_add_u32 v{vWo2}, v{Z+3}, 4, s{sK3}")
e(f"  s_bfm_b64 s[{sC0}:{sC0+1}], 50, 0")
e(f"  v_add_u32 v{vWo}, v{vWo}, v{Z+2}")
e(f"  v_sub_u32 v{vWo2}, v{vWo2}, v{Z+2}")
e(f"  s_add_u32 s{sRing}, s{sRing}, {RING}")
e(f"  s_add_u32 m0, s{sRing}, 4096")
e(f"  s_mov_b64 exec, s[{sC0}:{sC0+1}]")
e("  s_waitcnt lgkmcnt(0)")
stamp(1)
e(f"  global_load_dwordx2 {vr(X0,2)}, v{vMo}, s[{sMk}:{sMk+1}]{OPT['nt_mask']}")
e("  s_mov_b64 exec, -1")
if OPT["mbar"]:
    e("  s_barrier")
prio(2)
e(f"  global_load_lds_dwordx4 v{vWo}, s[{sW1}:{sW1+1}]")
e(f"  global_load_lds_dwordx4 v{vWo2}, s[{sW1}:{sW1+1}] offset:1024")
e(f"  v_lshrrev_b32 v{q_}, 4, v{vLane}")
if OPT["pf"]:
    e(f"  s_cmp_lt_u32 s2, {OPT['pf']}")
    e("  s_cbranch_scc0 L_nopf")
    e(f"  s_cmp_eq_u32 s{sWave}, 3")
    e("  s_cbranch_scc0 L_nopf")
    e("  s_getpc_b64 s[78:79]")
    e("L_pc:")
    e(f"  s_sub_u32 s78, s78, L_pc-{NAME}_kernel")
    e("  s_subb_u32 s79, s79, 0")
    e(f"  v_lshlrev_b32 v{M+28}, 7, v{vLane}")
    e(f"  s_bfm_b64 exec, {OPT['pfn']}, 0")
    e(f"  global_load_dword v{M+29}, v{M+28}, s[78:79]")
    e("  s_mov_b64 exec, -1")
    e("L_nopf:")
SB1, SB2 = M + 24, M + 25
SP0 = OPT["sp0"]
e(f"  s_sub_u32 s{sE2}, s{sWave}, {SP0}")
e(f"  s_cmp_gt_u32 s{sE2}, 2")
e("  s_cbranch_scc1 L_nosmall")
e(f"  s_cmp_eq_u32 s{sE2}, 1")
e("  s_cbranch_scc1 L_w14")
e(f"  s_cmp_eq_u32 s{sE2}, 2")
e("  s_cbranch_scc1 L_w15")
e(f"  v_mov_b32 v{SB1}, 0")
e(f"  v_lshlrev_b32 v{M+26}, 1, v{vLane}")
e(f"  global_load_short_d16_hi v{SB1}, v{M+26}, s[{sB1}:{sB1+1}]")
e("  s_branch L_nosmall")
e("L_w14:")
e(f"  s_lshl_b32 s{sTmp2}, s2, 11")
e(f"  v_lshl_add_u32 v{M+26}, v{vLane}, 4, s{sTmp2}")
e(f"  s_mov_b32 m0, {TB}")
e("  s_nop 0")
e(f"  global_load_lds_dwordx4 v{M+26}, s[{sT}:{sT+1}]")
e(f"  global_load_lds_dwordx4 v{M+26}, s[{sT}:{sT+1}] offset:1024")
e("  s_branch L_nosmall")
e("L_w15:")
e(f"  v_bfe_u32 v{M+26}, v{vLane}, 4, 1")
e(f"  v_lshlrev_b32 v{M+26}, 6, v{M+26}")
e(f"  v_bfe_u32 v{M+27}, v{vLane}, 1, 1")
e(f"  v_lshl_add_u32 v{M+26}, v{M+27}, 5, v{M+26}")
e(f"  v_bfe_u32 v{M+27}, v{vLane}, 2, 2")
e(f"  v_lshl_add_u32 v{M+26}, v{M+27}, 3, v{M+26}")
e(f"  v_and_b32 v{M+27}, 1, v{vLane}")
e(f"  v_lshl_add_u32 v{M+26}, v{M+27}, 2, v{M+26}")
e(f"  v_mov_b32 v{SB2}, 0")
e(f"  v_mov_b32 v{M+27}, 0")
e(f"  s_mov_b32 m0, {W2A}")
e(f"  global_load_short_d16_hi v{SB2}, v{M+27}, s[{sB2}:{sB2+1}]")
e(f"  s_bfm_b64 exec, 32, 0")
e(f"  global_load_lds_dword v{M+26}, s[{sW2}:{sW2+1}]")
e("  s_mov_b64 exec, -1")
e("L_nosmall:")
e(f"  s_lshl_b32 s{sList}, s{sWave}, 8")
e(f"  s_add_u32 s{sList}, s{sList}, {LIST}")
e(f"  v_mov_b32 v{M}, -1")
e(f"  v_lshl_add_u32 v{Z+3}, v{vLane}, 2, s{sList}")
e(f"  ds_write_b32 v{Z+3}, v{M}")
t0, t1, t2, t3, t4 = Z, q_, Z + 2, Z + 3, Z + 4
PFA, QWA, RWA = D3, D3 + 2, D3 + 3
e(f"  s_mul_i32 s{sTmp}, s{sB}, 25600")
e(f"  v_and_b32 v{t2}, 7, v{vLane}")
e(f"  s_add_u32 s{rH}, s{sH}, s{sTmp}")
e(f"  v_xor_b32 v{t2}, v{t2}, v{t1}")
e(f"  s_addc_u32 s{rH+1}, s{sH+1}, 0")
e(f"  v_lshlrev_b32 v{vDC0}, 4, v{t2}")
e(f"  s_or_b32 s{rH+1}, s{rH+1}, {128 << 16}")
e(f"  v_xor_b32 v{vDC1}, 64, v{vDC0}")
e(f"  s_mov_b32 s{rH+2}, 200")
e(f"  v_lshrrev_b32 v{t2}, 3, v{vLane}")
e(f"  s_mov_b32 s{rH+3}, 0x20000")
e(f"  v_add_u32 v{vL}, s{sList}, v{t2}")
vR = [Z + 11, Z + 12, Z + 13, Z + 14]
e(f"  v_lshlrev_b32 v{vR[0]}, 2, v{vLane}")
e(f"  s_mov_b32 s{sK1}, 0xffff")
for i in range(1, 4):
    e(f"  v_add_u32 v{vR[i]}, {i}, v{vR[0]}")
pos = [Z + 2, Z + 3, Z + 4, Z + 5]
prio(1)
vPA = D2
vTA, vQA = Z + 9, Z + 15
vM0, vM1 = D2 + 2, D2 + 3
S = []
S.append(f"  s_mov_b32 s{sK2}, 0xffff0000")
S.append(f"  s_mov_b32 s{sScale}, 0xbfb8aa3b")
S.append(f"  s_mov_b32 s{sScale+1}, 0xbfb8aa3b")
S.append(f"  s_lshr_b32 s{sE0}, s{sWave}, 3")
S.append(f"  s_and_b32 s{sE0+1}, s{sWave}, 1")
S.append(f"  s_bfe_u32 s{sE1}, s{sWave}, 0x20001")
S.append(f"  s_lshl_b32 s{sTmp}, s{sE0}, 11")
S.append(f"  s_lshl_b32 s{sK3}, s{sE0+1}, 10")
S.append(f"  s_add_u32 s{sTmp}, s{sTmp}, s{sK3}")
S.append(f"  s_lshl_b32 s{sK3}, s{sE1}, 8")
S.append(f"  s_add_u32 s{sTmp}, s{sTmp}, s{sK3}")
S.append(f"  s_add_u32 s{sTmp}, s{sTmp}, {PFB}")
S.append(f"  s_lshl_b32 s{sE0}, s{sE0}, 10")
S.append(f"  s_add_u32 s{sE0}, s{sE0}, s{sK3}")
S.append(f"  s_lshl_b32 s{sE0+1}, s{sE0+1}, 3")
S.append(f"  s_add_u32 s{sE0}, s{sE0}, s{sE0+1}")
S.append(f"  s_add_u32 s{sE0}, s{sE0}, {QB}")
S.append(f"  s_add_u32 s{sK3}, s{sRing}, 4096")
S.append(f"  s_lshl_b32 s{sE1}, s{sWave}, 7")
S.append(f"  s_add_u32 s{sE1}, s{sE1}, {TB}")
V = []
V.append(f"  v_and_b32 v{t0}, 15, v{vLane}")
V.append(f"  v_lshrrev_b32 v{t2}, 1, v{t0}")
V.append(f"  v_xor_b32 v{t2}, v{t2}, v{t1}")
V.append(f"  v_lshlrev_b32 v{t2}, 4, v{t2}")
V.append(f"  v_lshl_add_u32 v{t2}, v{t0}, 7, v{t2}")
V.append(f"  v_add_u32 v{vA0}, s{sRing}, v{t2}")
V.append(f"  v_xor_b32 v{vA1}, 64, v{vA0}")
V.append(f"  v_lshrrev_b32 v{t2}, 2, v{t0}")
V.append(f"  v_and_b32 v{RWA}, 3, v{vLane}")
V.append(f"  v_cmp_eq_u32_e64 s[{sC1}:{sC1+1}], v{t2}, v{t1}")
V.append(f"  v_lshlrev_b32 v{RWA}, 3, v{RWA}")
V.append(f"  v_lshl_add_u32 v{RWA}, v{t2}, 7, v{RWA}")
V.append(f"  v_lshl_add_u32 v{RWA}, v{t1}, 5, v{RWA}")
V.append(f"  v_lshl_add_u32 v{t2}, v{t1}, 2, v{t2}")
V.append(f"  v_lshrrev_b32 v{t3}, 1, v{t2}")
V.append(f"  v_bfe_u32 v{t4}, v{vLane}, 1, 1")
V.append(f"  v_xor_b32 v{t3}, v{t3}, v{t4}")
V.append(f"  v_lshlrev_b32 v{t3}, 4, v{t3}")
V.append(f"  v_lshl_add_u32 v{t3}, v{t2}, 7, v{t3}")
V.append(f"  v_and_b32 v{t2}, 1, v{vLane}")
V.append(f"  v_lshl_add_u32 v{t3}, v{t2}, 3, v{t3}")
V.append(f"  v_lshlrev_b32 v{vQ16}, 4, v{t1}")
V.append(f"  v_add_u32 v{vT[0]}, s{sRing}, v{t3}")
V.append(f"  v_lshlrev_b32 v{t0}, 4, v{t0}")
for d in range(1, 4):
    V.append(f"  v_xor_b32 v{vT[d]}, {32*d}, v{vT[0]}")
for i in range(max(len(S), len(V))):
    if i < len(V): e(V[i])
    if i < len(S): e(S[i])
e(f"  v_lshl_add_u32 v{PFA}, v{t1}, 12, v{t0}")
e(f"  v_lshl_add_u32 v{QWA}, v{t1}, 11, v{t0}")
e(f"  v_add_u32 v{RWA}, s{sK3}, v{RWA}")
e(f"  v_add_u32 v{PFA}, s{sTmp}, v{PFA}")
e(f"  v_add_u32 v{QWA}, s{sE0}, v{QWA}")
e(f"  v_add_u32 v{vTA}, s{sE1}, v{vQ16}")
e(f"  v_lshlrev_b32 v{vPA}, 4, v{vLane}")
e(f"  v_add_u32 v{vQA}, {QB}, v{vPA}")
e(f"  v_add_u32 v{vPA}, {PFB}, v{vPA}")
e(f"  v_lshlrev_b32 v{t2}, 4, v{t2}")
e(f"  v_mov_b32 v{t3}, 0xffff")
e(f"  v_lshlrev_b32 v{t3}, v{t2}, v{t3}")
e(f"  v_cmp_gt_u32 vcc, 32, v{vLane}")
e(f"  v_cndmask_b32_e64 v{t3}, 0, v{t3}, s[{sC1}:{sC1+1}]")
e(f"  v_cmp_eq_u32_e64 s[{sC1}:{sC1+1}], 0, v{t4}")
e(f"  v_mov_b32 v{t0}, 0x3f80")
e(f"  v_mov_b32 v{pos[0]}, s{sList}")
e(f"  v_cndmask_b32 v{ONE}, 0, v{t0}, vcc")
e(f"  v_mov_b32 v{ONE+1}, 0")
e(f"  v_cndmask_b32_e64 v{vM0}, 0, v{t3}, s[{sC1}:{sC1+1}]")
e(f"  v_cndmask_b32_e64 v{vM1}, v{t3}, 0, s[{sC1}:{sC1+1}]")
AD = HB + 4
e(f"  s_mov_b32 s{sTmp}, 0x3f803f80")
e(f"  v_and_b32 v{AD}, s{sTmp}, v{vM0}")
e(f"  v_and_b32 v{AD+1}, s{sTmp}, v{vM1}")
if OPT["exact"]:
    e(f"  s_cmp_gt_u32 s{sE2}, 2")
    e("  s_cbranch_scc1 L_mw2")
    e(f"  s_cmp_eq_u32 s{sE2}, 0")
    e("  s_cbranch_scc1 L_mw3")
    e("  s_waitcnt vmcnt(4)")
    e("  s_branch L_mwd")
    e("L_mw3:")
    e("  s_waitcnt vmcnt(3)")
    e("  s_branch L_mwd")
    e("L_mw2:")
e("  s_waitcnt vmcnt(2)")
if OPT["exact"]:
    e("L_mwd:")
stamp(2)
prio(3)
e(f"  v_cmp_ne_u16_e64 s[{sC0}:{sC0+1}], 0, v{X0}")
e(f"  v_cmp_lt_u32_e64 s[{sC1}:{sC1+1}], s{sK1}, v{X0}")
e(f"  v_cmp_ne_u16_e64 s[{sC2}:{sC2+1}], 0, v{X0+1}")
e(f"  v_cmp_lt_u32_e64 s[{sC3}:{sC3+1}], s{sK1}, v{X0+1}")
e(f"  v_mbcnt_lo_u32_b32 v{pos[0]}, s{sC0}, v{pos[0]}")
e(f"  v_mbcnt_hi_u32_b32 v{pos[0]}, s{sC0+1}, v{pos[0]}")
for c in (sC1, sC2, sC3):
    e(f"  v_mbcnt_lo_u32_b32 v{pos[0]}, s{c}, v{pos[0]}")
    e(f"  v_mbcnt_hi_u32_b32 v{pos[0]}, s{c+1}, v{pos[0]}")
e(f"  s_mov_b64 exec, s[{sC0}:{sC0+1}]")
e(f"  ds_write_b8 v{pos[0]}, v{vR[0]}")
e("  s_mov_b64 exec, -1")
e(f"  v_addc_co_u32_e64 v{pos[1]}, s[{sDmy}:{sDmy+1}], 0, v{pos[0]}, s[{sC0}:{sC0+1}]")
e(f"  v_addc_co_u32_e64 v{pos[2]}, s[{sDmy}:{sDmy+1}], 0, v{pos[1]}, s[{sC1}:{sC1+1}]")
e(f"  v_addc_co_u32_e64 v{pos[3]}, s[{sDmy}:{sDmy+1}], 0, v{pos[2]}, s[{sC2}:{sC2+1}]")
for i, c in ((1, sC1), (2, sC2), (3, sC3)):
    e(f"  s_mov_b64 exec, s[{c}:{c+1}]")
    e(f"  ds_write_b8 v{pos[i]}, v{vR[i]}")
e("  s_mov_b64 exec, -1")
e(f"  ds_read_u8 v{vP0}, v{vL}")
e(f"  ds_read_u8 v{vP1}, v{vL} offset:8")
if OPT["e3"]:
    e(f"  ds_read_u8 v{M+8}, v{vL} offset:16")
e(f"  s_bcnt1_i32_b64 s{sN}, s[{sC0}:{sC0+1}]")
e(f"  s_bcnt1_i32_b64 s{sK3}, s[{sC1}:{sC1+1}]")
e(f"  s_add_u32 s{sN}, s{sN}, s{sK3}")
e(f"  s_bcnt1_i32_b64 s{sK3}, s[{sC2}:{sC2+1}]")
e(f"  s_add_u32 s{sN}, s{sN}, s{sK3}")
e(f"  s_bcnt1_i32_b64 s{sK3}, s[{sC3}:{sC3+1}]")
e(f"  s_add_u32 s{sN}, s{sN}, s{sK3}")
e(f"  s_waitcnt lgkmcnt({2 if OPT['e3'] else 1})")
dma(vP0, 0, 0)
e(f"  s_waitcnt lgkmcnt({1 if OPT['e3'] else 0})")
dma(vP1, 0, 1)
if OPT["e3"]:
    if OPT["e3"] > 1:
        e(f"  s_cmp_lt_u32 s{sWave}, {OPT['split']}")
        e(f"  s_cbranch_scc{0 if OPT['e3'] == 2 else 1} L_noe3")
    e("  s_waitcnt lgkmcnt(0)")
    dma(M + 8, 1, 0, f"  v_mov_b32 v{M+9}, v{vDC0}")
    if OPT["e3"] > 1:
        e("  s_waitcnt vmcnt(3)")
        e("  s_branch L_e3d")
        e("L_noe3:")
        e("  s_waitcnt vmcnt(2)")
        e("L_e3d:")
    else:
        e("  s_waitcnt vmcnt(3)")
stamp(3)
prio(2)
RW = M + 16
if not OPT["e3"]:
    e("  s_waitcnt vmcnt(2)")
stamp(4)
for m in range(4):
    e(f"  ds_read_b64_tr_b16 {vr(RW+2*m,2)}, v{RWA} offset:{512*m}")
e(f"  ds_read_u8 v{vP0}, v{vL} offset:16")
e(f"  ds_read_u8 v{vP1}, v{vL} offset:24")
e(f"  s_add_u32 s{sNT}, s{sN}, 15")
e(f"  s_lshr_b32 s{sNT}, s{sNT}, 4")
e(f"  s_movk_i32 s{sTmp}, 0x3f80")
e(f"  v_cmp_eq_u16_e64 s[{sE0}:{sE0+1}], s{sTmp}, v{X0}")
e(f"  v_cmp_eq_u16_e64 s[{sE2}:{sE2+1}], s{sTmp}, v{X0+1}")
e(f"  v_cmp_eq_u16_sdwa s[{sE1}:{sE1+1}], v{X0}, s{sTmp} src0_sel:WORD_1 src1_sel:WORD_0")
e(f"  v_cmp_eq_u16_sdwa s[{sE3}:{sE3+1}], v{X0+1}, s{sTmp} src0_sel:WORD_1 src1_sel:WORD_0")
e(f"  s_xor_b64 s[{sBad}:{sBad+1}], s[{sE0}:{sE0+1}], s[{sC0}:{sC0+1}]")
e(f"  s_xor_b64 s[{sE2}:{sE2+1}], s[{sE2}:{sE2+1}], s[{sC2}:{sC2+1}]")
e(f"  s_or_b64 s[{sBad}:{sBad+1}], s[{sBad}:{sBad+1}], s[{sE2}:{sE2+1}]")
for a_, b_ in ((sE1, sC1), (sE3, sC3)):
    e(f"  s_xor_b64 s[{a_}:{a_+1}], s[{a_}:{a_+1}], s[{b_}:{b_+1}]")
    e(f"  s_or_b64 s[{sBad}:{sBad+1}], s[{sBad}:{sBad+1}], s[{a_}:{a_+1}]")
e(f"  s_cmp_lg_u64 s[{sBad}:{sBad+1}], 0")
e("  s_cbranch_scc0 L_binmask")
e(f"  s_add_u32 s{sTmp}, s{sRing}, {MOFF}")
for i in range(4):
    e(f"  v_mov_b32 v{M+i}, 0")
e(f"  v_lshl_add_u32 v{Z+6}, v{vLane}, 4, s{sTmp}")
e(f"  ds_write_b128 v{Z+6}, {vr(M,4)}")
e(f"  v_add_u32 v{vML}, s{sTmp}, v{vQ16}")
e(f"  v_lshlrev_b32 v{M+4}, 16, v{X0}")
e(f"  v_and_b32 v{M+5}, s{sK2}, v{X0}")
e(f"  v_lshlrev_b32 v{M+6}, 16, v{X0+1}")
e(f"  v_and_b32 v{M+7}, s{sK2}, v{X0+1}")
for i in range(4):
    e(f"  v_subrev_u32 v{pos[i]}, s{sList}, v{pos[i]}")
    e(f"  v_lshl_add_u32 v{pos[i]}, v{pos[i]}, 2, s{sTmp}")
for i, c in enumerate((sC0, sC1, sC2, sC3)):
    e(f"  s_mov_b64 exec, s[{c}:{c+1}]")
    e(f"  ds_write_b32 v{pos[i]}, v{M+4+i}")
e("  s_mov_b64 exec, -1")
e("L_binmask:")
W1R = M
Wa, Wc, Wd, Wb_ = W1R, W1R + 4, W1R + 8, W1R + 12
e("  s_waitcnt lgkmcnt(0)")
for m in range(4):
    for r in range(2):
        e(f"  v_lshlrev_b32 v{W1R+4*m+2*r}, 16, v{RW+2*m+r}")
        e(f"  v_and_b32 v{W1R+4*m+2*r+1}, s{sK2}, v{RW+2*m+r}")
for p in range(2):
    e(f"  v_pk_add_f32 {vr(Wa+2*p,2)}, {vr(Wa+2*p,2)}, {vr(Wc+2*p,2)}")
for p in range(2):
    e(f"  v_pk_add_f32 {vr(Wb_+2*p,2)}, {vr(Wb_+2*p,2)}, {vr(Wc+2*p,2)} neg_lo:[0,1] neg_hi:[0,1]")
for base in (Wa, Wd, Wb_):
    for p in range(2):
        e(f"  v_pk_mul_f32 {vr(base+2*p,2)}, {vr(base+2*p,2)}, s[{sScale}:{sScale+1}]")
e(f"  v_cvt_pk_bf16_f32 v{RW+2}, v{Wd}, v{Wd+1}")
e(f"  v_cvt_pk_bf16_f32 v{RW+3}, v{Wd+2}, v{Wd+3}")
e(f"  v_cvt_pk_bf16_f32 v{RW}, v{Wa}, v{Wa+1}")
e(f"  v_cvt_pk_bf16_f32 v{RW+1}, v{Wa+2}, v{Wa+3}")
e(f"  v_cvt_pk_bf16_f32 v{RW+6}, v{Wb_}, v{Wb_+1}")
e(f"  v_cvt_pk_bf16_f32 v{RW+7}, v{Wb_+2}, v{Wb_+3}")
e(f"  ds_write_b128 v{PFA}, {vr(RW,4)}")
e(f"  ds_write_b64 v{QWA}, {vr(RW+6,2)}")
e(f"  s_cmp_eq_u32 s{sWave}, {SP0}")
e("  s_cbranch_scc0 L_nb1")
e(f"  v_mul_f32 v{SB1}, s{sScale}, v{SB1}")
e(f"  v_lshlrev_b32 v{M+26}, 2, v{vLane}")
e(f"  ds_write_b32 v{M+26}, v{SB1} offset:{BB}")
e("L_nb1:")
e(f"  s_cmp_eq_u32 s{sWave}, {SP0+2}")
e("  s_cbranch_scc0 L_nosmall2")
e(f"  v_and_b32 v{M+26}, 15, v{vLane}")
e(f"  v_lshlrev_b32 v{M+26}, 2, v{M+26}")
e(f"  ds_write_b32 v{M+26}, v{SB2} offset:{B2B}")
if OPT["sharec"]:
    e(f"  v_mov_b32 v{M+26}, 0")
    e(f"  ds_write_b32 v{M+26}, v{M+26} offset:{CFLAG}")
e("L_nosmall2:")
e("  s_waitcnt lgkmcnt(0)")
e("  s_barrier")
stamp(5)
prio(OPT["mprio"])
e(f"  ds_read_b128 {vr(HT,4)}, v{vTA}")
e(f"  ds_read_b128 {vr(HT+4,4)}, v{vTA} offset:64")
if not OPT["sharec"]:
    for tau in range(4):
        e(f"  ds_read_b128 {vr(C+4*tau,4)}, v{vQ16} offset:{BB+64*tau}")
    for g in range(8):
        e(f"  ds_read_b128 {vr(M+4*g,4)}, v{vQA} offset:{1024*g}")
else:
    e(f"  s_sub_u32 s{sE2}, s{sWave}, {OPT['cw0']}")
    e(f"  s_cmp_lt_u32 s{sE2}, 4")
    e("  s_cbranch_scc0 L_noc")
    e(f"  v_and_b32 v{M}, 15, v{vLane}")
    e(f"  s_lshl_b32 s{sTmp}, s{sE2}, 11")
    e(f"  v_lshl_add_u32 v{M+1}, v{M}, 7, v{vQ16}")
    e(f"  v_add_u32 v{M+2}, s{sTmp}, v{vQA}")
    e(f"  s_lshl_b32 s{sTmp}, s{sE2}, 6")
    e(f"  v_add_u32 v{M+3}, s{sTmp}, v{vQ16}")
    e(f"  ds_read_b128 {vr(M+4,4)}, v{M+1} offset:{TB}")
    e(f"  ds_read_b128 {vr(M+8,4)}, v{M+1} offset:{TB+64}")
    e(f"  ds_read_b128 {vr(M+12,4)}, v{M+2}")
    e(f"  ds_read_b128 {vr(M+16,4)}, v{M+2} offset:1024")
    e(f"  ds_read_b128 {vr(M+20,4)}, v{M+3} offset:{BB}")
    e(f"  v_mul_u32_u24 v{M}, {CSTR}, v{M}")
    e(f"  v_add_u32 v{M}, v{M}, v{M+3}")
    e(f"  v_add_u32 v{M}, {CB}, v{M}")
    e(f"  v_mov_b32 v{M+1}, 1")
    e(f"  v_mov_b32 v{M+2}, 0")
    e("  s_waitcnt lgkmcnt(0)")
    e(f"  v_mfma_f32_16x16x32_bf16 {vr(M+20,4)}, {vr(M+12,4)}, {vr(M+4,4)}, {vr(M+20,4)}")
    e(f"  v_mfma_f32_16x16x32_bf16 {vr(M+20,4)}, {vr(M+16,4)}, {vr(M+8,4)}, {vr(M+20,4)}")
    e("  s_nop 7")
    e(f"  ds_write_b128 v{M}, {vr(M+20,4)}")
    e("  s_waitcnt lgkmcnt(0)")
    e("  s_mov_b64 exec, 1")
    e(f"  ds_add_u32 v{M+2}, v{M+1} offset:{CFLAG}")
    e("  s_mov_b64 exec, -1")
    e("L_noc:")
nlab = [0]
def cond_block(old_here, young_here, body):
    if not (old_here or young_here):
        return
    nlab[0] += 1
    lab_ = nlab[0]
    if old_here != young_here:
        e(f"  s_cmp_lt_u32 s{sWave}, {OPT['split']}")
        e(f"  s_cbranch_scc{0 if old_here else 1} L_rd{lab_}")
    body()
    if old_here != young_here:
        e(f"L_rd{lab_}:")
def idx2():
    e(f"  ds_read_u8 v{vP0}, v{vL} offset:32")
    e(f"  ds_read_u8 v{vP1}, v{vL} offset:40")
def ring_dma(posn):
    def t1():
        if OPT["e3"] == 0:
            dma(vP0, 1, 0)
        elif OPT["e3"] > 1:
            nlab[0] += 1
            l_ = nlab[0]
            e(f"  s_cmp_lt_u32 s{sWave}, {OPT['split']}")
            e(f"  s_cbranch_scc{1 if OPT['e3'] == 2 else 0} L_e3s{l_}")
            dma(vP0, 1, 0)
            e(f"L_e3s{l_}:")
        dma(vP1, 1, 1)
        if posn != -2:
            idx2()
    def t2():
        e("  s_waitcnt lgkmcnt(0)")
        dma(vP0, 2, 0)
        if OPT["dist"] != 25:
            dma(vP1, 2, 1)
    if posn == -1:
        cond_block(OPT["p1"] == -2, OPT["q1"] == -2, idx2)
    cond_block(OPT["p1"] == posn, OPT["q1"] == posn, t1)
    if OPT["dist"] in (3, 25):
        cond_block(OPT["p2"] == posn, OPT["q2"] == posn, t2)
B0 = [D3 + 4*i for i in range(4)]
B1 = [W2, W2 + 4, W2 + 8, HB]
BUFS = [B0, B1]
def mread(g):
    s, h = g >> 1, g & 1
    for tau in range(4):
        e(f"  ds_read_b128 {vr(BUFS[g&1][tau],4)}, v{vPA} offset:{tau*4096+s*2048+h*1024}")
ring_dma(-2)
if not OPT["sharec"]:
    for g in range(8):
        e(f"  s_waitcnt lgkmcnt({7-g})")
        tau, s = g >> 1, g & 1
        e(f"  v_mfma_f32_16x16x32_bf16 {vr(C+4*tau,4)}, {vr(M+4*g,4)}, {vr(HT+4*s,4)}, {vr(C+4*tau,4)}")
ring_dma(-1)
mread(0)
DT = [Z, Z + 4, Z + 8, Z + 12]
if OPT["sharec"]:
    e("  s_waitcnt lgkmcnt(4)")
e(f"  v_and_b32 v{AD+2}, v{HT}, v{vM0}")
e(f"  v_and_b32 v{AD+3}, v{HT+1}, v{vM1}")
for g in range(4):
    s, h = g >> 1, g & 1
    if g < 3:
        mread(g + 1)
    e(f"  s_waitcnt lgkmcnt({4 if g < 3 else 0})")
    for tau in range(4):
        e(f"  v_mfma_f32_16x16x32_bf16 {vr(DT[tau],4)}, {vr(AD,4)}, {vr(BUFS[g&1][tau],4)}, 0")
    if g < 3:
        s2, h2 = (g + 1) >> 1, (g + 1) & 1
        e(f"  v_and_b32 v{AD+2}, v{HT+4*s2+2*h2}, v{vM0}")
        e(f"  v_and_b32 v{AD+3}, v{HT+4*s2+2*h2+1}, v{vM1}")
        e("  s_nop 2")
    elif OPT["sharec"] and OPT["earlyc"]:
        e(f"  v_mov_b32 v{AD}, 0")
        e(f"  s_mul_i32 s{sTmp2}, s{sWave}, {CSTR}")
        e(f"  ds_read_b32 v{AD+1}, v{AD} offset:{CFLAG}")
        e(f"  ds_read_b128 {vr(W2,4)}, v{vQ16} offset:{W2A}")
        e(f"  ds_read_b128 {vr(W2+4,4)}, v{vQ16} offset:{W2C}")
        e(f"  ds_read_b128 {vr(B2,4)}, v{vQ16} offset:{B2B}")
        e(f"  s_add_u32 s{sTmp2}, s{sTmp2}, {CB}")
        e(f"  v_add_u32 v{AD+2}, s{sTmp2}, v{vQ16}")
    else:
        e("  s_nop 4")
    for tau in range(4):
        for p in range(2):
            e(f"  v_cvt_pk_bf16_f32 v{M+8*tau+4*s+2*h+p}, v{DT[tau]+2*p}, v{DT[tau]+2*p+1}")
    ring_dma(g)
if OPT["sharec"] and OPT["earlyc"]:
    e("  s_waitcnt lgkmcnt(3)")
    e("L_cpoll:")
    e(f"  v_readfirstlane_b32 s{sTmp}, v{AD+1}")
    e(f"  s_cmp_ge_u32 s{sTmp}, 4")
    e("  s_cbranch_scc1 L_cready")
    e(f"  ds_read_b32 v{AD+1}, v{AD} offset:{CFLAG}")
    e("  s_waitcnt lgkmcnt(0)")
    e("  s_branch L_cpoll")
    e("L_cready:")
    for tau in range(4):
        e(f"  ds_read_b128 {vr(C+4*tau,4)}, v{AD+2} offset:{64*tau}")
else:
    if OPT["sharec"]:
        e(f"  v_mov_b32 v{HB}, 0")
        e(f"  s_mul_i32 s{sTmp}, s{sWave}, {CSTR}")
        e(f"  s_add_u32 s{sTmp}, s{sTmp}, {CB}")
        e(f"  v_add_u32 v{HB+1}, s{sTmp}, v{vQ16}")
        e("L_cpoll:")
        e(f"  ds_read_b32 v{HB+2}, v{HB} offset:{CFLAG}")
        e("  s_waitcnt lgkmcnt(0)")
        e(f"  v_readfirstlane_b32 s{sTmp}, v{HB+2}")
        e(f"  s_cmp_lt_u32 s{sTmp}, 4")
        e("  s_cbranch_scc1 L_cpoll")
        for tau in range(4):
            e(f"  ds_read_b128 {vr(C+4*tau,4)}, v{HB+1} offset:{64*tau}")
    e(f"  ds_read_b128 {vr(W2,4)}, v{vQ16} offset:{W2A}")
    e(f"  ds_read_b128 {vr(W2+4,4)}, v{vQ16} offset:{W2C}")
    e(f"  ds_read_b128 {vr(B2,4)}, v{vQ16} offset:{B2B}")
ring_dma(4)
e(f"  s_mov_b32 s{sC0}, 0xffff0000")
e(f"  s_mov_b32 s{sC0+1}, 0")
e(f"  s_mov_b32 s{sC1}, 0")
e(f"  s_mov_b32 s{sC1+1}, 0xffff")
e(f"  s_mov_b32 s{sC2}, 0")
e(f"  s_mov_b32 s{sC2+1}, 0xffff0000")
e(f"  s_lshl_b32 s{sE3}, s{sB}, 7")
e(f"  v_mov_b32 v{D2+2}, 0")
e(f"  v_mov_b32 v{D2+3}, 0")
e(f"  v_add_u32 v{vL}, {32 if (OPT['dist'] == 25 or OPT['hyb']) else 16*OPT['dist']}, v{vL}")
if OPT["hyb"]:
    e(f"  s_mov_b32 s{sN}, s{sNT}")
    e(f"  s_mov_b32 s{sK3}, 3")
e("  s_nop 0")
e(f"  v_mfma_f32_32x32x8_bf16 {vr(D3,16)}, {vr(D2+2,2)}, {vr(D2+2,2)}, 0")
e("  s_waitcnt lgkmcnt(0)")
stamp(6)
if OPT["stamp"]:
    e(f"  s_waitcnt vmcnt(4)")
    stamp(7)
if OPT["acc"]:
    e("  s_mov_b32 s44, 0")
    e("  s_mov_b32 s45, 0")
prio(2)
e(f"  s_cmp_eq_u32 s{sNT}, 0")
e("  s_cbranch_scc1 L_out")
e(f"  s_cmp_lg_u64 s[{sBad}:{sBad+1}], 0")
e("  s_cbranch_scc1 L_gen0")

lab = [0]
tails = []
D25 = OPT["dist"] == 25
DIST = 3 if D25 else OPT["dist"]
def tile(slot, general, lab_exit):
    so = slot * 2048
    sd_ = ((slot + DIST) % NS) * 2048
    lab[0] += 1
    k = lab[0]
    if OPT["acc"]:
        e("  s_memtime s[40:41]")
        e("  s_waitcnt lgkmcnt(0)")
    HYB = OPT["hyb"]
    e(f"  s_cmp_ge_u32 s{sNT}, {HYB - 1 if HYB else DIST}")
    e(f"  s_cbranch_scc0 L_tw{k}")
    e(f"  s_waitcnt vmcnt({3 if D25 else 2*(DIST-1)})")
    e(f"L_aw{k}:")
    if OPT["acc"]:
        e("  s_memtime s[42:43]")
        e("  s_waitcnt lgkmcnt(0)")
        e("  s_sub_u32 s40, s42, s40")
        e("  s_add_u32 s44, s44, s40")
    tails.append(k)
    e(f"  ds_read_b128 {vr(HB,4)}, v{vA0} offset:{so}")
    e(f"  ds_read_b128 {vr(HB+4,4)}, v{vA1} offset:{so}")
    for d in range(4):
        e(f"  ds_read_b64_tr_b16 {vr(HT+2*d,2)}, v{vT[d]} offset:{so}")
    if D25:
        e(f"  ds_read_u8 v{vP0}, v{vL} offset:{16*slot+16}")
        e(f"  ds_read_u8 v{vP1}, v{vL} offset:{16*slot+8}")
    elif HYB:
        e(f"  s_cmp_ge_u32 s{sNT}, {HYB}")
        e(f"  s_cbranch_scc0 L_i2{k}")
        e(f"  ds_read_u8 v{vP0}, v{vL} offset:{16*slot+16}")
        e(f"  ds_read_u8 v{vP1}, v{vL} offset:{16*slot+24}")
        e(f"  s_branch L_i3{k}")
        e(f"L_i2{k}:")
        e(f"  ds_read_u8 v{vP0}, v{vL} offset:{16*slot}")
        e(f"  ds_read_u8 v{vP1}, v{vL} offset:{16*slot+8}")
        e(f"L_i3{k}:")
    else:
        e(f"  ds_read_u8 v{vP0}, v{vL} offset:{16*slot}")
        e(f"  ds_read_u8 v{vP1}, v{vL} offset:{16*slot+8}")
    nrd = 8
    if OPT["prio"] and OPT["lprio"]:
        e(f"  s_cmp_gt_u32 s{sNT}, {OPT['t2']}")
        e(f"  s_cbranch_scc1 L_p{k}")
        e(f"  s_setprio 1")
        e(f"  s_cmp_gt_u32 s{sNT}, {OPT['t1']}")
        e(f"  s_cbranch_scc1 L_p{k}")
        e(f"  s_setprio 0")
        e(f"L_p{k}:")
    e(f"  s_waitcnt lgkmcnt({nrd-1})")
    for tau in range(4):
        e(f"  v_mfma_f32_16x16x32_bf16 {vr(Z+4*tau,4)}, {vr(M+8*tau,4)}, {vr(HB,4)}, {vr(C+4*tau,4)}")
    e(f"  s_waitcnt lgkmcnt({nrd-2})")
    for tau in range(4):
        e(f"  v_mfma_f32_16x16x32_bf16 {vr(Z+4*tau,4)}, {vr(M+8*tau+4,4)}, {vr(HB+4,4)}, {vr(Z+4*tau,4)}")
    e("  s_nop 4")
    for i in range(16):
        e(f"  v_exp_f32 v{Z+i}, v{Z+i}")
    e("  s_nop 1")
    e(f"  v_mfma_f32_32x32x8_bf16 {vr(Z,16)}, {vr(ONE,2)}, {vr(ONE,2)}, {vr(Z,16)}")
    if OPT["dsplit"]:
        e("  s_waitcnt lgkmcnt(0)")
        e(f"  s_cmp_gt_u32 s{sNT}, {NS}")
        e(f"  s_cbranch_scc0 L_nh{k}")
        e(f"  s_add_u32 m0, s{sRing}, {so}")
        e("  s_nop 0")
        e(f"  buffer_load_dwordx4 {vr(vP0,2)}, s[{rH}:{rH+3}], 0 idxen offen{OPT['nt_hist']} lds")
        e(f"L_nh{k}:")
        e("  s_nop 8")
    else:
        e("  s_nop 11")
    for i in range(16):
        e(f"  v_rcp_f32 v{Z+i}, v{Z+i}")
    for i in range(8):
        e(f"  v_cvt_pk_bf16_f32 v{HB+i}, v{Z+2*i}, v{Z+2*i+1}")
    if general:
        e(f"  ds_read_b128 {vr(MK,4)}, v{vML} offset:{64*slot}")
    else:
        e("  s_nop 0")
    e(f"  v_mfma_f32_16x16x32_bf16 {vr(D2,4)}, {vr(HB,4)}, {vr(W2,4)}, {vr(B2,4)}")
    e(f"  v_mfma_f32_16x16x32_bf16 {vr(D2,4)}, {vr(HB+4,4)}, {vr(W2+4,4)}, {vr(D2,4)}")
    if slot == NS - 1 and general:
        e(f"  v_add_u32 v{vML}, {64*NS}, v{vML}")
    e("  s_nop 7")
    e("  s_waitcnt lgkmcnt(0)")
    if general:
        for i in range(4):
            e(f"  v_mul_f32 v{D2+i}, v{MK+i}, v{D2+i}")
    e(f"  v_cvt_pk_bf16_f32 v{SP}, v{D2}, v{D2+1}")
    e(f"  v_cvt_pk_bf16_f32 v{SP+1}, v{D2+2}, v{D2+3}")
    e(f"  s_cmp_gt_u32 s{sNT}, {HYB - 1 if HYB else (2 if D25 else DIST)}")
    e("  s_nop 0")
    for d in range(4):
        e(f"  v_mfma_f32_16x16x16_bf16 {vr(D3+4*d,4)}, {vr(SP,2)}, {vr(HT+2*d,2)}, {vr(D3+4*d,4)}")
    if OPT["acc"]:
        e("  s_memtime s[40:41]")
        e("  s_waitcnt lgkmcnt(0)")
    e(f"  s_cbranch_scc0 {'L_h2' if HYB else 'L_nd'}{k}")
    if D25:
        e(f"  s_add_u32 m0, s{sRing}, {((slot + 2) % NS) * 2048 + 1024}")
        e(f"  s_cmp_gt_u32 s{sNT}, 3")
        e(f"  buffer_load_dwordx4 {vr(vP1,2)}, s[{rH}:{rH+3}], 0 idxen offen{OPT['nt_hist']} lds")
        e(f"  s_cbranch_scc0 L_nd{k}")
        e(f"  s_add_u32 m0, s{sRing}, {so}")
        e("  s_nop 0")
        e(f"  buffer_load_dwordx4 {vr(vP0,2)}, s[{rH}:{rH+3}], 0 idxen offen{OPT['nt_hist']} lds")
    elif not OPT["dsplit"]:
        e(f"  s_add_u32 m0, s{sRing}, {sd_}")
        e("  s_nop 0")
        e(f"  buffer_load_dwordx4 {vr(vP0,2)}, s[{rH}:{rH+3}], 0 idxen offen{OPT['nt_hist']} lds")
    if not D25:
        e(f"  s_add_u32 m0, s{sRing}, {sd_+1024}")
        e("  s_nop 0")
        e(f"  buffer_load_dwordx4 {vr(vP1,2)}, s[{rH}:{rH+3}], 0 idxen offen{OPT['nt_hist']} lds")
    if HYB:
        e(f"  s_add_u32 s{sK3}, s{sK3}, 1")
        e(f"  s_branch L_nd{k}")
        e(f"L_h2{k}:")
        e(f"  s_sub_u32 s{sTmp}, s{sN}, s{sNT}")
        e(f"  s_add_u32 s{sTmp}, s{sTmp}, 2")
        e(f"  s_cmp_eq_u32 s{sTmp}, s{sK3}")
        e(f"  s_cbranch_scc0 L_nd{k}")
        e(f"  s_cmp_gt_u32 s{sNT}, 2")
        e(f"  s_cbranch_scc0 L_nd{k}")
        e(f"  s_add_u32 m0, s{sRing}, {((slot + 2) % NS) * 2048}")
        e(f"  s_add_u32 s{sK3}, s{sK3}, 1")
        e(f"  buffer_load_dwordx4 {vr(vP0,2)}, s[{rH}:{rH+3}], 0 idxen offen{OPT['nt_hist']} lds")
        e(f"  s_add_u32 m0, s{sRing}, {((slot + 2) % NS) * 2048 + 1024}")
        e("  s_nop 0")
        e(f"  buffer_load_dwordx4 {vr(vP1,2)}, s[{rH}:{rH+3}], 0 idxen offen{OPT['nt_hist']} lds")
    e(f"L_nd{k}:")
    if OPT["acc"]:
        e("  s_memtime s[42:43]")
        e("  s_waitcnt lgkmcnt(0)")
        e("  s_sub_u32 s40, s42, s40")
        e("  s_add_u32 s45, s45, s40")
    if slot == NS - 1:
        e(f"  v_add_u32 v{vL}, {16*NS}, v{vL}")
    e(f"  s_sub_u32 s{sNT}, s{sNT}, 1")
    e(f"  s_cmp_eq_u32 s{sNT}, 0")
    e(f"  s_cbranch_scc1 {lab_exit}")

e("L_bin0:")
for slot in range(NS):
    tile(slot, False, "L_out")
e("  s_branch L_bin0")
e("L_gen0:")
for slot in range(NS):
    tile(slot, True, "L_out")
e("  s_branch L_gen0")
for k in tails:
    e(f"L_tw{k}:")
    if OPT["hyb"]:
        e(f"  s_cmp_gt_u32 s{sNT}, 1")
        e(f"  s_cbranch_scc0 L_tw{k}_1")
        e("  s_waitcnt vmcnt(2)")
        e(f"  s_branch L_aw{k}")
        e(f"L_tw{k}_1:")
    for r in range((1 if OPT["hyb"] else DIST - 1), 1, -1):
        e(f"  s_cmp_eq_u32 s{sNT}, {r}")
        e(f"  s_cbranch_scc0 L_tw{k}_{r}")
        e(f"  s_waitcnt vmcnt({2*(r-1)})")
        e(f"  s_branch L_aw{k}")
        e(f"L_tw{k}_{r}:")
    e("  s_waitcnt vmcnt(0)")
    e(f"  s_branch L_aw{k}")

e("L_out:")
stamp(8)
e("  s_nop 7")
e(f"  v_lshl_add_u32 v{Z}, v{vLane}, 1, s{sE3}")
e(f"  v_cndmask_b32_e64 v{Z+1}, v{D3}, v{D3+4}, s[{sC0}:{sC0+1}]")
e(f"  v_cndmask_b32_e64 v{Z+1}, v{Z+1}, v{D3+8}, s[{sC1}:{sC1+1}]")
e(f"  v_cndmask_b32_e64 v{Z+1}, v{Z+1}, v{D3+12}, s[{sC2}:{sC2+1}]")
e(f"  v_cvt_pk_bf16_f32 v{Z+1}, v{Z+1}, v{Z+1}")
e(f"  global_store_short v{Z}, v{Z+1}, s[{sO}:{sO+1}]{OPT['nt_out']}")
if OPT["endwait"] or OPT["stamp"]:
    e("  s_waitcnt vmcnt(0)")
if OPT["stamp"]:
    stamp(9)
    e(f"  s_getreg_b32 s{STAMP0}, hwreg(HW_REG_XCC_ID)")
    e(f"  v_writelane_b32 v{vST}, s{STAMP0}, 10")
    e(f"  v_writelane_b32 v{vST}, s{sN}, 11")
    if OPT["acc"]:
        e(f"  v_writelane_b32 v{vST}, s44, 14")
        e(f"  v_writelane_b32 v{vST}, s45, 15")
    e(f"  s_lshl_b32 s{sTmp}, s{sB}, 6")
    e(f"  s_add_u32 s88, s86, s{sTmp}")
    e(f"  s_addc_u32 s89, s87, 0")
    e(f"  s_and_b32 s89, s89, 0xffff")
    e(f"  s_mov_b32 s90, 64")
    e(f"  s_mov_b32 s91, 0x20000")
    e(f"  v_lshlrev_b32 v{Z}, 2, v{vLane}")
    e(f"  buffer_store_dword v{vST}, v{Z}, s[88:91], 0 offen")
    e("  s_waitcnt vmcnt(0)")
e("L_end:")
e("  s_endpgm")
e('.section .rodata,"a"')
e(".p2align 6")
e(f".amdhsa_kernel {NAME}_kernel")
e("  .amdhsa_next_free_vgpr 128")
e("  .amdhsa_next_free_sgpr 96")
e("  .amdhsa_accum_offset 128")
e("  .amdhsa_group_segment_fixed_size 0")
e("  .amdhsa_kernarg_size 80")
e("  .amdhsa_user_sgpr_count 2")
e("  .amdhsa_user_sgpr_kernarg_segment_ptr 1")
e("  .amdhsa_system_sgpr_workgroup_id_x 1")
e("  .amdhsa_float_denorm_mode_32 3")
e(".end_amdhsa_kernel")
open(sys.argv[1], "w").write("\n".join(x for x in out if x is not None) + "\n")
```

```python
import sys

NAME = "standalone__sequential_behavior_din__recsys"
OPT = dict(nt_hist=" nt", nt_mask=" nt", nt_out="", stamp=0, prio=1, mprio=3, lprio=1,
           p1=0, p2=2, q1=-2, q2=1, t2=3, t1=1, split=8, acc=0, mbar=0, sp0=13, pf=0, pfn=44, endwait=1, sharec=1, cw0=4, earlyc=1, exact=0, dsplit=0, e3=0, dist=3, hyb=6, dt2=0, dt1=0, tab2=5432, tab1=2211)
for a in sys.argv[2:]:
    k, v = a.split("=", 1)
    if k.startswith("nt_"):
        OPT[k] = (" " + v.replace("+", " ")) if v else ""
    else:
        OPT[k] = int(v)

out = []
def e(s=""):
    out.append(s)

NS = 3
BB = 0
W2A = 256
W2C = 320
B2B = 384
TB = 512
LIST = TB + 2048
RING = LIST + 16 * 256
RPW = NS * 2048 + 1024
MOFF = NS * 2048
PFB = RING + 16 * RPW
QB = PFB + 16384
CSTR = 272
CB = QB + 8192
LDS_BYTES = CB + 16 * CSTR
CFLAG = 448
assert LDS_BYTES <= 163840 and RING % 16 == 0

M, C, D3, W2, B2, Z, HB, HT, D2 = 0, 32, 48, 64, 72, 76, 92, 100, 108
SP = D2
ONE = 112
vA0, vA1 = 114, 115
vT = [116, 117, 118, 119]
vP0, vP1 = 120, 122
vDC0, vDC1 = 121, 123
vL, vML = 124, 125
vLane, vQ16 = 126, 127
vST = vML
MK = Z

def vr(b, n=1):
    return f"v{b}" if n == 1 else f"v[{b}:{b+n-1}]"

sT, sH, sMk, sW1, sB1, sW2, sB2, sO = 4, 6, 8, 10, 12, 14, 16, 18
sWave, sB = 20, 21
rH = 24
sRing, sList, sN, sNT = 56, 57, 58, 59
sC0, sC1, sC2, sC3 = 60, 62, 64, 66
sK1, sK2, sK3 = 69, 70, 71
sScale, sTmp, sTmp2 = 72, 74, 75
sBad, sDmy = 76, 78
STAMP0 = 84
sE0, sE1, sE2, sE3 = 88, 90, 92, 94

def stamp(i):
    if OPT["stamp"]:
        e(f"  s_memrealtime s[{STAMP0}:{STAMP0+1}]")
        e("  s_waitcnt lgkmcnt(0)")
        e(f"  v_writelane_b32 v{vST}, s{STAMP0}, {i}")
        if i in (6, 8):
            e(f"  s_memtime s[{STAMP0}:{STAMP0+1}]")
            e("  s_waitcnt lgkmcnt(0)")
            e(f"  v_writelane_b32 v{vST}, s{STAMP0}, {12 if i == 6 else 13}")

def prio(p):
    if OPT["prio"]:
        e(f"  s_setprio {p}")

def dma(pair, slot, hf, filler="  s_nop 0"):
    e(f"  s_add_u32 m0, s{sRing}, {slot*2048+hf*1024}")
    e(filler)
    e(f"  buffer_load_dwordx4 {vr(pair,2)}, s[{rH}:{rH+3}], 0 idxen offen{OPT['nt_hist']} lds")

hdr = open("cdna_kernels/" + NAME + ".s.ref").read().split("; Override launch")[0]
e(hdr.rstrip())
e(f"; @launch grid=(256,1,1) block=(1024,1,1) lds={LDS_BYTES}")
for line in """
 DIN local activation unit, one wave per batch row, 16 waves (rows) per workgroup.
   z = hist (Wa + Wc + diag(t) Wd) + t (Wb - Wc) + b1      (w1 = [Wa; Wb; Wc; Wd], t = target row)
   out = sum_l mask_l (sigmoid(z_l) . w2 + b2) hist_l
 Rows whose mask is zero contribute nothing and are never fetched: each wave compacts the indices of its active
 rows and gathers them, 16 rows per tile, into a three-slot LDS ring with LDS-DMA loads (padding rows read as zero).
 Start-up: every wave converts a 4-row slice of w1 into the shared operand images [P'|Wd'] and Q' (scaled by
 -log2 e); after one barrier it builds its own M' = P' + diag(t) Wd' with MFMAs against a [1|t] selector; four waves
 compute c' = b1' + Q'^T t for all 16 rows and publish it through an LDS counter.
 Tile: Z^T = M'^T H^T + c' (MFMA), exp2, +1 (one 32x32 MFMA against a unit outer product), rcp, bf16 pack,
 scores = sigma w2 + b2 (MFMA), out += scores H (MFMA on transposed LDS reads).
 Masks that are not exactly 0 or 1 take a second loop that multiplies the scores by the mask values.
""".strip("\n").split("\n"):
    e(";" + line)
e('.amdgcn_target "amdgcn-amd-amdhsa--gfx950"')
e(".text")
e(f".globl {NAME}_kernel")
e(".p2align 8")
e(f".type {NAME}_kernel,@function")
e(f"{NAME}_kernel:")
e("  s_cmp_ge_u32 s2, 256")
e("  s_cbranch_scc1 L_end")
stamp(0)
e("  s_load_dwordx16 s[4:19], s[0:1], 0")
if OPT["stamp"]:
    e("  s_load_dwordx2 s[86:87], s[0:1], 72")
prio(3)
X0 = W2
q_ = Z + 1
vMo, vWo, vWo2 = Z + 6, Z + 7, Z + 8
e(f"  v_lshrrev_b32 v{Z}, 6, v0")
e(f"  v_and_b32 v{vLane}, 63, v0")
e(f"  s_lshl_b32 s{sB}, s2, 4")
e(f"  v_readfirstlane_b32 s{sWave}, v{Z}")
e(f"  v_mov_b32 v{X0}, 0")
e(f"  v_mov_b32 v{X0+1}, 0")
e(f"  s_add_u32 s{sB}, s{sB}, s{sWave}")
e(f"  s_mul_i32 s{sTmp}, s{sB}, 400")
e(f"  s_mul_i32 s{sRing}, s{sWave}, {RPW}")
e(f"  v_lshl_add_u32 v{vMo}, v{vLane}, 3, s{sTmp}")
e(f"  v_and_b32 v{Z+2}, 32, v{vLane}")
e(f"  v_and_b32 v{Z+3}, 31, v{vLane}")
e(f"  s_lshl_b32 s{sTmp2}, s{sWave}, 9")
e(f"  v_lshlrev_b32 v{Z+2}, 9, v{Z+2}")
e(f"  s_add_u32 s{sK3}, s{sTmp2}, {24576-1024}")
e(f"  v_lshl_add_u32 v{vWo}, v{Z+3}, 4, s{sTmp2}")
e(f"  v_lshl_add_u32 v{vWo2}, v{Z+3}, 4, s{sK3}")
e(f"  s_bfm_b64 s[{sC0}:{sC0+1}], 50, 0")
e(f"  v_add_u32 v{vWo}, v{vWo}, v{Z+2}")
e(f"  v_sub_u32 v{vWo2}, v{vWo2}, v{Z+2}")
e(f"  s_add_u32 s{sRing}, s{sRing}, {RING}")
e(f"  s_add_u32 m0, s{sRing}, 4096")
e(f"  s_mov_b64 exec, s[{sC0}:{sC0+1}]")
e("  s_waitcnt lgkmcnt(0)")
stamp(1)
e(f"  global_load_dwordx2 {vr(X0,2)}, v{vMo}, s[{sMk}:{sMk+1}]{OPT['nt_mask']}")
e("  s_mov_b64 exec, -1")
if OPT["mbar"]:
    e("  s_barrier")
prio(2)
e(f"  global_load_lds_dwordx4 v{vWo}, s[{sW1}:{sW1+1}]")
e(f"  global_load_lds_dwordx4 v{vWo2}, s[{sW1}:{sW1+1}] offset:1024")
e(f"  v_lshrrev_b32 v{q_}, 4, v{vLane}")
if OPT["pf"]:
    e(f"  s_cmp_lt_u32 s2, {OPT['pf']}")
    e("  s_cbranch_scc0 L_nopf")
    e(f"  s_cmp_eq_u32 s{sWave}, 3")
    e("  s_cbranch_scc0 L_nopf")
    e("  s_getpc_b64 s[78:79]")
    e("L_pc:")
    e(f"  s_sub_u32 s78, s78, L_pc-{NAME}_kernel")
    e("  s_subb_u32 s79, s79, 0")
    e(f"  v_lshlrev_b32 v{M+28}, 7, v{vLane}")
    e(f"  s_bfm_b64 exec, {OPT['pfn']}, 0")
    e(f"  global_load_dword v{M+29}, v{M+28}, s[78:79]")
    e("  s_mov_b64 exec, -1")
    e("L_nopf:")
SB1, SB2 = M + 24, M + 25
SP0 = OPT["sp0"]
e(f"  s_sub_u32 s{sE2}, s{sWave}, {SP0}")
e(f"  s_cmp_gt_u32 s{sE2}, 2")
e("  s_cbranch_scc1 L_nosmall")
e(f"  s_cmp_eq_u32 s{sE2}, 1")
e("  s_cbranch_scc1 L_w14")
e(f"  s_cmp_eq_u32 s{sE2}, 2")
e("  s_cbranch_scc1 L_w15")
e(f"  v_mov_b32 v{SB1}, 0")
e(f"  v_lshlrev_b32 v{M+26}, 1, v{vLane}")
e(f"  global_load_short_d16_hi v{SB1}, v{M+26}, s[{sB1}:{sB1+1}]")
e("  s_branch L_nosmall")
e("L_w14:")
e(f"  s_lshl_b32 s{sTmp2}, s2, 11")
e(f"  v_lshl_add_u32 v{M+26}, v{vLane}, 4, s{sTmp2}")
e(f"  s_mov_b32 m0, {TB}")
e("  s_nop 0")
e(f"  global_load_lds_dwordx4 v{M+26}, s[{sT}:{sT+1}]")
e(f"  global_load_lds_dwordx4 v{M+26}, s[{sT}:{sT+1}] offset:1024")
e("  s_branch L_nosmall")
e("L_w15:")
e(f"  v_bfe_u32 v{M+26}, v{vLane}, 4, 1")
e(f"  v_lshlrev_b32 v{M+26}, 6, v{M+26}")
e(f"  v_bfe_u32 v{M+27}, v{vLane}, 1, 1")
e(f"  v_lshl_add_u32 v{M+26}, v{M+27}, 5, v{M+26}")
e(f"  v_bfe_u32 v{M+27}, v{vLane}, 2, 2")
e(f"  v_lshl_add_u32 v{M+26}, v{M+27}, 3, v{M+26}")
e(f"  v_and_b32 v{M+27}, 1, v{vLane}")
e(f"  v_lshl_add_u32 v{M+26}, v{M+27}, 2, v{M+26}")
e(f"  v_mov_b32 v{SB2}, 0")
e(f"  v_mov_b32 v{M+27}, 0")
e(f"  s_mov_b32 m0, {W2A}")
e(f"  global_load_short_d16_hi v{SB2}, v{M+27}, s[{sB2}:{sB2+1}]")
e(f"  s_bfm_b64 exec, 32, 0")
e(f"  global_load_lds_dword v{M+26}, s[{sW2}:{sW2+1}]")
e("  s_mov_b64 exec, -1")
e("L_nosmall:")
e(f"  s_lshl_b32 s{sList}, s{sWave}, 8")
e(f"  s_add_u32 s{sList}, s{sList}, {LIST}")
e(f"  v_mov_b32 v{M}, -1")
e(f"  v_lshl_add_u32 v{Z+3}, v{vLane}, 2, s{sList}")
e(f"  ds_write_b32 v{Z+3}, v{M}")
t0, t1, t2, t3, t4 = Z, q_, Z + 2, Z + 3, Z + 4
PFA, QWA, RWA = D3, D3 + 2, D3 + 3
e(f"  s_mul_i32 s{sTmp}, s{sB}, 25600")
e(f"  v_and_b32 v{t2}, 7, v{vLane}")
e(f"  s_add_u32 s{rH}, s{sH}, s{sTmp}")
e(f"  v_xor_b32 v{t2}, v{t2}, v{t1}")
e(f"  s_addc_u32 s{rH+1}, s{sH+1}, 0")
e(f"  v_lshlrev_b32 v{vDC0}, 4, v{t2}")
e(f"  s_or_b32 s{rH+1}, s{rH+1}, {128 << 16}")
e(f"  v_xor_b32 v{vDC1}, 64, v{vDC0}")
e(f"  s_mov_b32 s{rH+2}, 200")
e(f"  v_lshrrev_b32 v{t2}, 3, v{vLane}")
e(f"  s_mov_b32 s{rH+3}, 0x20000")
e(f"  v_add_u32 v{vL}, s{sList}, v{t2}")
vR = [Z + 11, Z + 12, Z + 13, Z + 14]
e(f"  v_lshlrev_b32 v{vR[0]}, 2, v{vLane}")
e(f"  s_mov_b32 s{sK1}, 0xffff")
for i in range(1, 4):
    e(f"  v_add_u32 v{vR[i]}, {i}, v{vR[0]}")
pos = [Z + 2, Z + 3, Z + 4, Z + 5]
prio(1)
vPA = D2
vTA, vQA = Z + 9, Z + 15
vM0, vM1 = D2 + 2, D2 + 3
S = []
S.append(f"  s_mov_b32 s{sK2}, 0xffff0000")
S.append(f"  s_mov_b32 s{sScale}, 0xbfb8aa3b")
S.append(f"  s_mov_b32 s{sScale+1}, 0xbfb8aa3b")
S.append(f"  s_lshr_b32 s{sE0}, s{sWave}, 3")
S.append(f"  s_and_b32 s{sE0+1}, s{sWave}, 1")
S.append(f"  s_bfe_u32 s{sE1}, s{sWave}, 0x20001")
S.append(f"  s_lshl_b32 s{sTmp}, s{sE0}, 11")
S.append(f"  s_lshl_b32 s{sK3}, s{sE0+1}, 10")
S.append(f"  s_add_u32 s{sTmp}, s{sTmp}, s{sK3}")
S.append(f"  s_lshl_b32 s{sK3}, s{sE1}, 8")
S.append(f"  s_add_u32 s{sTmp}, s{sTmp}, s{sK3}")
S.append(f"  s_add_u32 s{sTmp}, s{sTmp}, {PFB}")
S.append(f"  s_lshl_b32 s{sE0}, s{sE0}, 10")
S.append(f"  s_add_u32 s{sE0}, s{sE0}, s{sK3}")
S.append(f"  s_lshl_b32 s{sE0+1}, s{sE0+1}, 3")
S.append(f"  s_add_u32 s{sE0}, s{sE0}, s{sE0+1}")
S.append(f"  s_add_u32 s{sE0}, s{sE0}, {QB}")
S.append(f"  s_add_u32 s{sK3}, s{sRing}, 4096")
S.append(f"  s_lshl_b32 s{sE1}, s{sWave}, 7")
S.append(f"  s_add_u32 s{sE1}, s{sE1}, {TB}")
V = []
V.append(f"  v_and_b32 v{t0}, 15, v{vLane}")
V.append(f"  v_lshrrev_b32 v{t2}, 1, v{t0}")
V.append(f"  v_xor_b32 v{t2}, v{t2}, v{t1}")
V.append(f"  v_lshlrev_b32 v{t2}, 4, v{t2}")
V.append(f"  v_lshl_add_u32 v{t2}, v{t0}, 7, v{t2}")
V.append(f"  v_add_u32 v{vA0}, s{sRing}, v{t2}")
V.append(f"  v_xor_b32 v{vA1}, 64, v{vA0}")
V.append(f"  v_lshrrev_b32 v{t2}, 2, v{t0}")
V.append(f"  v_and_b32 v{RWA}, 3, v{vLane}")
V.append(f"  v_cmp_eq_u32_e64 s[{sC1}:{sC1+1}], v{t2}, v{t1}")
V.append(f"  v_lshlrev_b32 v{RWA}, 3, v{RWA}")
V.append(f"  v_lshl_add_u32 v{RWA}, v{t2}, 7, v{RWA}")
V.append(f"  v_lshl_add_u32 v{RWA}, v{t1}, 5, v{RWA}")
V.append(f"  v_lshl_add_u32 v{t2}, v{t1}, 2, v{t2}")
V.append(f"  v_lshrrev_b32 v{t3}, 1, v{t2}")
V.append(f"  v_bfe_u32 v{t4}, v{vLane}, 1, 1")
V.append(f"  v_xor_b32 v{t3}, v{t3}, v{t4}")
V.append(f"  v_lshlrev_b32 v{t3}, 4, v{t3}")
V.append(f"  v_lshl_add_u32 v{t3}, v{t2}, 7, v{t3}")
V.append(f"  v_and_b32 v{t2}, 1, v{vLane}")
V.append(f"  v_lshl_add_u32 v{t3}, v{t2}, 3, v{t3}")
V.append(f"  v_lshlrev_b32 v{vQ16}, 4, v{t1}")
V.append(f"  v_add_u32 v{vT[0]}, s{sRing}, v{t3}")
V.append(f"  v_lshlrev_b32 v{t0}, 4, v{t0}")
for d in range(1, 4):
    V.append(f"  v_xor_b32 v{vT[d]}, {32*d}, v{vT[0]}")
for i in range(max(len(S), len(V))):
    if i < len(V): e(V[i])
    if i < len(S): e(S[i])
e(f"  v_lshl_add_u32 v{PFA}, v{t1}, 12, v{t0}")
e(f"  v_lshl_add_u32 v{QWA}, v{t1}, 11, v{t0}")
e(f"  v_add_u32 v{RWA}, s{sK3}, v{RWA}")
e(f"  v_add_u32 v{PFA}, s{sTmp}, v{PFA}")
e(f"  v_add_u32 v{QWA}, s{sE0}, v{QWA}")
e(f"  v_add_u32 v{vTA}, s{sE1}, v{vQ16}")
e(f"  v_lshlrev_b32 v{vPA}, 4, v{vLane}")
e(f"  v_add_u32 v{vQA}, {QB}, v{vPA}")
e(f"  v_add_u32 v{vPA}, {PFB}, v{vPA}")
e(f"  v_lshlrev_b32 v{t2}, 4, v{t2}")
e(f"  v_mov_b32 v{t3}, 0xffff")
e(f"  v_lshlrev_b32 v{t3}, v{t2}, v{t3}")
e(f"  v_cmp_gt_u32 vcc, 32, v{vLane}")
e(f"  v_cndmask_b32_e64 v{t3}, 0, v{t3}, s[{sC1}:{sC1+1}]")
e(f"  v_cmp_eq_u32_e64 s[{sC1}:{sC1+1}], 0, v{t4}")
e(f"  v_mov_b32 v{t0}, 0x3f80")
e(f"  v_mov_b32 v{pos[0]}, s{sList}")
e(f"  v_cndmask_b32 v{ONE}, 0, v{t0}, vcc")
e(f"  v_mov_b32 v{ONE+1}, 0")
e(f"  v_cndmask_b32_e64 v{vM0}, 0, v{t3}, s[{sC1}:{sC1+1}]")
e(f"  v_cndmask_b32_e64 v{vM1}, v{t3}, 0, s[{sC1}:{sC1+1}]")
AD = HB + 4
e(f"  s_mov_b32 s{sTmp}, 0x3f803f80")
e(f"  v_and_b32 v{AD}, s{sTmp}, v{vM0}")
e(f"  v_and_b32 v{AD+1}, s{sTmp}, v{vM1}")
if OPT["exact"]:
    e(f"  s_cmp_gt_u32 s{sE2}, 2")
    e("  s_cbranch_scc1 L_mw2")
    e(f"  s_cmp_eq_u32 s{sE2}, 0")
    e("  s_cbranch_scc1 L_mw3")
    e("  s_waitcnt vmcnt(4)")
    e("  s_branch L_mwd")
    e("L_mw3:")
    e("  s_waitcnt vmcnt(3)")
    e("  s_branch L_mwd")
    e("L_mw2:")
e("  s_waitcnt vmcnt(2)")
if OPT["exact"]:
    e("L_mwd:")
stamp(2)
prio(3)
e(f"  v_cmp_ne_u16_e64 s[{sC0}:{sC0+1}], 0, v{X0}")
e(f"  v_cmp_lt_u32_e64 s[{sC1}:{sC1+1}], s{sK1}, v{X0}")
e(f"  v_cmp_ne_u16_e64 s[{sC2}:{sC2+1}], 0, v{X0+1}")
e(f"  v_cmp_lt_u32_e64 s[{sC3}:{sC3+1}], s{sK1}, v{X0+1}")
e(f"  v_mbcnt_lo_u32_b32 v{pos[0]}, s{sC0}, v{pos[0]}")
e(f"  v_mbcnt_hi_u32_b32 v{pos[0]}, s{sC0+1}, v{pos[0]}")
for c in (sC1, sC2, sC3):
    e(f"  v_mbcnt_lo_u32_b32 v{pos[0]}, s{c}, v{pos[0]}")
    e(f"  v_mbcnt_hi_u32_b32 v{pos[0]}, s{c+1}, v{pos[0]}")
e(f"  s_mov_b64 exec, s[{sC0}:{sC0+1}]")
e(f"  ds_write_b8 v{pos[0]}, v{vR[0]}")
e("  s_mov_b64 exec, -1")
e(f"  v_addc_co_u32_e64 v{pos[1]}, s[{sDmy}:{sDmy+1}], 0, v{pos[0]}, s[{sC0}:{sC0+1}]")
e(f"  v_addc_co_u32_e64 v{pos[2]}, s[{sDmy}:{sDmy+1}], 0, v{pos[1]}, s[{sC1}:{sC1+1}]")
e(f"  v_addc_co_u32_e64 v{pos[3]}, s[{sDmy}:{sDmy+1}], 0, v{pos[2]}, s[{sC2}:{sC2+1}]")
for i, c in ((1, sC1), (2, sC2), (3, sC3)):
    e(f"  s_mov_b64 exec, s[{c}:{c+1}]")
    e(f"  ds_write_b8 v{pos[i]}, v{vR[i]}")
e("  s_mov_b64 exec, -1")
e(f"  ds_read_u8 v{vP0}, v{vL}")
e(f"  ds_read_u8 v{vP1}, v{vL} offset:8")
if OPT["e3"]:
    e(f"  ds_read_u8 v{M+8}, v{vL} offset:16")
e(f"  s_bcnt1_i32_b64 s{sN}, s[{sC0}:{sC0+1}]")
e(f"  s_bcnt1_i32_b64 s{sK3}, s[{sC1}:{sC1+1}]")
e(f"  s_add_u32 s{sN}, s{sN}, s{sK3}")
e(f"  s_bcnt1_i32_b64 s{sK3}, s[{sC2}:{sC2+1}]")
e(f"  s_add_u32 s{sN}, s{sN}, s{sK3}")
e(f"  s_bcnt1_i32_b64 s{sK3}, s[{sC3}:{sC3+1}]")
e(f"  s_add_u32 s{sN}, s{sN}, s{sK3}")
e(f"  s_waitcnt lgkmcnt({2 if OPT['e3'] else 1})")
dma(vP0, 0, 0)
e(f"  s_waitcnt lgkmcnt({1 if OPT['e3'] else 0})")
dma(vP1, 0, 1)
if OPT["e3"]:
    if OPT["e3"] > 1:
        e(f"  s_cmp_lt_u32 s{sWave}, {OPT['split']}")
        e(f"  s_cbranch_scc{0 if OPT['e3'] == 2 else 1} L_noe3")
    e("  s_waitcnt lgkmcnt(0)")
    dma(M + 8, 1, 0, f"  v_mov_b32 v{M+9}, v{vDC0}")
    if OPT["e3"] > 1:
        e("  s_waitcnt vmcnt(3)")
        e("  s_branch L_e3d")
        e("L_noe3:")
        e("  s_waitcnt vmcnt(2)")
        e("L_e3d:")
    else:
        e("  s_waitcnt vmcnt(3)")
stamp(3)
prio(2)
RW = M + 16
if not OPT["e3"]:
    e("  s_waitcnt vmcnt(2)")
stamp(4)
for m in range(4):
    e(f"  ds_read_b64_tr_b16 {vr(RW+2*m,2)}, v{RWA} offset:{512*m}")
e(f"  ds_read_u8 v{vP0}, v{vL} offset:16")
e(f"  ds_read_u8 v{vP1}, v{vL} offset:24")
e(f"  s_add_u32 s{sNT}, s{sN}, 15")
e(f"  s_lshr_b32 s{sNT}, s{sNT}, 4")
e(f"  s_movk_i32 s{sTmp}, 0x3f80")
e(f"  v_cmp_eq_u16_e64 s[{sE0}:{sE0+1}], s{sTmp}, v{X0}")
e(f"  v_cmp_eq_u16_e64 s[{sE2}:{sE2+1}], s{sTmp}, v{X0+1}")
e(f"  v_cmp_eq_u16_sdwa s[{sE1}:{sE1+1}], v{X0}, s{sTmp} src0_sel:WORD_1 src1_sel:WORD_0")
e(f"  v_cmp_eq_u16_sdwa s[{sE3}:{sE3+1}], v{X0+1}, s{sTmp} src0_sel:WORD_1 src1_sel:WORD_0")
e(f"  s_xor_b64 s[{sBad}:{sBad+1}], s[{sE0}:{sE0+1}], s[{sC0}:{sC0+1}]")
e(f"  s_xor_b64 s[{sE2}:{sE2+1}], s[{sE2}:{sE2+1}], s[{sC2}:{sC2+1}]")
e(f"  s_or_b64 s[{sBad}:{sBad+1}], s[{sBad}:{sBad+1}], s[{sE2}:{sE2+1}]")
for a_, b_ in ((sE1, sC1), (sE3, sC3)):
    e(f"  s_xor_b64 s[{a_}:{a_+1}], s[{a_}:{a_+1}], s[{b_}:{b_+1}]")
    e(f"  s_or_b64 s[{sBad}:{sBad+1}], s[{sBad}:{sBad+1}], s[{a_}:{a_+1}]")
e(f"  s_cmp_lg_u64 s[{sBad}:{sBad+1}], 0")
e("  s_cbranch_scc0 L_binmask")
e(f"  s_add_u32 s{sTmp}, s{sRing}, {MOFF}")
for i in range(4):
    e(f"  v_mov_b32 v{M+i}, 0")
e(f"  v_lshl_add_u32 v{Z+6}, v{vLane}, 4, s{sTmp}")
e(f"  ds_write_b128 v{Z+6}, {vr(M,4)}")
e(f"  v_add_u32 v{vML}, s{sTmp}, v{vQ16}")
e(f"  v_lshlrev_b32 v{M+4}, 16, v{X0}")
e(f"  v_and_b32 v{M+5}, s{sK2}, v{X0}")
e(f"  v_lshlrev_b32 v{M+6}, 16, v{X0+1}")
e(f"  v_and_b32 v{M+7}, s{sK2}, v{X0+1}")
for i in range(4):
    e(f"  v_subrev_u32 v{pos[i]}, s{sList}, v{pos[i]}")
    e(f"  v_lshl_add_u32 v{pos[i]}, v{pos[i]}, 2, s{sTmp}")
for i, c in enumerate((sC0, sC1, sC2, sC3)):
    e(f"  s_mov_b64 exec, s[{c}:{c+1}]")
    e(f"  ds_write_b32 v{pos[i]}, v{M+4+i}")
e("  s_mov_b64 exec, -1")
e("L_binmask:")
W1R = M
Wa, Wc, Wd, Wb_ = W1R, W1R + 4, W1R + 8, W1R + 12
e("  s_waitcnt lgkmcnt(0)")
for m in range(4):
    for r in range(2):
        e(f"  v_lshlrev_b32 v{W1R+4*m+2*r}, 16, v{RW+2*m+r}")
        e(f"  v_and_b32 v{W1R+4*m+2*r+1}, s{sK2}, v{RW+2*m+r}")
for p in range(2):
    e(f"  v_pk_add_f32 {vr(Wa+2*p,2)}, {vr(Wa+2*p,2)}, {vr(Wc+2*p,2)}")
for p in range(2):
    e(f"  v_pk_add_f32 {vr(Wb_+2*p,2)}, {vr(Wb_+2*p,2)}, {vr(Wc+2*p,2)} neg_lo:[0,1] neg_hi:[0,1]")
for base in (Wa, Wd, Wb_):
    for p in range(2):
        e(f"  v_pk_mul_f32 {vr(base+2*p,2)}, {vr(base+2*p,2)}, s[{sScale}:{sScale+1}]")
e(f"  v_cvt_pk_bf16_f32 v{RW+2}, v{Wd}, v{Wd+1}")
e(f"  v_cvt_pk_bf16_f32 v{RW+3}, v{Wd+2}, v{Wd+3}")
e(f"  v_cvt_pk_bf16_f32 v{RW}, v{Wa}, v{Wa+1}")
e(f"  v_cvt_pk_bf16_f32 v{RW+1}, v{Wa+2}, v{Wa+3}")
e(f"  v_cvt_pk_bf16_f32 v{RW+6}, v{Wb_}, v{Wb_+1}")
e(f"  v_cvt_pk_bf16_f32 v{RW+7}, v{Wb_+2}, v{Wb_+3}")
e(f"  ds_write_b128 v{PFA}, {vr(RW,4)}")
e(f"  ds_write_b64 v{QWA}, {vr(RW+6,2)}")
e(f"  s_cmp_eq_u32 s{sWave}, {SP0}")
e("  s_cbranch_scc0 L_nb1")
e(f"  v_mul_f32 v{SB1}, s{sScale}, v{SB1}")
e(f"  v_lshlrev_b32 v{M+26}, 2, v{vLane}")
e(f"  ds_write_b32 v{M+26}, v{SB1} offset:{BB}")
e("L_nb1:")
e(f"  s_cmp_eq_u32 s{sWave}, {SP0+2}")
e("  s_cbranch_scc0 L_nosmall2")
e(f"  v_and_b32 v{M+26}, 15, v{vLane}")
e(f"  v_lshlrev_b32 v{M+26}, 2, v{M+26}")
e(f"  ds_write_b32 v{M+26}, v{SB2} offset:{B2B}")
if OPT["sharec"]:
    e(f"  v_mov_b32 v{M+26}, 0")
    e(f"  ds_write_b32 v{M+26}, v{M+26} offset:{CFLAG}")
e("L_nosmall2:")
e("  s_waitcnt lgkmcnt(0)")
e("  s_barrier")
stamp(5)
prio(OPT["mprio"])
e(f"  ds_read_b128 {vr(HT,4)}, v{vTA}")
e(f"  ds_read_b128 {vr(HT+4,4)}, v{vTA} offset:64")
if not OPT["sharec"]:
    for tau in range(4):
        e(f"  ds_read_b128 {vr(C+4*tau,4)}, v{vQ16} offset:{BB+64*tau}")
    for g in range(8):
        e(f"  ds_read_b128 {vr(M+4*g,4)}, v{vQA} offset:{1024*g}")
else:
    e(f"  s_sub_u32 s{sE2}, s{sWave}, {OPT['cw0']}")
    e(f"  s_cmp_lt_u32 s{sE2}, 4")
    e("  s_cbranch_scc0 L_noc")
    e(f"  v_and_b32 v{M}, 15, v{vLane}")
    e(f"  s_lshl_b32 s{sTmp}, s{sE2}, 11")
    e(f"  v_lshl_add_u32 v{M+1}, v{M}, 7, v{vQ16}")
    e(f"  v_add_u32 v{M+2}, s{sTmp}, v{vQA}")
    e(f"  s_lshl_b32 s{sTmp}, s{sE2}, 6")
    e(f"  v_add_u32 v{M+3}, s{sTmp}, v{vQ16}")
    e(f"  ds_read_b128 {vr(M+4,4)}, v{M+1} offset:{TB}")
    e(f"  ds_read_b128 {vr(M+8,4)}, v{M+1} offset:{TB+64}")
    e(f"  ds_read_b128 {vr(M+12,4)}, v{M+2}")
    e(f"  ds_read_b128 {vr(M+16,4)}, v{M+2} offset:1024")
    e(f"  ds_read_b128 {vr(M+20,4)}, v{M+3} offset:{BB}")
    e(f"  v_mul_u32_u24 v{M}, {CSTR}, v{M}")
    e(f"  v_add_u32 v{M}, v{M}, v{M+3}")
    e(f"  v_add_u32 v{M}, {CB}, v{M}")
    e(f"  v_mov_b32 v{M+1}, 1")
    e(f"  v_mov_b32 v{M+2}, 0")
    e("  s_waitcnt lgkmcnt(0)")
    e(f"  v_mfma_f32_16x16x32_bf16 {vr(M+20,4)}, {vr(M+12,4)}, {vr(M+4,4)}, {vr(M+20,4)}")
    e(f"  v_mfma_f32_16x16x32_bf16 {vr(M+20,4)}, {vr(M+16,4)}, {vr(M+8,4)}, {vr(M+20,4)}")
    e("  s_nop 7")
    e(f"  ds_write_b128 v{M}, {vr(M+20,4)}")
    e("  s_waitcnt lgkmcnt(0)")
    e("  s_mov_b64 exec, 1")
    e(f"  ds_add_u32 v{M+2}, v{M+1} offset:{CFLAG}")
    e("  s_mov_b64 exec, -1")
    e("L_noc:")
nlab = [0]
def cond_block(old_here, young_here, body):
    if not (old_here or young_here):
        return
    nlab[0] += 1
    lab_ = nlab[0]
    if old_here != young_here:
        e(f"  s_cmp_lt_u32 s{sWave}, {OPT['split']}")
        e(f"  s_cbranch_scc{0 if old_here else 1} L_rd{lab_}")
    body()
    if old_here != young_here:
        e(f"L_rd{lab_}:")
def idx2():
    e(f"  ds_read_u8 v{vP0}, v{vL} offset:32")
    e(f"  ds_read_u8 v{vP1}, v{vL} offset:40")
def ring_dma(posn):
    def t1():
        if OPT["e3"] == 0:
            dma(vP0, 1, 0)
        elif OPT["e3"] > 1:
            nlab[0] += 1
            l_ = nlab[0]
            e(f"  s_cmp_lt_u32 s{sWave}, {OPT['split']}")
            e(f"  s_cbranch_scc{1 if OPT['e3'] == 2 else 0} L_e3s{l_}")
            dma(vP0, 1, 0)
            e(f"L_e3s{l_}:")
        dma(vP1, 1, 1)
        if posn != -2:
            idx2()
    def t2():
        e("  s_waitcnt lgkmcnt(0)")
        dma(vP0, 2, 0)
        if OPT["dist"] != 25:
            dma(vP1, 2, 1)
    if posn == -1:
        cond_block(OPT["p1"] == -2, OPT["q1"] == -2, idx2)
    cond_block(OPT["p1"] == posn, OPT["q1"] == posn, t1)
    if OPT["dist"] in (3, 25):
        cond_block(OPT["p2"] == posn, OPT["q2"] == posn, t2)
B0 = [D3 + 4*i for i in range(4)]
B1 = [W2, W2 + 4, W2 + 8, HB]
BUFS = [B0, B1]
def mread(g):
    s, h = g >> 1, g & 1
    for tau in range(4):
        e(f"  ds_read_b128 {vr(BUFS[g&1][tau],4)}, v{vPA} offset:{tau*4096+s*2048+h*1024}")
ring_dma(-2)
if not OPT["sharec"]:
    for g in range(8):
        e(f"  s_waitcnt lgkmcnt({7-g})")
        tau, s = g >> 1, g & 1
        e(f"  v_mfma_f32_16x16x32_bf16 {vr(C+4*tau,4)}, {vr(M+4*g,4)}, {vr(HT+4*s,4)}, {vr(C+4*tau,4)}")
ring_dma(-1)
mread(0)
DT = [Z, Z + 4, Z + 8, Z + 12]
if OPT["sharec"]:
    e("  s_waitcnt lgkmcnt(4)")
e(f"  v_and_b32 v{AD+2}, v{HT}, v{vM0}")
e(f"  v_and_b32 v{AD+3}, v{HT+1}, v{vM1}")
for g in range(4):
    s, h = g >> 1, g & 1
    if g < 3:
        mread(g + 1)
    e(f"  s_waitcnt lgkmcnt({4 if g < 3 else 0})")
    for tau in range(4):
        e(f"  v_mfma_f32_16x16x32_bf16 {vr(DT[tau],4)}, {vr(AD,4)}, {vr(BUFS[g&1][tau],4)}, 0")
    if g < 3:
        s2, h2 = (g + 1) >> 1, (g + 1) & 1
        e(f"  v_and_b32 v{AD+2}, v{HT+4*s2+2*h2}, v{vM0}")
        e(f"  v_and_b32 v{AD+3}, v{HT+4*s2+2*h2+1}, v{vM1}")
        e("  s_nop 2")
    elif OPT["sharec"] and OPT["earlyc"]:
        e(f"  v_mov_b32 v{AD}, 0")
        e(f"  s_mul_i32 s{sTmp2}, s{sWave}, {CSTR}")
        e(f"  ds_read_b32 v{AD+1}, v{AD} offset:{CFLAG}")
        e(f"  ds_read_b128 {vr(W2,4)}, v{vQ16} offset:{W2A}")
        e(f"  ds_read_b128 {vr(W2+4,4)}, v{vQ16} offset:{W2C}")
        e(f"  ds_read_b128 {vr(B2,4)}, v{vQ16} offset:{B2B}")
        e(f"  s_add_u32 s{sTmp2}, s{sTmp2}, {CB}")
        e(f"  v_add_u32 v{AD+2}, s{sTmp2}, v{vQ16}")
    else:
        e("  s_nop 4")
    for tau in range(4):
        for p in range(2):
            e(f"  v_cvt_pk_bf16_f32 v{M+8*tau+4*s+2*h+p}, v{DT[tau]+2*p}, v{DT[tau]+2*p+1}")
    ring_dma(g)
if OPT["sharec"] and OPT["earlyc"]:
    e("  s_waitcnt lgkmcnt(3)")
    e("L_cpoll:")
    e(f"  v_readfirstlane_b32 s{sTmp}, v{AD+1}")
    e(f"  s_cmp_ge_u32 s{sTmp}, 4")
    e("  s_cbranch_scc1 L_cready")
    e(f"  ds_read_b32 v{AD+1}, v{AD} offset:{CFLAG}")
    e("  s_waitcnt lgkmcnt(0)")
    e("  s_branch L_cpoll")
    e("L_cready:")
    for tau in range(4):
        e(f"  ds_read_b128 {vr(C+4*tau,4)}, v{AD+2} offset:{64*tau}")
else:
    if OPT["sharec"]:
        e(f"  v_mov_b32 v{HB}, 0")
        e(f"  s_mul_i32 s{sTmp}, s{sWave}, {CSTR}")
        e(f"  s_add_u32 s{sTmp}, s{sTmp}, {CB}")
        e(f"  v_add_u32 v{HB+1}, s{sTmp}, v{vQ16}")
        e("L_cpoll:")
        e(f"  ds_read_b32 v{HB+2}, v{HB} offset:{CFLAG}")
        e("  s_waitcnt lgkmcnt(0)")
        e(f"  v_readfirstlane_b32 s{sTmp}, v{HB+2}")
        e(f"  s_cmp_lt_u32 s{sTmp}, 4")
        e("  s_cbranch_scc1 L_cpoll")
        for tau in range(4):
            e(f"  ds_read_b128 {vr(C+4*tau,4)}, v{HB+1} offset:{64*tau}")
    e(f"  ds_read_b128 {vr(W2,4)}, v{vQ16} offset:{W2A}")
    e(f"  ds_read_b128 {vr(W2+4,4)}, v{vQ16} offset:{W2C}")
    e(f"  ds_read_b128 {vr(B2,4)}, v{vQ16} offset:{B2B}")
ring_dma(4)
e(f"  s_mov_b32 s{sC0}, 0xffff0000")
e(f"  s_mov_b32 s{sC0+1}, 0")
e(f"  s_mov_b32 s{sC1}, 0")
e(f"  s_mov_b32 s{sC1+1}, 0xffff")
e(f"  s_mov_b32 s{sC2}, 0")
e(f"  s_mov_b32 s{sC2+1}, 0xffff0000")
e(f"  s_lshl_b32 s{sE3}, s{sB}, 7")
if OPT["tab2"]:
    def pack(d):
        d = f"{d:04d}"
        return sum(int(c) << (4 * i) for i, c in enumerate(d))
    e(f"  s_lshr_b32 s42, s{sWave}, 2")
    e(f"  s_lshl_b32 s42, s42, 2")
    e(f"  s_lshr_b32 s40, {pack(OPT['tab2'])}, s42")
    e(f"  s_lshr_b32 s41, {pack(OPT['tab1'])}, s42")
    e(f"  s_and_b32 s40, s40, 15")
    e(f"  s_and_b32 s41, s41, 15")
e(f"  v_mov_b32 v{D2+2}, 0")
e(f"  v_mov_b32 v{D2+3}, 0")
e(f"  v_add_u32 v{vL}, {32 if (OPT['dist'] == 25 or OPT['hyb']) else 16*OPT['dist']}, v{vL}")
if OPT["hyb"]:
    e(f"  s_mov_b32 s{sN}, s{sNT}")
    e(f"  s_mov_b32 s{sK3}, 3")
e("  s_nop 0")
e(f"  v_mfma_f32_32x32x8_bf16 {vr(D3,16)}, {vr(D2+2,2)}, {vr(D2+2,2)}, 0")
e("  s_waitcnt lgkmcnt(0)")
stamp(6)
if OPT["stamp"]:
    e(f"  s_waitcnt vmcnt(4)")
    stamp(7)
if OPT["acc"]:
    e("  s_mov_b32 s44, 0")
    e("  s_mov_b32 s45, 0")
prio(2)
e(f"  s_cmp_eq_u32 s{sNT}, 0")
e("  s_cbranch_scc1 L_out")
e(f"  s_cmp_lg_u64 s[{sBad}:{sBad+1}], 0")
e("  s_cbranch_scc1 L_gen0")

lab = [0]
tails = []
D25 = OPT["dist"] == 25
DIST = 3 if D25 else OPT["dist"]
def tile(slot, general, lab_exit):
    so = slot * 2048
    sd_ = ((slot + DIST) % NS) * 2048
    lab[0] += 1
    k = lab[0]
    if OPT["acc"]:
        e("  s_memtime s[40:41]")
        e("  s_waitcnt lgkmcnt(0)")
    HYB = OPT["hyb"]
    e(f"  s_cmp_ge_u32 s{sNT}, {HYB - 1 if HYB else DIST}")
    e(f"  s_cbranch_scc0 L_tw{k}")
    e(f"  s_waitcnt vmcnt({3 if D25 else 2*(DIST-1)})")
    e(f"L_aw{k}:")
    if OPT["acc"]:
        e("  s_memtime s[42:43]")
        e("  s_waitcnt lgkmcnt(0)")
        e("  s_sub_u32 s40, s42, s40")
        e("  s_add_u32 s44, s44, s40")
    tails.append(k)
    e(f"  ds_read_b128 {vr(HB,4)}, v{vA0} offset:{so}")
    e(f"  ds_read_b128 {vr(HB+4,4)}, v{vA1} offset:{so}")
    for d in range(4):
        e(f"  ds_read_b64_tr_b16 {vr(HT+2*d,2)}, v{vT[d]} offset:{so}")
    if D25:
        e(f"  ds_read_u8 v{vP0}, v{vL} offset:{16*slot+16}")
        e(f"  ds_read_u8 v{vP1}, v{vL} offset:{16*slot+8}")
    elif HYB:
        e(f"  s_cmp_ge_u32 s{sNT}, {HYB}")
        e(f"  s_cbranch_scc0 L_i2{k}")
        e(f"  ds_read_u8 v{vP0}, v{vL} offset:{16*slot+16}")
        e(f"  ds_read_u8 v{vP1}, v{vL} offset:{16*slot+24}")
        e(f"  s_branch L_i3{k}")
        e(f"L_i2{k}:")
        e(f"  ds_read_u8 v{vP0}, v{vL} offset:{16*slot}")
        e(f"  ds_read_u8 v{vP1}, v{vL} offset:{16*slot+8}")
        e(f"L_i3{k}:")
    else:
        e(f"  ds_read_u8 v{vP0}, v{vL} offset:{16*slot}")
        e(f"  ds_read_u8 v{vP1}, v{vL} offset:{16*slot+8}")
    nrd = 8
    if OPT["prio"] and OPT["lprio"]:
        e(f"  s_cmp_gt_u32 s{sNT}, {'s40' if OPT['tab2'] else OPT['t2']}")
        e(f"  s_cbranch_scc1 L_p{k}")
        e(f"  s_setprio 1")
        e(f"  s_cmp_gt_u32 s{sNT}, {'s41' if OPT['tab2'] else OPT['t1']}")
        e(f"  s_cbranch_scc1 L_p{k}")
        e(f"  s_setprio 0")
        e(f"L_p{k}:")
    e(f"  s_waitcnt lgkmcnt({nrd-1})")
    for tau in range(4):
        e(f"  v_mfma_f32_16x16x32_bf16 {vr(Z+4*tau,4)}, {vr(M+8*tau,4)}, {vr(HB,4)}, {vr(C+4*tau,4)}")
    e(f"  s_waitcnt lgkmcnt({nrd-2})")
    for tau in range(4):
        e(f"  v_mfma_f32_16x16x32_bf16 {vr(Z+4*tau,4)}, {vr(M+8*tau+4,4)}, {vr(HB+4,4)}, {vr(Z+4*tau,4)}")
    e("  s_nop 4")
    for i in range(16):
        e(f"  v_exp_f32 v{Z+i}, v{Z+i}")
    e("  s_nop 1")
    e(f"  v_mfma_f32_32x32x8_bf16 {vr(Z,16)}, {vr(ONE,2)}, {vr(ONE,2)}, {vr(Z,16)}")
    if OPT["dsplit"]:
        e("  s_waitcnt lgkmcnt(0)")
        e(f"  s_cmp_gt_u32 s{sNT}, {NS}")
        e(f"  s_cbranch_scc0 L_nh{k}")
        e(f"  s_add_u32 m0, s{sRing}, {so}")
        e("  s_nop 0")
        e(f"  buffer_load_dwordx4 {vr(vP0,2)}, s[{rH}:{rH+3}], 0 idxen offen{OPT['nt_hist']} lds")
        e(f"L_nh{k}:")
        e("  s_nop 8")
    else:
        e("  s_nop 11")
    for i in range(16):
        e(f"  v_rcp_f32 v{Z+i}, v{Z+i}")
    for i in range(8):
        e(f"  v_cvt_pk_bf16_f32 v{HB+i}, v{Z+2*i}, v{Z+2*i+1}")
    if general:
        e(f"  ds_read_b128 {vr(MK,4)}, v{vML} offset:{64*slot}")
    else:
        e("  s_nop 0")
    e(f"  v_mfma_f32_16x16x32_bf16 {vr(D2,4)}, {vr(HB,4)}, {vr(W2,4)}, {vr(B2,4)}")
    e(f"  v_mfma_f32_16x16x32_bf16 {vr(D2,4)}, {vr(HB+4,4)}, {vr(W2+4,4)}, {vr(D2,4)}")
    if slot == NS - 1 and general:
        e(f"  v_add_u32 v{vML}, {64*NS}, v{vML}")
    e("  s_nop 7")
    e("  s_waitcnt lgkmcnt(0)")
    if general:
        for i in range(4):
            e(f"  v_mul_f32 v{D2+i}, v{MK+i}, v{D2+i}")
    e(f"  v_cvt_pk_bf16_f32 v{SP}, v{D2}, v{D2+1}")
    e(f"  v_cvt_pk_bf16_f32 v{SP+1}, v{D2+2}, v{D2+3}")
    e(f"  s_cmp_gt_u32 s{sNT}, {HYB - 1 if HYB else (2 if D25 else DIST)}")
    e("  s_nop 0")
    for d in range(4):
        e(f"  v_mfma_f32_16x16x16_bf16 {vr(D3+4*d,4)}, {vr(SP,2)}, {vr(HT+2*d,2)}, {vr(D3+4*d,4)}")
    if OPT["acc"]:
        e("  s_memtime s[40:41]")
        e("  s_waitcnt lgkmcnt(0)")
    e(f"  s_cbranch_scc0 {'L_h2' if HYB else 'L_nd'}{k}")
    if D25:
        e(f"  s_add_u32 m0, s{sRing}, {((slot + 2) % NS) * 2048 + 1024}")
        e(f"  s_cmp_gt_u32 s{sNT}, 3")
        e(f"  buffer_load_dwordx4 {vr(vP1,2)}, s[{rH}:{rH+3}], 0 idxen offen{OPT['nt_hist']} lds")
        e(f"  s_cbranch_scc0 L_nd{k}")
        e(f"  s_add_u32 m0, s{sRing}, {so}")
        e("  s_nop 0")
        e(f"  buffer_load_dwordx4 {vr(vP0,2)}, s[{rH}:{rH+3}], 0 idxen offen{OPT['nt_hist']} lds")
    elif not OPT["dsplit"]:
        e(f"  s_add_u32 m0, s{sRing}, {sd_}")
        e("  s_nop 0")
        e(f"  buffer_load_dwordx4 {vr(vP0,2)}, s[{rH}:{rH+3}], 0 idxen offen{OPT['nt_hist']} lds")
    if not D25:
        e(f"  s_add_u32 m0, s{sRing}, {sd_+1024}")
        e("  s_nop 0")
        e(f"  buffer_load_dwordx4 {vr(vP1,2)}, s[{rH}:{rH+3}], 0 idxen offen{OPT['nt_hist']} lds")
    if HYB:
        e(f"  s_add_u32 s{sK3}, s{sK3}, 1")
        e(f"  s_branch L_nd{k}")
        e(f"L_h2{k}:")
        e(f"  s_sub_u32 s{sTmp}, s{sN}, s{sNT}")
        e(f"  s_add_u32 s{sTmp}, s{sTmp}, 2")
        e(f"  s_cmp_eq_u32 s{sTmp}, s{sK3}")
        e(f"  s_cbranch_scc0 L_nd{k}")
        e(f"  s_cmp_gt_u32 s{sNT}, 2")
        e(f"  s_cbranch_scc0 L_nd{k}")
        e(f"  s_add_u32 m0, s{sRing}, {((slot + 2) % NS) * 2048}")
        e(f"  s_add_u32 s{sK3}, s{sK3}, 1")
        e(f"  buffer_load_dwordx4 {vr(vP0,2)}, s[{rH}:{rH+3}], 0 idxen offen{OPT['nt_hist']} lds")
        e(f"  s_add_u32 m0, s{sRing}, {((slot + 2) % NS) * 2048 + 1024}")
        e("  s_nop 0")
        e(f"  buffer_load_dwordx4 {vr(vP1,2)}, s[{rH}:{rH+3}], 0 idxen offen{OPT['nt_hist']} lds")
    e(f"L_nd{k}:")
    if OPT["acc"]:
        e("  s_memtime s[42:43]")
        e("  s_waitcnt lgkmcnt(0)")
        e("  s_sub_u32 s40, s42, s40")
        e("  s_add_u32 s45, s45, s40")
    if slot == NS - 1:
        e(f"  v_add_u32 v{vL}, {16*NS}, v{vL}")
    e(f"  s_sub_u32 s{sNT}, s{sNT}, 1")
    e(f"  s_cmp_eq_u32 s{sNT}, 0")
    e(f"  s_cbranch_scc1 {lab_exit}")

e("L_bin0:")
for slot in range(NS):
    tile(slot, False, "L_out")
e("  s_branch L_bin0")
e("L_gen0:")
for slot in range(NS):
    tile(slot, True, "L_out")
e("  s_branch L_gen0")
for k in tails:
    e(f"L_tw{k}:")
    if OPT["hyb"]:
        e(f"  s_cmp_gt_u32 s{sNT}, 1")
        e(f"  s_cbranch_scc0 L_tw{k}_1")
        e("  s_waitcnt vmcnt(2)")
        e(f"  s_branch L_aw{k}")
        e(f"L_tw{k}_1:")
    for r in range((1 if OPT["hyb"] else DIST - 1), 1, -1):
        e(f"  s_cmp_eq_u32 s{sNT}, {r}")
        e(f"  s_cbranch_scc0 L_tw{k}_{r}")
        e(f"  s_waitcnt vmcnt({2*(r-1)})")
        e(f"  s_branch L_aw{k}")
        e(f"L_tw{k}_{r}:")
    e("  s_waitcnt vmcnt(0)")
    e(f"  s_branch L_aw{k}")

e("L_out:")
stamp(8)
e("  s_nop 7")
e(f"  v_lshl_add_u32 v{Z}, v{vLane}, 1, s{sE3}")
e(f"  v_cndmask_b32_e64 v{Z+1}, v{D3}, v{D3+4}, s[{sC0}:{sC0+1}]")
e(f"  v_cndmask_b32_e64 v{Z+1}, v{Z+1}, v{D3+8}, s[{sC1}:{sC1+1}]")
e(f"  v_cndmask_b32_e64 v{Z+1}, v{Z+1}, v{D3+12}, s[{sC2}:{sC2+1}]")
e(f"  v_cvt_pk_bf16_f32 v{Z+1}, v{Z+1}, v{Z+1}")
e(f"  global_store_short v{Z}, v{Z+1}, s[{sO}:{sO+1}]{OPT['nt_out']}")
if OPT["endwait"] or OPT["stamp"]:
    e("  s_waitcnt vmcnt(0)")
if OPT["stamp"]:
    stamp(9)
    e(f"  s_getreg_b32 s{STAMP0}, hwreg(HW_REG_XCC_ID)")
    e(f"  v_writelane_b32 v{vST}, s{STAMP0}, 10")
    e(f"  v_writelane_b32 v{vST}, s{sN}, 11")
    if OPT["acc"]:
        e(f"  v_writelane_b32 v{vST}, s44, 14")
        e(f"  v_writelane_b32 v{vST}, s45, 15")
    e(f"  s_lshl_b32 s{sTmp}, s{sB}, 6")
    e(f"  s_add_u32 s88, s86, s{sTmp}")
    e(f"  s_addc_u32 s89, s87, 0")
    e(f"  s_and_b32 s89, s89, 0xffff")
    e(f"  s_mov_b32 s90, 64")
    e(f"  s_mov_b32 s91, 0x20000")
    e(f"  v_lshlrev_b32 v{Z}, 2, v{vLane}")
    e(f"  buffer_store_dword v{vST}, v{Z}, s[88:91], 0 offen")
    e("  s_waitcnt vmcnt(0)")
e("L_end:")
e("  s_endpgm")
e('.section .rodata,"a"')
e(".p2align 6")
e(f".amdhsa_kernel {NAME}_kernel")
e("  .amdhsa_next_free_vgpr 128")
e("  .amdhsa_next_free_sgpr 96")
e("  .amdhsa_accum_offset 128")
e("  .amdhsa_group_segment_fixed_size 0")
e("  .amdhsa_kernarg_size 80")
e("  .amdhsa_user_sgpr_count 2")
e("  .amdhsa_user_sgpr_kernarg_segment_ptr 1")
e("  .amdhsa_system_sgpr_workgroup_id_x 1")
e("  .amdhsa_float_denorm_mode_32 3")
e(".end_amdhsa_kernel")
open(sys.argv[1], "w").write("\n".join(x for x in out if x is not None) + "\n")
```

```python
import sys

NAME = "standalone__sequential_behavior_din__recsys"
OPT = dict(nt_hist=" nt", nt_mask=" nt", nt_out="", stamp=0, prio=1, mprio=3, lprio=1,
           p1=0, p2=2, q1=-2, q2=1, t2=3, t1=1, split=8, acc=0, mbar=0, sp0=13, pf=0, pfn=44, endwait=1, sharec=1, cw0=4, earlyc=1, exact=0, dsplit=0, e3=0, dist=3, hyb=6, dt2=0, dt1=0, tab2=5432, tab1=2211, mpipe=0, hop=0)
for a in sys.argv[2:]:
    k, v = a.split("=", 1)
    if k.startswith("nt_"):
        OPT[k] = (" " + v.replace("+", " ")) if v else ""
    else:
        OPT[k] = int(v)

out = []
def e(s=""):
    out.append(s)

NS = 3
BB = 0
W2A = 256
W2C = 320
B2B = 384
TB = 512
LIST = TB + 2048
RING = LIST + 16 * 256
RPW = NS * 2048 + 1024
MOFF = NS * 2048
PFB = RING + 16 * RPW
QB = PFB + 16384
CSTR = 272
CB = QB + 8192
LDS_BYTES = CB + 16 * CSTR
CFLAG = 448
assert LDS_BYTES <= 163840 and RING % 16 == 0

M, C, D3, W2, B2, Z, HB, HT, D2 = 0, 32, 48, 64, 72, 76, 92, 100, 108
SP = D2
ONE = 112
vA0, vA1 = 114, 115
vT = [116, 117, 118, 119]
vP0, vP1 = 120, 122
vDC0, vDC1 = 121, 123
vL, vML = 124, 125
vLane, vQ16 = 126, 127
vST = vML
MK = Z

def vr(b, n=1):
    return f"v{b}" if n == 1 else f"v[{b}:{b+n-1}]"

sT, sH, sMk, sW1, sB1, sW2, sB2, sO = 4, 6, 8, 10, 12, 14, 16, 18
sWave, sB = 20, 21
rH = 24
sRing, sList, sN, sNT = 56, 57, 58, 59
sC0, sC1, sC2, sC3 = 60, 62, 64, 66
sK1, sK2, sK3 = 69, 70, 71
sScale, sTmp, sTmp2 = 72, 74, 75
sBad, sDmy = 76, 78
STAMP0 = 84
sE0, sE1, sE2, sE3 = 88, 90, 92, 94

def stamp(i):
    if OPT["stamp"]:
        e(f"  s_memrealtime s[{STAMP0}:{STAMP0+1}]")
        e("  s_waitcnt lgkmcnt(0)")
        e(f"  v_writelane_b32 v{vST}, s{STAMP0}, {i}")
        if i in (6, 8):
            e(f"  s_memtime s[{STAMP0}:{STAMP0+1}]")
            e("  s_waitcnt lgkmcnt(0)")
            e(f"  v_writelane_b32 v{vST}, s{STAMP0}, {12 if i == 6 else 13}")

def prio(p):
    if OPT["prio"]:
        e(f"  s_setprio {p}")

def dma(pair, slot, hf, filler="  s_nop 0"):
    e(f"  s_add_u32 m0, s{sRing}, {slot*2048+hf*1024}")
    e(filler)
    e(f"  buffer_load_dwordx4 {vr(pair,2)}, s[{rH}:{rH+3}], 0 idxen offen{OPT['nt_hist']} lds")

hdr = open("cdna_kernels/" + NAME + ".s.ref").read().split("; Override launch")[0]
e(hdr.rstrip())
e(f"; @launch grid=(256,1,1) block=(1024,1,1) lds={LDS_BYTES}")
for line in """
 DIN local activation unit, one wave per batch row, 16 waves (rows) per workgroup.
   z = hist (Wa + Wc + diag(t) Wd) + t (Wb - Wc) + b1      (w1 = [Wa; Wb; Wc; Wd], t = target row)
   out = sum_l mask_l (sigmoid(z_l) . w2 + b2) hist_l
 Rows whose mask is zero contribute nothing and are never fetched: each wave compacts the indices of its active
 rows and gathers them, 16 rows per tile, into a three-slot LDS ring with LDS-DMA loads (padding rows read as zero).
 Start-up: every wave converts a 4-row slice of w1 into the shared operand images [P'|Wd'] and Q' (scaled by
 -log2 e); after one barrier it builds its own M' = P' + diag(t) Wd' with MFMAs against a [1|t] selector; four waves
 compute c' = b1' + Q'^T t for all 16 rows and publish it through an LDS counter.
 Tile: Z^T = M'^T H^T + c' (MFMA), exp2, +1 (one 32x32 MFMA against a unit outer product), rcp, bf16 pack,
 scores = sigma w2 + b2 (MFMA), out += scores H (MFMA on transposed LDS reads).
 Masks that are not exactly 0 or 1 take a second loop that multiplies the scores by the mask values.
""".strip("\n").split("\n"):
    e(";" + line)
e('.amdgcn_target "amdgcn-amd-amdhsa--gfx950"')
e(".text")
e(f".globl {NAME}_kernel")
e(".p2align 8")
e(f".type {NAME}_kernel,@function")
e(f"{NAME}_kernel:")
e("  s_cmp_ge_u32 s2, 256")
e("  s_cbranch_scc1 L_end")
stamp(0)
if OPT["hop"]:
    for i in range(OPT["hop"]):
        e(f"  s_branch L_hop{i}")
        e("  .p2align 7")
        e(f"L_hop{i}:")
e("  s_load_dwordx16 s[4:19], s[0:1], 0")
if OPT["stamp"]:
    e("  s_load_dwordx2 s[86:87], s[0:1], 72")
prio(3)
X0 = W2
q_ = Z + 1
vMo, vWo, vWo2 = Z + 6, Z + 7, Z + 8
e(f"  v_lshrrev_b32 v{Z}, 6, v0")
e(f"  v_and_b32 v{vLane}, 63, v0")
e(f"  s_lshl_b32 s{sB}, s2, 4")
e(f"  v_readfirstlane_b32 s{sWave}, v{Z}")
e(f"  v_mov_b32 v{X0}, 0")
e(f"  v_mov_b32 v{X0+1}, 0")
e(f"  s_add_u32 s{sB}, s{sB}, s{sWave}")
e(f"  s_mul_i32 s{sTmp}, s{sB}, 400")
e(f"  s_mul_i32 s{sRing}, s{sWave}, {RPW}")
e(f"  v_lshl_add_u32 v{vMo}, v{vLane}, 3, s{sTmp}")
e(f"  v_and_b32 v{Z+2}, 32, v{vLane}")
e(f"  v_and_b32 v{Z+3}, 31, v{vLane}")
e(f"  s_lshl_b32 s{sTmp2}, s{sWave}, 9")
e(f"  v_lshlrev_b32 v{Z+2}, 9, v{Z+2}")
e(f"  s_add_u32 s{sK3}, s{sTmp2}, {24576-1024}")
e(f"  v_lshl_add_u32 v{vWo}, v{Z+3}, 4, s{sTmp2}")
e(f"  v_lshl_add_u32 v{vWo2}, v{Z+3}, 4, s{sK3}")
e(f"  s_bfm_b64 s[{sC0}:{sC0+1}], 50, 0")
e(f"  v_add_u32 v{vWo}, v{vWo}, v{Z+2}")
e(f"  v_sub_u32 v{vWo2}, v{vWo2}, v{Z+2}")
e(f"  s_add_u32 s{sRing}, s{sRing}, {RING}")
e(f"  s_add_u32 m0, s{sRing}, 4096")
e(f"  s_mov_b64 exec, s[{sC0}:{sC0+1}]")
e("  s_waitcnt lgkmcnt(0)")
stamp(1)
e(f"  global_load_dwordx2 {vr(X0,2)}, v{vMo}, s[{sMk}:{sMk+1}]{OPT['nt_mask']}")
e("  s_mov_b64 exec, -1")
if OPT["mbar"]:
    e("  s_barrier")
prio(2)
e(f"  global_load_lds_dwordx4 v{vWo}, s[{sW1}:{sW1+1}]")
e(f"  global_load_lds_dwordx4 v{vWo2}, s[{sW1}:{sW1+1}] offset:1024")
e(f"  v_lshrrev_b32 v{q_}, 4, v{vLane}")
if OPT["pf"]:
    e(f"  s_cmp_lt_u32 s2, {OPT['pf']}")
    e("  s_cbranch_scc0 L_nopf")
    e(f"  s_cmp_eq_u32 s{sWave}, 3")
    e("  s_cbranch_scc0 L_nopf")
    e("  s_getpc_b64 s[78:79]")
    e("L_pc:")
    e(f"  s_sub_u32 s78, s78, L_pc-{NAME}_kernel")
    e("  s_subb_u32 s79, s79, 0")
    e(f"  v_lshlrev_b32 v{M+28}, 7, v{vLane}")
    e(f"  s_bfm_b64 exec, {OPT['pfn']}, 0")
    e(f"  global_load_dword v{M+29}, v{M+28}, s[78:79]")
    e("  s_mov_b64 exec, -1")
    e("L_nopf:")
SB1, SB2 = M + 24, M + 25
SP0 = OPT["sp0"]
e(f"  s_sub_u32 s{sE2}, s{sWave}, {SP0}")
e(f"  s_cmp_gt_u32 s{sE2}, 2")
e("  s_cbranch_scc1 L_nosmall")
e(f"  s_cmp_eq_u32 s{sE2}, 1")
e("  s_cbranch_scc1 L_w14")
e(f"  s_cmp_eq_u32 s{sE2}, 2")
e("  s_cbranch_scc1 L_w15")
e(f"  v_mov_b32 v{SB1}, 0")
e(f"  v_lshlrev_b32 v{M+26}, 1, v{vLane}")
e(f"  global_load_short_d16_hi v{SB1}, v{M+26}, s[{sB1}:{sB1+1}]")
e("  s_branch L_nosmall")
e("L_w14:")
e(f"  s_lshl_b32 s{sTmp2}, s2, 11")
e(f"  v_lshl_add_u32 v{M+26}, v{vLane}, 4, s{sTmp2}")
e(f"  s_mov_b32 m0, {TB}")
e("  s_nop 0")
e(f"  global_load_lds_dwordx4 v{M+26}, s[{sT}:{sT+1}]")
e(f"  global_load_lds_dwordx4 v{M+26}, s[{sT}:{sT+1}] offset:1024")
e("  s_branch L_nosmall")
e("L_w15:")
e(f"  v_bfe_u32 v{M+26}, v{vLane}, 4, 1")
e(f"  v_lshlrev_b32 v{M+26}, 6, v{M+26}")
e(f"  v_bfe_u32 v{M+27}, v{vLane}, 1, 1")
e(f"  v_lshl_add_u32 v{M+26}, v{M+27}, 5, v{M+26}")
e(f"  v_bfe_u32 v{M+27}, v{vLane}, 2, 2")
e(f"  v_lshl_add_u32 v{M+26}, v{M+27}, 3, v{M+26}")
e(f"  v_and_b32 v{M+27}, 1, v{vLane}")
e(f"  v_lshl_add_u32 v{M+26}, v{M+27}, 2, v{M+26}")
e(f"  v_mov_b32 v{SB2}, 0")
e(f"  v_mov_b32 v{M+27}, 0")
e(f"  s_mov_b32 m0, {W2A}")
e(f"  global_load_short_d16_hi v{SB2}, v{M+27}, s[{sB2}:{sB2+1}]")
e(f"  s_bfm_b64 exec, 32, 0")
e(f"  global_load_lds_dword v{M+26}, s[{sW2}:{sW2+1}]")
e("  s_mov_b64 exec, -1")
e("L_nosmall:")
e(f"  s_lshl_b32 s{sList}, s{sWave}, 8")
e(f"  s_add_u32 s{sList}, s{sList}, {LIST}")
e(f"  v_mov_b32 v{M}, -1")
e(f"  v_lshl_add_u32 v{Z+3}, v{vLane}, 2, s{sList}")
e(f"  ds_write_b32 v{Z+3}, v{M}")
t0, t1, t2, t3, t4 = Z, q_, Z + 2, Z + 3, Z + 4
PFA, QWA, RWA = D3, D3 + 2, D3 + 3
e(f"  s_mul_i32 s{sTmp}, s{sB}, 25600")
e(f"  v_and_b32 v{t2}, 7, v{vLane}")
e(f"  s_add_u32 s{rH}, s{sH}, s{sTmp}")
e(f"  v_xor_b32 v{t2}, v{t2}, v{t1}")
e(f"  s_addc_u32 s{rH+1}, s{sH+1}, 0")
e(f"  v_lshlrev_b32 v{vDC0}, 4, v{t2}")
e(f"  s_or_b32 s{rH+1}, s{rH+1}, {128 << 16}")
e(f"  v_xor_b32 v{vDC1}, 64, v{vDC0}")
e(f"  s_mov_b32 s{rH+2}, 200")
e(f"  v_lshrrev_b32 v{t2}, 3, v{vLane}")
e(f"  s_mov_b32 s{rH+3}, 0x20000")
e(f"  v_add_u32 v{vL}, s{sList}, v{t2}")
vR = [Z + 11, Z + 12, Z + 13, Z + 14]
e(f"  v_lshlrev_b32 v{vR[0]}, 2, v{vLane}")
e(f"  s_mov_b32 s{sK1}, 0xffff")
for i in range(1, 4):
    e(f"  v_add_u32 v{vR[i]}, {i}, v{vR[0]}")
pos = [Z + 2, Z + 3, Z + 4, Z + 5]
prio(1)
vPA = D2
vTA, vQA = Z + 9, Z + 15
vM0, vM1 = D2 + 2, D2 + 3
S = []
S.append(f"  s_mov_b32 s{sK2}, 0xffff0000")
S.append(f"  s_mov_b32 s{sScale}, 0xbfb8aa3b")
S.append(f"  s_mov_b32 s{sScale+1}, 0xbfb8aa3b")
S.append(f"  s_lshr_b32 s{sE0}, s{sWave}, 3")
S.append(f"  s_and_b32 s{sE0+1}, s{sWave}, 1")
S.append(f"  s_bfe_u32 s{sE1}, s{sWave}, 0x20001")
S.append(f"  s_lshl_b32 s{sTmp}, s{sE0}, 11")
S.append(f"  s_lshl_b32 s{sK3}, s{sE0+1}, 10")
S.append(f"  s_add_u32 s{sTmp}, s{sTmp}, s{sK3}")
S.append(f"  s_lshl_b32 s{sK3}, s{sE1}, 8")
S.append(f"  s_add_u32 s{sTmp}, s{sTmp}, s{sK3}")
S.append(f"  s_add_u32 s{sTmp}, s{sTmp}, {PFB}")
S.append(f"  s_lshl_b32 s{sE0}, s{sE0}, 10")
S.append(f"  s_add_u32 s{sE0}, s{sE0}, s{sK3}")
S.append(f"  s_lshl_b32 s{sE0+1}, s{sE0+1}, 3")
S.append(f"  s_add_u32 s{sE0}, s{sE0}, s{sE0+1}")
S.append(f"  s_add_u32 s{sE0}, s{sE0}, {QB}")
S.append(f"  s_add_u32 s{sK3}, s{sRing}, 4096")
S.append(f"  s_lshl_b32 s{sE1}, s{sWave}, 7")
S.append(f"  s_add_u32 s{sE1}, s{sE1}, {TB}")
V = []
V.append(f"  v_and_b32 v{t0}, 15, v{vLane}")
V.append(f"  v_lshrrev_b32 v{t2}, 1, v{t0}")
V.append(f"  v_xor_b32 v{t2}, v{t2}, v{t1}")
V.append(f"  v_lshlrev_b32 v{t2}, 4, v{t2}")
V.append(f"  v_lshl_add_u32 v{t2}, v{t0}, 7, v{t2}")
V.append(f"  v_add_u32 v{vA0}, s{sRing}, v{t2}")
V.append(f"  v_xor_b32 v{vA1}, 64, v{vA0}")
V.append(f"  v_lshrrev_b32 v{t2}, 2, v{t0}")
V.append(f"  v_and_b32 v{RWA}, 3, v{vLane}")
V.append(f"  v_cmp_eq_u32_e64 s[{sC1}:{sC1+1}], v{t2}, v{t1}")
V.append(f"  v_lshlrev_b32 v{RWA}, 3, v{RWA}")
V.append(f"  v_lshl_add_u32 v{RWA}, v{t2}, 7, v{RWA}")
V.append(f"  v_lshl_add_u32 v{RWA}, v{t1}, 5, v{RWA}")
V.append(f"  v_lshl_add_u32 v{t2}, v{t1}, 2, v{t2}")
V.append(f"  v_lshrrev_b32 v{t3}, 1, v{t2}")
V.append(f"  v_bfe_u32 v{t4}, v{vLane}, 1, 1")
V.append(f"  v_xor_b32 v{t3}, v{t3}, v{t4}")
V.append(f"  v_lshlrev_b32 v{t3}, 4, v{t3}")
V.append(f"  v_lshl_add_u32 v{t3}, v{t2}, 7, v{t3}")
V.append(f"  v_and_b32 v{t2}, 1, v{vLane}")
V.append(f"  v_lshl_add_u32 v{t3}, v{t2}, 3, v{t3}")
V.append(f"  v_lshlrev_b32 v{vQ16}, 4, v{t1}")
V.append(f"  v_add_u32 v{vT[0]}, s{sRing}, v{t3}")
V.append(f"  v_lshlrev_b32 v{t0}, 4, v{t0}")
for d in range(1, 4):
    V.append(f"  v_xor_b32 v{vT[d]}, {32*d}, v{vT[0]}")
for i in range(max(len(S), len(V))):
    if i < len(V): e(V[i])
    if i < len(S): e(S[i])
e(f"  v_lshl_add_u32 v{PFA}, v{t1}, 12, v{t0}")
e(f"  v_lshl_add_u32 v{QWA}, v{t1}, 11, v{t0}")
e(f"  v_add_u32 v{RWA}, s{sK3}, v{RWA}")
e(f"  v_add_u32 v{PFA}, s{sTmp}, v{PFA}")
e(f"  v_add_u32 v{QWA}, s{sE0}, v{QWA}")
e(f"  v_add_u32 v{vTA}, s{sE1}, v{vQ16}")
e(f"  v_lshlrev_b32 v{vPA}, 4, v{vLane}")
e(f"  v_add_u32 v{vQA}, {QB}, v{vPA}")
e(f"  v_add_u32 v{vPA}, {PFB}, v{vPA}")
e(f"  v_lshlrev_b32 v{t2}, 4, v{t2}")
e(f"  v_mov_b32 v{t3}, 0xffff")
e(f"  v_lshlrev_b32 v{t3}, v{t2}, v{t3}")
e(f"  v_cmp_gt_u32 vcc, 32, v{vLane}")
e(f"  v_cndmask_b32_e64 v{t3}, 0, v{t3}, s[{sC1}:{sC1+1}]")
e(f"  v_cmp_eq_u32_e64 s[{sC1}:{sC1+1}], 0, v{t4}")
e(f"  v_mov_b32 v{t0}, 0x3f80")
e(f"  v_mov_b32 v{pos[0]}, s{sList}")
e(f"  v_cndmask_b32 v{ONE}, 0, v{t0}, vcc")
e(f"  v_mov_b32 v{ONE+1}, 0")
e(f"  v_cndmask_b32_e64 v{vM0}, 0, v{t3}, s[{sC1}:{sC1+1}]")
e(f"  v_cndmask_b32_e64 v{vM1}, v{t3}, 0, s[{sC1}:{sC1+1}]")
AD = HB + 4
e(f"  s_mov_b32 s{sTmp}, 0x3f803f80")
e(f"  v_and_b32 v{AD}, s{sTmp}, v{vM0}")
e(f"  v_and_b32 v{AD+1}, s{sTmp}, v{vM1}")
if OPT["exact"]:
    e(f"  s_cmp_gt_u32 s{sE2}, 2")
    e("  s_cbranch_scc1 L_mw2")
    e(f"  s_cmp_eq_u32 s{sE2}, 0")
    e("  s_cbranch_scc1 L_mw3")
    e("  s_waitcnt vmcnt(4)")
    e("  s_branch L_mwd")
    e("L_mw3:")
    e("  s_waitcnt vmcnt(3)")
    e("  s_branch L_mwd")
    e("L_mw2:")
e("  s_waitcnt vmcnt(2)")
if OPT["exact"]:
    e("L_mwd:")
stamp(2)
prio(3)
e(f"  v_cmp_ne_u16_e64 s[{sC0}:{sC0+1}], 0, v{X0}")
e(f"  v_cmp_lt_u32_e64 s[{sC1}:{sC1+1}], s{sK1}, v{X0}")
e(f"  v_cmp_ne_u16_e64 s[{sC2}:{sC2+1}], 0, v{X0+1}")
e(f"  v_cmp_lt_u32_e64 s[{sC3}:{sC3+1}], s{sK1}, v{X0+1}")
e(f"  v_mbcnt_lo_u32_b32 v{pos[0]}, s{sC0}, v{pos[0]}")
e(f"  v_mbcnt_hi_u32_b32 v{pos[0]}, s{sC0+1}, v{pos[0]}")
for c in (sC1, sC2, sC3):
    e(f"  v_mbcnt_lo_u32_b32 v{pos[0]}, s{c}, v{pos[0]}")
    e(f"  v_mbcnt_hi_u32_b32 v{pos[0]}, s{c+1}, v{pos[0]}")
e(f"  s_mov_b64 exec, s[{sC0}:{sC0+1}]")
e(f"  ds_write_b8 v{pos[0]}, v{vR[0]}")
e("  s_mov_b64 exec, -1")
e(f"  v_addc_co_u32_e64 v{pos[1]}, s[{sDmy}:{sDmy+1}], 0, v{pos[0]}, s[{sC0}:{sC0+1}]")
e(f"  v_addc_co_u32_e64 v{pos[2]}, s[{sDmy}:{sDmy+1}], 0, v{pos[1]}, s[{sC1}:{sC1+1}]")
e(f"  v_addc_co_u32_e64 v{pos[3]}, s[{sDmy}:{sDmy+1}], 0, v{pos[2]}, s[{sC2}:{sC2+1}]")
for i, c in ((1, sC1), (2, sC2), (3, sC3)):
    e(f"  s_mov_b64 exec, s[{c}:{c+1}]")
    e(f"  ds_write_b8 v{pos[i]}, v{vR[i]}")
e("  s_mov_b64 exec, -1")
e(f"  ds_read_u8 v{vP0}, v{vL}")
e(f"  ds_read_u8 v{vP1}, v{vL} offset:8")
if OPT["e3"]:
    e(f"  ds_read_u8 v{M+8}, v{vL} offset:16")
e(f"  s_bcnt1_i32_b64 s{sN}, s[{sC0}:{sC0+1}]")
e(f"  s_bcnt1_i32_b64 s{sK3}, s[{sC1}:{sC1+1}]")
e(f"  s_add_u32 s{sN}, s{sN}, s{sK3}")
e(f"  s_bcnt1_i32_b64 s{sK3}, s[{sC2}:{sC2+1}]")
e(f"  s_add_u32 s{sN}, s{sN}, s{sK3}")
e(f"  s_bcnt1_i32_b64 s{sK3}, s[{sC3}:{sC3+1}]")
e(f"  s_add_u32 s{sN}, s{sN}, s{sK3}")
e(f"  s_waitcnt lgkmcnt({2 if OPT['e3'] else 1})")
dma(vP0, 0, 0)
e(f"  s_waitcnt lgkmcnt({1 if OPT['e3'] else 0})")
dma(vP1, 0, 1)
if OPT["e3"]:
    if OPT["e3"] > 1:
        e(f"  s_cmp_lt_u32 s{sWave}, {OPT['split']}")
        e(f"  s_cbranch_scc{0 if OPT['e3'] == 2 else 1} L_noe3")
    e("  s_waitcnt lgkmcnt(0)")
    dma(M + 8, 1, 0, f"  v_mov_b32 v{M+9}, v{vDC0}")
    if OPT["e3"] > 1:
        e("  s_waitcnt vmcnt(3)")
        e("  s_branch L_e3d")
        e("L_noe3:")
        e("  s_waitcnt vmcnt(2)")
        e("L_e3d:")
    else:
        e("  s_waitcnt vmcnt(3)")
stamp(3)
prio(2)
RW = M + 16
if not OPT["e3"]:
    e("  s_waitcnt vmcnt(2)")
stamp(4)
for m in range(4):
    e(f"  ds_read_b64_tr_b16 {vr(RW+2*m,2)}, v{RWA} offset:{512*m}")
e(f"  ds_read_u8 v{vP0}, v{vL} offset:16")
e(f"  ds_read_u8 v{vP1}, v{vL} offset:24")
e(f"  s_add_u32 s{sNT}, s{sN}, 15")
e(f"  s_lshr_b32 s{sNT}, s{sNT}, 4")
e(f"  s_movk_i32 s{sTmp}, 0x3f80")
e(f"  v_cmp_eq_u16_e64 s[{sE0}:{sE0+1}], s{sTmp}, v{X0}")
e(f"  v_cmp_eq_u16_e64 s[{sE2}:{sE2+1}], s{sTmp}, v{X0+1}")
e(f"  v_cmp_eq_u16_sdwa s[{sE1}:{sE1+1}], v{X0}, s{sTmp} src0_sel:WORD_1 src1_sel:WORD_0")
e(f"  v_cmp_eq_u16_sdwa s[{sE3}:{sE3+1}], v{X0+1}, s{sTmp} src0_sel:WORD_1 src1_sel:WORD_0")
e(f"  s_xor_b64 s[{sBad}:{sBad+1}], s[{sE0}:{sE0+1}], s[{sC0}:{sC0+1}]")
e(f"  s_xor_b64 s[{sE2}:{sE2+1}], s[{sE2}:{sE2+1}], s[{sC2}:{sC2+1}]")
e(f"  s_or_b64 s[{sBad}:{sBad+1}], s[{sBad}:{sBad+1}], s[{sE2}:{sE2+1}]")
for a_, b_ in ((sE1, sC1), (sE3, sC3)):
    e(f"  s_xor_b64 s[{a_}:{a_+1}], s[{a_}:{a_+1}], s[{b_}:{b_+1}]")
    e(f"  s_or_b64 s[{sBad}:{sBad+1}], s[{sBad}:{sBad+1}], s[{a_}:{a_+1}]")
e(f"  s_cmp_lg_u64 s[{sBad}:{sBad+1}], 0")
e("  s_cbranch_scc0 L_binmask")
e(f"  s_add_u32 s{sTmp}, s{sRing}, {MOFF}")
for i in range(4):
    e(f"  v_mov_b32 v{M+i}, 0")
e(f"  v_lshl_add_u32 v{Z+6}, v{vLane}, 4, s{sTmp}")
e(f"  ds_write_b128 v{Z+6}, {vr(M,4)}")
e(f"  v_add_u32 v{vML}, s{sTmp}, v{vQ16}")
e(f"  v_lshlrev_b32 v{M+4}, 16, v{X0}")
e(f"  v_and_b32 v{M+5}, s{sK2}, v{X0}")
e(f"  v_lshlrev_b32 v{M+6}, 16, v{X0+1}")
e(f"  v_and_b32 v{M+7}, s{sK2}, v{X0+1}")
for i in range(4):
    e(f"  v_subrev_u32 v{pos[i]}, s{sList}, v{pos[i]}")
    e(f"  v_lshl_add_u32 v{pos[i]}, v{pos[i]}, 2, s{sTmp}")
for i, c in enumerate((sC0, sC1, sC2, sC3)):
    e(f"  s_mov_b64 exec, s[{c}:{c+1}]")
    e(f"  ds_write_b32 v{pos[i]}, v{M+4+i}")
e("  s_mov_b64 exec, -1")
e("L_binmask:")
W1R = M
Wa, Wc, Wd, Wb_ = W1R, W1R + 4, W1R + 8, W1R + 12
e("  s_waitcnt lgkmcnt(0)")
for m in range(4):
    for r in range(2):
        e(f"  v_lshlrev_b32 v{W1R+4*m+2*r}, 16, v{RW+2*m+r}")
        e(f"  v_and_b32 v{W1R+4*m+2*r+1}, s{sK2}, v{RW+2*m+r}")
for p in range(2):
    e(f"  v_pk_add_f32 {vr(Wa+2*p,2)}, {vr(Wa+2*p,2)}, {vr(Wc+2*p,2)}")
for p in range(2):
    e(f"  v_pk_add_f32 {vr(Wb_+2*p,2)}, {vr(Wb_+2*p,2)}, {vr(Wc+2*p,2)} neg_lo:[0,1] neg_hi:[0,1]")
for base in (Wa, Wd, Wb_):
    for p in range(2):
        e(f"  v_pk_mul_f32 {vr(base+2*p,2)}, {vr(base+2*p,2)}, s[{sScale}:{sScale+1}]")
e(f"  v_cvt_pk_bf16_f32 v{RW+2}, v{Wd}, v{Wd+1}")
e(f"  v_cvt_pk_bf16_f32 v{RW+3}, v{Wd+2}, v{Wd+3}")
e(f"  v_cvt_pk_bf16_f32 v{RW}, v{Wa}, v{Wa+1}")
e(f"  v_cvt_pk_bf16_f32 v{RW+1}, v{Wa+2}, v{Wa+3}")
e(f"  v_cvt_pk_bf16_f32 v{RW+6}, v{Wb_}, v{Wb_+1}")
e(f"  v_cvt_pk_bf16_f32 v{RW+7}, v{Wb_+2}, v{Wb_+3}")
e(f"  ds_write_b128 v{PFA}, {vr(RW,4)}")
e(f"  ds_write_b64 v{QWA}, {vr(RW+6,2)}")
e(f"  s_cmp_eq_u32 s{sWave}, {SP0}")
e("  s_cbranch_scc0 L_nb1")
e(f"  v_mul_f32 v{SB1}, s{sScale}, v{SB1}")
e(f"  v_lshlrev_b32 v{M+26}, 2, v{vLane}")
e(f"  ds_write_b32 v{M+26}, v{SB1} offset:{BB}")
e("L_nb1:")
e(f"  s_cmp_eq_u32 s{sWave}, {SP0+2}")
e("  s_cbranch_scc0 L_nosmall2")
e(f"  v_and_b32 v{M+26}, 15, v{vLane}")
e(f"  v_lshlrev_b32 v{M+26}, 2, v{M+26}")
e(f"  ds_write_b32 v{M+26}, v{SB2} offset:{B2B}")
if OPT["sharec"]:
    e(f"  v_mov_b32 v{M+26}, 0")
    e(f"  ds_write_b32 v{M+26}, v{M+26} offset:{CFLAG}")
e("L_nosmall2:")
e("  s_waitcnt lgkmcnt(0)")
e("  s_barrier")
stamp(5)
prio(OPT["mprio"])
e(f"  ds_read_b128 {vr(HT,4)}, v{vTA}")
e(f"  ds_read_b128 {vr(HT+4,4)}, v{vTA} offset:64")
if not OPT["sharec"]:
    for tau in range(4):
        e(f"  ds_read_b128 {vr(C+4*tau,4)}, v{vQ16} offset:{BB+64*tau}")
    for g in range(8):
        e(f"  ds_read_b128 {vr(M+4*g,4)}, v{vQA} offset:{1024*g}")
else:
    e(f"  s_sub_u32 s{sE2}, s{sWave}, {OPT['cw0']}")
    e(f"  s_cmp_lt_u32 s{sE2}, 4")
    e("  s_cbranch_scc0 L_noc")
    e(f"  v_and_b32 v{M}, 15, v{vLane}")
    e(f"  s_lshl_b32 s{sTmp}, s{sE2}, 11")
    e(f"  v_lshl_add_u32 v{M+1}, v{M}, 7, v{vQ16}")
    e(f"  v_add_u32 v{M+2}, s{sTmp}, v{vQA}")
    e(f"  s_lshl_b32 s{sTmp}, s{sE2}, 6")
    e(f"  v_add_u32 v{M+3}, s{sTmp}, v{vQ16}")
    e(f"  ds_read_b128 {vr(M+4,4)}, v{M+1} offset:{TB}")
    e(f"  ds_read_b128 {vr(M+8,4)}, v{M+1} offset:{TB+64}")
    e(f"  ds_read_b128 {vr(M+12,4)}, v{M+2}")
    e(f"  ds_read_b128 {vr(M+16,4)}, v{M+2} offset:1024")
    e(f"  ds_read_b128 {vr(M+20,4)}, v{M+3} offset:{BB}")
    e(f"  v_mul_u32_u24 v{M}, {CSTR}, v{M}")
    e(f"  v_add_u32 v{M}, v{M}, v{M+3}")
    e(f"  v_add_u32 v{M}, {CB}, v{M}")
    e(f"  v_mov_b32 v{M+1}, 1")
    e(f"  v_mov_b32 v{M+2}, 0")
    e("  s_waitcnt lgkmcnt(0)")
    e(f"  v_mfma_f32_16x16x32_bf16 {vr(M+20,4)}, {vr(M+12,4)}, {vr(M+4,4)}, {vr(M+20,4)}")
    e(f"  v_mfma_f32_16x16x32_bf16 {vr(M+20,4)}, {vr(M+16,4)}, {vr(M+8,4)}, {vr(M+20,4)}")
    e("  s_nop 7")
    e(f"  ds_write_b128 v{M}, {vr(M+20,4)}")
    e("  s_waitcnt lgkmcnt(0)")
    e("  s_mov_b64 exec, 1")
    e(f"  ds_add_u32 v{M+2}, v{M+1} offset:{CFLAG}")
    e("  s_mov_b64 exec, -1")
    e("L_noc:")
nlab = [0]
def cond_block(old_here, young_here, body):
    if not (old_here or young_here):
        return
    nlab[0] += 1
    lab_ = nlab[0]
    if old_here != young_here:
        e(f"  s_cmp_lt_u32 s{sWave}, {OPT['split']}")
        e(f"  s_cbranch_scc{0 if old_here else 1} L_rd{lab_}")
    body()
    if old_here != young_here:
        e(f"L_rd{lab_}:")
def idx2():
    e(f"  ds_read_u8 v{vP0}, v{vL} offset:32")
    e(f"  ds_read_u8 v{vP1}, v{vL} offset:40")
def ring_dma(posn):
    def t1():
        if OPT["e3"] == 0:
            dma(vP0, 1, 0)
        elif OPT["e3"] > 1:
            nlab[0] += 1
            l_ = nlab[0]
            e(f"  s_cmp_lt_u32 s{sWave}, {OPT['split']}")
            e(f"  s_cbranch_scc{1 if OPT['e3'] == 2 else 0} L_e3s{l_}")
            dma(vP0, 1, 0)
            e(f"L_e3s{l_}:")
        dma(vP1, 1, 1)
        if posn != -2:
            idx2()
    def t2():
        e("  s_waitcnt lgkmcnt(0)")
        dma(vP0, 2, 0)
        if OPT["dist"] != 25:
            dma(vP1, 2, 1)
    if posn == -1:
        cond_block(OPT["p1"] == -2, OPT["q1"] == -2, idx2)
    cond_block(OPT["p1"] == posn, OPT["q1"] == posn, t1)
    if OPT["dist"] in (3, 25):
        cond_block(OPT["p2"] == posn, OPT["q2"] == posn, t2)
B0 = [D3 + 4*i for i in range(4)]
B1 = [W2, W2 + 4, W2 + 8, HB]
BUFS = [B0, B1]
def mread(g):
    s, h = g >> 1, g & 1
    for tau in range(4):
        e(f"  ds_read_b128 {vr(BUFS[g&1][tau],4)}, v{vPA} offset:{tau*4096+s*2048+h*1024}")
ring_dma(-2)
if not OPT["sharec"]:
    for g in range(8):
        e(f"  s_waitcnt lgkmcnt({7-g})")
        tau, s = g >> 1, g & 1
        e(f"  v_mfma_f32_16x16x32_bf16 {vr(C+4*tau,4)}, {vr(M+4*g,4)}, {vr(HT+4*s,4)}, {vr(C+4*tau,4)}")
ring_dma(-1)
mread(0)
DT = [Z, Z + 4, Z + 8, Z + 12]
if OPT["sharec"]:
    e("  s_waitcnt lgkmcnt(4)")
e(f"  v_and_b32 v{AD+2}, v{HT}, v{vM0}")
e(f"  v_and_b32 v{AD+3}, v{HT+1}, v{vM1}")
def m_mfma(g, dst):
    for tau in range(4):
        e(f"  v_mfma_f32_16x16x32_bf16 {vr(dst+4*tau,4)}, {vr(AD,4)}, {vr(BUFS[g&1][tau],4)}, 0")
def m_and(g):
    s2, h2 = g >> 1, g & 1
    e(f"  v_and_b32 v{AD+2}, v{HT+4*s2+2*h2}, v{vM0}")
    e(f"  v_and_b32 v{AD+3}, v{HT+4*s2+2*h2+1}, v{vM1}")
def m_cvt(g, src):
    s, h = g >> 1, g & 1
    for tau in range(4):
        for p in range(2):
            e(f"  v_cvt_pk_bf16_f32 v{M+8*tau+4*s+2*h+p}, v{src+4*tau+2*p}, v{src+4*tau+2*p+1}")
if OPT["mpipe"]:
    assert OPT["sharec"] and OPT["earlyc"]
    mread(1)
    e("  s_waitcnt lgkmcnt(4)")
    m_mfma(0, Z)
    m_and(1)
    mread(2)
    e("  s_waitcnt lgkmcnt(4)")
    m_mfma(1, C)
    m_and(2)
    m_cvt(0, Z)
    ring_dma(0)
    mread(3)
    e("  s_waitcnt lgkmcnt(4)")
    m_mfma(2, Z)
    m_and(3)
    m_cvt(1, C)
    ring_dma(1)
    e("  s_waitcnt lgkmcnt(0)")
    m_mfma(3, C)
    e(f"  v_mov_b32 v{AD}, 0")
    e(f"  s_mul_i32 s{sTmp2}, s{sWave}, {CSTR}")
    e(f"  ds_read_b32 v{AD+1}, v{AD} offset:{CFLAG}")
    e(f"  ds_read_b128 {vr(W2,4)}, v{vQ16} offset:{W2A}")
    e(f"  ds_read_b128 {vr(W2+4,4)}, v{vQ16} offset:{W2C}")
    e(f"  ds_read_b128 {vr(B2,4)}, v{vQ16} offset:{B2B}")
    e(f"  s_add_u32 s{sTmp2}, s{sTmp2}, {CB}")
    e(f"  v_add_u32 v{AD+2}, s{sTmp2}, v{vQ16}")
    m_cvt(2, Z)
    ring_dma(2)
    m_cvt(3, C)
    ring_dma(3)
else:
    for g in range(4):
        s, h = g >> 1, g & 1
        if g < 3:
            mread(g + 1)
        e(f"  s_waitcnt lgkmcnt({4 if g < 3 else 0})")
        for tau in range(4):
            e(f"  v_mfma_f32_16x16x32_bf16 {vr(DT[tau],4)}, {vr(AD,4)}, {vr(BUFS[g&1][tau],4)}, 0")
        if g < 3:
            s2, h2 = (g + 1) >> 1, (g + 1) & 1
            e(f"  v_and_b32 v{AD+2}, v{HT+4*s2+2*h2}, v{vM0}")
            e(f"  v_and_b32 v{AD+3}, v{HT+4*s2+2*h2+1}, v{vM1}")
            e("  s_nop 2")
        elif OPT["sharec"] and OPT["earlyc"]:
            e(f"  v_mov_b32 v{AD}, 0")
            e(f"  s_mul_i32 s{sTmp2}, s{sWave}, {CSTR}")
            e(f"  ds_read_b32 v{AD+1}, v{AD} offset:{CFLAG}")
            e(f"  ds_read_b128 {vr(W2,4)}, v{vQ16} offset:{W2A}")
            e(f"  ds_read_b128 {vr(W2+4,4)}, v{vQ16} offset:{W2C}")
            e(f"  ds_read_b128 {vr(B2,4)}, v{vQ16} offset:{B2B}")
            e(f"  s_add_u32 s{sTmp2}, s{sTmp2}, {CB}")
            e(f"  v_add_u32 v{AD+2}, s{sTmp2}, v{vQ16}")
        else:
            e("  s_nop 4")
        for tau in range(4):
            for p in range(2):
                e(f"  v_cvt_pk_bf16_f32 v{M+8*tau+4*s+2*h+p}, v{DT[tau]+2*p}, v{DT[tau]+2*p+1}")
        ring_dma(g)
if OPT["sharec"] and OPT["earlyc"]:
    e("  s_waitcnt lgkmcnt(3)")
    e("L_cpoll:")
    e(f"  v_readfirstlane_b32 s{sTmp}, v{AD+1}")
    e(f"  s_cmp_ge_u32 s{sTmp}, 4")
    e("  s_cbranch_scc1 L_cready")
    e(f"  ds_read_b32 v{AD+1}, v{AD} offset:{CFLAG}")
    e("  s_waitcnt lgkmcnt(0)")
    e("  s_branch L_cpoll")
    e("L_cready:")
    for tau in range(4):
        e(f"  ds_read_b128 {vr(C+4*tau,4)}, v{AD+2} offset:{64*tau}")
else:
    if OPT["sharec"]:
        e(f"  v_mov_b32 v{HB}, 0")
        e(f"  s_mul_i32 s{sTmp}, s{sWave}, {CSTR}")
        e(f"  s_add_u32 s{sTmp}, s{sTmp}, {CB}")
        e(f"  v_add_u32 v{HB+1}, s{sTmp}, v{vQ16}")
        e("L_cpoll:")
        e(f"  ds_read_b32 v{HB+2}, v{HB} offset:{CFLAG}")
        e("  s_waitcnt lgkmcnt(0)")
        e(f"  v_readfirstlane_b32 s{sTmp}, v{HB+2}")
        e(f"  s_cmp_lt_u32 s{sTmp}, 4")
        e("  s_cbranch_scc1 L_cpoll")
        for tau in range(4):
            e(f"  ds_read_b128 {vr(C+4*tau,4)}, v{HB+1} offset:{64*tau}")
    e(f"  ds_read_b128 {vr(W2,4)}, v{vQ16} offset:{W2A}")
    e(f"  ds_read_b128 {vr(W2+4,4)}, v{vQ16} offset:{W2C}")
    e(f"  ds_read_b128 {vr(B2,4)}, v{vQ16} offset:{B2B}")
ring_dma(4)
e(f"  s_mov_b32 s{sC0}, 0xffff0000")
e(f"  s_mov_b32 s{sC0+1}, 0")
e(f"  s_mov_b32 s{sC1}, 0")
e(f"  s_mov_b32 s{sC1+1}, 0xffff")
e(f"  s_mov_b32 s{sC2}, 0")
e(f"  s_mov_b32 s{sC2+1}, 0xffff0000")
e(f"  s_lshl_b32 s{sE3}, s{sB}, 7")
if OPT["tab2"]:
    def pack(d):
        d = f"{d:04d}"
        return sum(int(c) << (4 * i) for i, c in enumerate(d))
    e(f"  s_lshr_b32 s42, s{sWave}, 2")
    e(f"  s_lshl_b32 s42, s42, 2")
    e(f"  s_lshr_b32 s40, {pack(OPT['tab2'])}, s42")
    e(f"  s_lshr_b32 s41, {pack(OPT['tab1'])}, s42")
    e(f"  s_and_b32 s40, s40, 15")
    e(f"  s_and_b32 s41, s41, 15")
e(f"  v_mov_b32 v{D2+2}, 0")
e(f"  v_mov_b32 v{D2+3}, 0")
e(f"  v_add_u32 v{vL}, {32 if (OPT['dist'] == 25 or OPT['hyb']) else 16*OPT['dist']}, v{vL}")
if OPT["hyb"]:
    e(f"  s_mov_b32 s{sN}, s{sNT}")
    e(f"  s_mov_b32 s{sK3}, 3")
e("  s_nop 0")
e(f"  v_mfma_f32_32x32x8_bf16 {vr(D3,16)}, {vr(D2+2,2)}, {vr(D2+2,2)}, 0")
e("  s_waitcnt lgkmcnt(0)")
stamp(6)
if OPT["stamp"]:
    e(f"  s_waitcnt vmcnt(4)")
    stamp(7)
if OPT["acc"]:
    e("  s_mov_b32 s44, 0")
    e("  s_mov_b32 s45, 0")
prio(2)
e(f"  s_cmp_eq_u32 s{sNT}, 0")
e("  s_cbranch_scc1 L_out")
e(f"  s_cmp_lg_u64 s[{sBad}:{sBad+1}], 0")
e("  s_cbranch_scc1 L_gen0")

lab = [0]
tails = []
D25 = OPT["dist"] == 25
DIST = 3 if D25 else OPT["dist"]
def tile(slot, general, lab_exit):
    so = slot * 2048
    sd_ = ((slot + DIST) % NS) * 2048
    lab[0] += 1
    k = lab[0]
    if OPT["acc"]:
        e("  s_memtime s[40:41]")
        e("  s_waitcnt lgkmcnt(0)")
    HYB = OPT["hyb"]
    e(f"  s_cmp_ge_u32 s{sNT}, {HYB - 1 if HYB else DIST}")
    e(f"  s_cbranch_scc0 L_tw{k}")
    e(f"  s_waitcnt vmcnt({3 if D25 else 2*(DIST-1)})")
    e(f"L_aw{k}:")
    if OPT["acc"]:
        e("  s_memtime s[42:43]")
        e("  s_waitcnt lgkmcnt(0)")
        e("  s_sub_u32 s40, s42, s40")
        e("  s_add_u32 s44, s44, s40")
    tails.append(k)
    e(f"  ds_read_b128 {vr(HB,4)}, v{vA0} offset:{so}")
    e(f"  ds_read_b128 {vr(HB+4,4)}, v{vA1} offset:{so}")
    for d in range(4):
        e(f"  ds_read_b64_tr_b16 {vr(HT+2*d,2)}, v{vT[d]} offset:{so}")
    if D25:
        e(f"  ds_read_u8 v{vP0}, v{vL} offset:{16*slot+16}")
        e(f"  ds_read_u8 v{vP1}, v{vL} offset:{16*slot+8}")
    elif HYB:
        e(f"  s_cmp_ge_u32 s{sNT}, {HYB}")
        e(f"  s_cbranch_scc0 L_i2{k}")
        e(f"  ds_read_u8 v{vP0}, v{vL} offset:{16*slot+16}")
        e(f"  ds_read_u8 v{vP1}, v{vL} offset:{16*slot+24}")
        e(f"  s_branch L_i3{k}")
        e(f"L_i2{k}:")
        e(f"  ds_read_u8 v{vP0}, v{vL} offset:{16*slot}")
        e(f"  ds_read_u8 v{vP1}, v{vL} offset:{16*slot+8}")
        e(f"L_i3{k}:")
    else:
        e(f"  ds_read_u8 v{vP0}, v{vL} offset:{16*slot}")
        e(f"  ds_read_u8 v{vP1}, v{vL} offset:{16*slot+8}")
    nrd = 8
    if OPT["prio"] and OPT["lprio"]:
        e(f"  s_cmp_gt_u32 s{sNT}, {'s40' if OPT['tab2'] else OPT['t2']}")
        e(f"  s_cbranch_scc1 L_p{k}")
        e(f"  s_setprio 1")
        e(f"  s_cmp_gt_u32 s{sNT}, {'s41' if OPT['tab2'] else OPT['t1']}")
        e(f"  s_cbranch_scc1 L_p{k}")
        e(f"  s_setprio 0")
        e(f"L_p{k}:")
    e(f"  s_waitcnt lgkmcnt({nrd-1})")
    for tau in range(4):
        e(f"  v_mfma_f32_16x16x32_bf16 {vr(Z+4*tau,4)}, {vr(M+8*tau,4)}, {vr(HB,4)}, {vr(C+4*tau,4)}")
    e(f"  s_waitcnt lgkmcnt({nrd-2})")
    for tau in range(4):
        e(f"  v_mfma_f32_16x16x32_bf16 {vr(Z+4*tau,4)}, {vr(M+8*tau+4,4)}, {vr(HB+4,4)}, {vr(Z+4*tau,4)}")
    e("  s_nop 4")
    for i in range(16):
        e(f"  v_exp_f32 v{Z+i}, v{Z+i}")
    e("  s_nop 1")
    e(f"  v_mfma_f32_32x32x8_bf16 {vr(Z,16)}, {vr(ONE,2)}, {vr(ONE,2)}, {vr(Z,16)}")
    if OPT["dsplit"]:
        e("  s_waitcnt lgkmcnt(0)")
        e(f"  s_cmp_gt_u32 s{sNT}, {NS}")
        e(f"  s_cbranch_scc0 L_nh{k}")
        e(f"  s_add_u32 m0, s{sRing}, {so}")
        e("  s_nop 0")
        e(f"  buffer_load_dwordx4 {vr(vP0,2)}, s[{rH}:{rH+3}], 0 idxen offen{OPT['nt_hist']} lds")
        e(f"L_nh{k}:")
        e("  s_nop 8")
    else:
        e("  s_nop 11")
    for i in range(16):
        e(f"  v_rcp_f32 v{Z+i}, v{Z+i}")
    for i in range(8):
        e(f"  v_cvt_pk_bf16_f32 v{HB+i}, v{Z+2*i}, v{Z+2*i+1}")
    if general:
        e(f"  ds_read_b128 {vr(MK,4)}, v{vML} offset:{64*slot}")
    else:
        e("  s_nop 0")
    e(f"  v_mfma_f32_16x16x32_bf16 {vr(D2,4)}, {vr(HB,4)}, {vr(W2,4)}, {vr(B2,4)}")
    e(f"  v_mfma_f32_16x16x32_bf16 {vr(D2,4)}, {vr(HB+4,4)}, {vr(W2+4,4)}, {vr(D2,4)}")
    if slot == NS - 1 and general:
        e(f"  v_add_u32 v{vML}, {64*NS}, v{vML}")
    e("  s_nop 7")
    e("  s_waitcnt lgkmcnt(0)")
    if general:
        for i in range(4):
            e(f"  v_mul_f32 v{D2+i}, v{MK+i}, v{D2+i}")
    e(f"  v_cvt_pk_bf16_f32 v{SP}, v{D2}, v{D2+1}")
    e(f"  v_cvt_pk_bf16_f32 v{SP+1}, v{D2+2}, v{D2+3}")
    e(f"  s_cmp_gt_u32 s{sNT}, {HYB - 1 if HYB else (2 if D25 else DIST)}")
    e("  s_nop 0")
    for d in range(4):
        e(f"  v_mfma_f32_16x16x16_bf16 {vr(D3+4*d,4)}, {vr(SP,2)}, {vr(HT+2*d,2)}, {vr(D3+4*d,4)}")
    if OPT["acc"]:
        e("  s_memtime s[40:41]")
        e("  s_waitcnt lgkmcnt(0)")
    e(f"  s_cbranch_scc0 {'L_h2' if HYB else 'L_nd'}{k}")
    if D25:
        e(f"  s_add_u32 m0, s{sRing}, {((slot + 2) % NS) * 2048 + 1024}")
        e(f"  s_cmp_gt_u32 s{sNT}, 3")
        e(f"  buffer_load_dwordx4 {vr(vP1,2)}, s[{rH}:{rH+3}], 0 idxen offen{OPT['nt_hist']} lds")
        e(f"  s_cbranch_scc0 L_nd{k}")
        e(f"  s_add_u32 m0, s{sRing}, {so}")
        e("  s_nop 0")
        e(f"  buffer_load_dwordx4 {vr(vP0,2)}, s[{rH}:{rH+3}], 0 idxen offen{OPT['nt_hist']} lds")
    elif not OPT["dsplit"]:
        e(f"  s_add_u32 m0, s{sRing}, {sd_}")
        e("  s_nop 0")
        e(f"  buffer_load_dwordx4 {vr(vP0,2)}, s[{rH}:{rH+3}], 0 idxen offen{OPT['nt_hist']} lds")
    if not D25:
        e(f"  s_add_u32 m0, s{sRing}, {sd_+1024}")
        e("  s_nop 0")
        e(f"  buffer_load_dwordx4 {vr(vP1,2)}, s[{rH}:{rH+3}], 0 idxen offen{OPT['nt_hist']} lds")
    if HYB:
        e(f"  s_add_u32 s{sK3}, s{sK3}, 1")
        e(f"  s_branch L_nd{k}")
        e(f"L_h2{k}:")
        e(f"  s_sub_u32 s{sTmp}, s{sN}, s{sNT}")
        e(f"  s_add_u32 s{sTmp}, s{sTmp}, 2")
        e(f"  s_cmp_eq_u32 s{sTmp}, s{sK3}")
        e(f"  s_cbranch_scc0 L_nd{k}")
        e(f"  s_cmp_gt_u32 s{sNT}, 2")
        e(f"  s_cbranch_scc0 L_nd{k}")
        e(f"  s_add_u32 m0, s{sRing}, {((slot + 2) % NS) * 2048}")
        e(f"  s_add_u32 s{sK3}, s{sK3}, 1")
        e(f"  buffer_load_dwordx4 {vr(vP0,2)}, s[{rH}:{rH+3}], 0 idxen offen{OPT['nt_hist']} lds")
        e(f"  s_add_u32 m0, s{sRing}, {((slot + 2) % NS) * 2048 + 1024}")
        e("  s_nop 0")
        e(f"  buffer_load_dwordx4 {vr(vP1,2)}, s[{rH}:{rH+3}], 0 idxen offen{OPT['nt_hist']} lds")
    e(f"L_nd{k}:")
    if OPT["acc"]:
        e("  s_memtime s[42:43]")
        e("  s_waitcnt lgkmcnt(0)")
        e("  s_sub_u32 s40, s42, s40")
        e("  s_add_u32 s45, s45, s40")
    if slot == NS - 1:
        e(f"  v_add_u32 v{vL}, {16*NS}, v{vL}")
    e(f"  s_sub_u32 s{sNT}, s{sNT}, 1")
    e(f"  s_cmp_eq_u32 s{sNT}, 0")
    e(f"  s_cbranch_scc1 {lab_exit}")

e("L_bin0:")
for slot in range(NS):
    tile(slot, False, "L_out")
e("  s_branch L_bin0")
e("L_gen0:")
for slot in range(NS):
    tile(slot, True, "L_out")
e("  s_branch L_gen0")
for k in tails:
    e(f"L_tw{k}:")
    if OPT["hyb"]:
        e(f"  s_cmp_gt_u32 s{sNT}, 1")
        e(f"  s_cbranch_scc0 L_tw{k}_1")
        e("  s_waitcnt vmcnt(2)")
        e(f"  s_branch L_aw{k}")
        e(f"L_tw{k}_1:")
    for r in range((1 if OPT["hyb"] else DIST - 1), 1, -1):
        e(f"  s_cmp_eq_u32 s{sNT}, {r}")
        e(f"  s_cbranch_scc0 L_tw{k}_{r}")
        e(f"  s_waitcnt vmcnt({2*(r-1)})")
        e(f"  s_branch L_aw{k}")
        e(f"L_tw{k}_{r}:")
    e("  s_waitcnt vmcnt(0)")
    e(f"  s_branch L_aw{k}")

e("L_out:")
stamp(8)
e("  s_nop 7")
e(f"  v_lshl_add_u32 v{Z}, v{vLane}, 1, s{sE3}")
e(f"  v_cndmask_b32_e64 v{Z+1}, v{D3}, v{D3+4}, s[{sC0}:{sC0+1}]")
e(f"  v_cndmask_b32_e64 v{Z+1}, v{Z+1}, v{D3+8}, s[{sC1}:{sC1+1}]")
e(f"  v_cndmask_b32_e64 v{Z+1}, v{Z+1}, v{D3+12}, s[{sC2}:{sC2+1}]")
e(f"  v_cvt_pk_bf16_f32 v{Z+1}, v{Z+1}, v{Z+1}")
e(f"  global_store_short v{Z}, v{Z+1}, s[{sO}:{sO+1}]{OPT['nt_out']}")
if OPT["endwait"] or OPT["stamp"]:
    e("  s_waitcnt vmcnt(0)")
if OPT["stamp"]:
    stamp(9)
    e(f"  s_getreg_b32 s{STAMP0}, hwreg(HW_REG_XCC_ID)")
    e(f"  v_writelane_b32 v{vST}, s{STAMP0}, 10")
    e(f"  v_writelane_b32 v{vST}, s{sN}, 11")
    if OPT["acc"]:
        e(f"  v_writelane_b32 v{vST}, s44, 14")
        e(f"  v_writelane_b32 v{vST}, s45, 15")
    e(f"  s_lshl_b32 s{sTmp}, s{sB}, 6")
    e(f"  s_add_u32 s88, s86, s{sTmp}")
    e(f"  s_addc_u32 s89, s87, 0")
    e(f"  s_and_b32 s89, s89, 0xffff")
    e(f"  s_mov_b32 s90, 64")
    e(f"  s_mov_b32 s91, 0x20000")
    e(f"  v_lshlrev_b32 v{Z}, 2, v{vLane}")
    e(f"  buffer_store_dword v{vST}, v{Z}, s[88:91], 0 offen")
    e("  s_waitcnt vmcnt(0)")
e("L_end:")
e("  s_endpgm")
e('.section .rodata,"a"')
e(".p2align 6")
e(f".amdhsa_kernel {NAME}_kernel")
e("  .amdhsa_next_free_vgpr 128")
e("  .amdhsa_next_free_sgpr 96")
e("  .amdhsa_accum_offset 128")
e("  .amdhsa_group_segment_fixed_size 0")
e("  .amdhsa_kernarg_size 80")
e("  .amdhsa_user_sgpr_count 2")
e("  .amdhsa_user_sgpr_kernarg_segment_ptr 1")
e("  .amdhsa_system_sgpr_workgroup_id_x 1")
e("  .amdhsa_float_denorm_mode_32 3")
e(".end_amdhsa_kernel")
open(sys.argv[1], "w").write("\n".join(x for x in out if x is not None) + "\n")
```

```python
import sys

NAME = "standalone__sequential_behavior_din__recsys"
OPT = dict(nt_hist=" nt", nt_mask=" nt", nt_out="", stamp=0, prio=1, mprio=3, lprio=1,
           p1=0, p2=2, q1=-2, q2=1, t2=3, t1=1, split=8, acc=0, mbar=0, sp0=13, pf=0, pfn=44, endwait=1, sharec=1, cw0=4, earlyc=1, exact=0, dsplit=0, e3=0, dist=3, hyb=6, dt2=0, dt1=0, tab2=5432, tab1=2211, mpipe=0, hop=0, ool=1)
for a in sys.argv[2:]:
    k, v = a.split("=", 1)
    if k.startswith("nt_"):
        OPT[k] = (" " + v.replace("+", " ")) if v else ""
    else:
        OPT[k] = int(v)

out = []
def e(s=""):
    out.append(s)

NS = 3
BB = 0
W2A = 256
W2C = 320
B2B = 384
TB = 512
LIST = TB + 2048
RING = LIST + 16 * 256
RPW = NS * 2048 + 1024
MOFF = NS * 2048
PFB = RING + 16 * RPW
QB = PFB + 16384
CSTR = 272
CB = QB + 8192
LDS_BYTES = CB + 16 * CSTR
CFLAG = 448
assert LDS_BYTES <= 163840 and RING % 16 == 0

M, C, D3, W2, B2, Z, HB, HT, D2 = 0, 32, 48, 64, 72, 76, 92, 100, 108
SP = D2
ONE = 112
vA0, vA1 = 114, 115
vT = [116, 117, 118, 119]
vP0, vP1 = 120, 122
vDC0, vDC1 = 121, 123
vL, vML = 124, 125
vLane, vQ16 = 126, 127
vST = vML
MK = Z

def vr(b, n=1):
    return f"v{b}" if n == 1 else f"v[{b}:{b+n-1}]"

sT, sH, sMk, sW1, sB1, sW2, sB2, sO = 4, 6, 8, 10, 12, 14, 16, 18
sWave, sB = 20, 21
rH = 24
sRing, sList, sN, sNT = 56, 57, 58, 59
sC0, sC1, sC2, sC3 = 60, 62, 64, 66
sK1, sK2, sK3 = 69, 70, 71
sScale, sTmp, sTmp2 = 72, 74, 75
sBad, sDmy = 76, 78
STAMP0 = 84
sE0, sE1, sE2, sE3 = 88, 90, 92, 94

def stamp(i):
    if OPT["stamp"]:
        e(f"  s_memrealtime s[{STAMP0}:{STAMP0+1}]")
        e("  s_waitcnt lgkmcnt(0)")
        e(f"  v_writelane_b32 v{vST}, s{STAMP0}, {i}")
        if i in (6, 8):
            e(f"  s_memtime s[{STAMP0}:{STAMP0+1}]")
            e("  s_waitcnt lgkmcnt(0)")
            e(f"  v_writelane_b32 v{vST}, s{STAMP0}, {12 if i == 6 else 13}")

cold = []
class OutOfLine:
    def __init__(self, entry, back):
        self.entry, self.back = entry, back
    def __enter__(self):
        self.n = len(out)
    def __exit__(self, *a):
        blk = out[self.n:]
        del out[self.n:]
        cold.append(f"{self.entry}:")
        cold.extend(blk)
        cold.append(f"  s_branch {self.back}")

def prio(p):
    if OPT["prio"]:
        e(f"  s_setprio {p}")

def dma(pair, slot, hf, filler="  s_nop 0"):
    e(f"  s_add_u32 m0, s{sRing}, {slot*2048+hf*1024}")
    e(filler)
    e(f"  buffer_load_dwordx4 {vr(pair,2)}, s[{rH}:{rH+3}], 0 idxen offen{OPT['nt_hist']} lds")

hdr = open("cdna_kernels/" + NAME + ".s.ref").read().split("; Override launch")[0]
e(hdr.rstrip())
e(f"; @launch grid=(256,1,1) block=(1024,1,1) lds={LDS_BYTES}")
for line in """
 DIN local activation unit, one wave per batch row, 16 waves (rows) per workgroup.
   z = hist (Wa + Wc + diag(t) Wd) + t (Wb - Wc) + b1      (w1 = [Wa; Wb; Wc; Wd], t = target row)
   out = sum_l mask_l (sigmoid(z_l) . w2 + b2) hist_l
 Rows whose mask is zero contribute nothing and are never fetched: each wave compacts the indices of its active
 rows and gathers them, 16 rows per tile, into a three-slot LDS ring with LDS-DMA loads (padding rows read as zero).
 Start-up: every wave converts a 4-row slice of w1 into the shared operand images [P'|Wd'] and Q' (scaled by
 -log2 e); after one barrier it builds its own M' = P' + diag(t) Wd' with MFMAs against a [1|t] selector; four waves
 compute c' = b1' + Q'^T t for all 16 rows and publish it through an LDS counter.
 Tile: Z^T = M'^T H^T + c' (MFMA), exp2, +1 (one 32x32 MFMA against a unit outer product), rcp, bf16 pack,
 scores = sigma w2 + b2 (MFMA), out += scores H (MFMA on transposed LDS reads).
 Masks that are not exactly 0 or 1 take a second loop that multiplies the scores by the mask values.
""".strip("\n").split("\n"):
    e(";" + line)
e('.amdgcn_target "amdgcn-amd-amdhsa--gfx950"')
e(".text")
e(f".globl {NAME}_kernel")
e(".p2align 8")
e(f".type {NAME}_kernel,@function")
e(f"{NAME}_kernel:")
e("  s_cmp_ge_u32 s2, 256")
e("  s_cbranch_scc1 L_end")
stamp(0)
if OPT["hop"]:
    for i in range(OPT["hop"]):
        e(f"  s_branch L_hop{i}")
        e("  .p2align 7")
        e(f"L_hop{i}:")
e("  s_load_dwordx16 s[4:19], s[0:1], 0")
if OPT["stamp"]:
    e("  s_load_dwordx2 s[86:87], s[0:1], 72")
prio(3)
X0 = W2
q_ = Z + 1
vMo, vWo, vWo2 = Z + 6, Z + 7, Z + 8
e(f"  v_lshrrev_b32 v{Z}, 6, v0")
e(f"  v_and_b32 v{vLane}, 63, v0")
e(f"  s_lshl_b32 s{sB}, s2, 4")
e(f"  v_readfirstlane_b32 s{sWave}, v{Z}")
e(f"  v_mov_b32 v{X0}, 0")
e(f"  v_mov_b32 v{X0+1}, 0")
e(f"  s_add_u32 s{sB}, s{sB}, s{sWave}")
e(f"  s_mul_i32 s{sTmp}, s{sB}, 400")
e(f"  s_mul_i32 s{sRing}, s{sWave}, {RPW}")
e(f"  v_lshl_add_u32 v{vMo}, v{vLane}, 3, s{sTmp}")
e(f"  v_and_b32 v{Z+2}, 32, v{vLane}")
e(f"  v_and_b32 v{Z+3}, 31, v{vLane}")
e(f"  s_lshl_b32 s{sTmp2}, s{sWave}, 9")
e(f"  v_lshlrev_b32 v{Z+2}, 9, v{Z+2}")
e(f"  s_add_u32 s{sK3}, s{sTmp2}, {24576-1024}")
e(f"  v_lshl_add_u32 v{vWo}, v{Z+3}, 4, s{sTmp2}")
e(f"  v_lshl_add_u32 v{vWo2}, v{Z+3}, 4, s{sK3}")
e(f"  s_bfm_b64 s[{sC0}:{sC0+1}], 50, 0")
e(f"  v_add_u32 v{vWo}, v{vWo}, v{Z+2}")
e(f"  v_sub_u32 v{vWo2}, v{vWo2}, v{Z+2}")
e(f"  s_add_u32 s{sRing}, s{sRing}, {RING}")
e(f"  s_add_u32 m0, s{sRing}, 4096")
e(f"  s_mov_b64 exec, s[{sC0}:{sC0+1}]")
e("  s_waitcnt lgkmcnt(0)")
stamp(1)
e(f"  global_load_dwordx2 {vr(X0,2)}, v{vMo}, s[{sMk}:{sMk+1}]{OPT['nt_mask']}")
e("  s_mov_b64 exec, -1")
if OPT["mbar"]:
    e("  s_barrier")
prio(2)
e(f"  global_load_lds_dwordx4 v{vWo}, s[{sW1}:{sW1+1}]")
e(f"  global_load_lds_dwordx4 v{vWo2}, s[{sW1}:{sW1+1}] offset:1024")
e(f"  v_lshrrev_b32 v{q_}, 4, v{vLane}")
if OPT["pf"]:
    e(f"  s_cmp_lt_u32 s2, {OPT['pf']}")
    e("  s_cbranch_scc0 L_nopf")
    e(f"  s_cmp_eq_u32 s{sWave}, 3")
    e("  s_cbranch_scc0 L_nopf")
    e("  s_getpc_b64 s[78:79]")
    e("L_pc:")
    e(f"  s_sub_u32 s78, s78, L_pc-{NAME}_kernel")
    e("  s_subb_u32 s79, s79, 0")
    e(f"  v_lshlrev_b32 v{M+28}, 7, v{vLane}")
    e(f"  s_bfm_b64 exec, {OPT['pfn']}, 0")
    e(f"  global_load_dword v{M+29}, v{M+28}, s[78:79]")
    e("  s_mov_b64 exec, -1")
    e("L_nopf:")
SB1, SB2 = M + 24, M + 25
SP0 = OPT["sp0"]
e(f"  s_sub_u32 s{sE2}, s{sWave}, {SP0}")
if OPT["ool"]:
    e(f"  s_cmp_le_u32 s{sE2}, 2")
    e("  s_cbranch_scc1 L_small")
    ctx = OutOfLine("L_small", "L_nosmall"); ctx.__enter__()
else:
    e(f"  s_cmp_gt_u32 s{sE2}, 2")
    e("  s_cbranch_scc1 L_nosmall")
e(f"  s_cmp_eq_u32 s{sE2}, 1")
e("  s_cbranch_scc1 L_w14")
e(f"  s_cmp_eq_u32 s{sE2}, 2")
e("  s_cbranch_scc1 L_w15")
e(f"  v_mov_b32 v{SB1}, 0")
e(f"  v_lshlrev_b32 v{M+26}, 1, v{vLane}")
e(f"  global_load_short_d16_hi v{SB1}, v{M+26}, s[{sB1}:{sB1+1}]")
e("  s_branch L_nosmall")
e("L_w14:")
e(f"  s_lshl_b32 s{sTmp2}, s2, 11")
e(f"  v_lshl_add_u32 v{M+26}, v{vLane}, 4, s{sTmp2}")
e(f"  s_mov_b32 m0, {TB}")
e("  s_nop 0")
e(f"  global_load_lds_dwordx4 v{M+26}, s[{sT}:{sT+1}]")
e(f"  global_load_lds_dwordx4 v{M+26}, s[{sT}:{sT+1}] offset:1024")
e("  s_branch L_nosmall")
e("L_w15:")
e(f"  v_bfe_u32 v{M+26}, v{vLane}, 4, 1")
e(f"  v_lshlrev_b32 v{M+26}, 6, v{M+26}")
e(f"  v_bfe_u32 v{M+27}, v{vLane}, 1, 1")
e(f"  v_lshl_add_u32 v{M+26}, v{M+27}, 5, v{M+26}")
e(f"  v_bfe_u32 v{M+27}, v{vLane}, 2, 2")
e(f"  v_lshl_add_u32 v{M+26}, v{M+27}, 3, v{M+26}")
e(f"  v_and_b32 v{M+27}, 1, v{vLane}")
e(f"  v_lshl_add_u32 v{M+26}, v{M+27}, 2, v{M+26}")
e(f"  v_mov_b32 v{SB2}, 0")
e(f"  v_mov_b32 v{M+27}, 0")
e(f"  s_mov_b32 m0, {W2A}")
e(f"  global_load_short_d16_hi v{SB2}, v{M+27}, s[{sB2}:{sB2+1}]")
e(f"  s_bfm_b64 exec, 32, 0")
e(f"  global_load_lds_dword v{M+26}, s[{sW2}:{sW2+1}]")
e("  s_mov_b64 exec, -1")
if OPT["ool"]:
    ctx.__exit__()
e("L_nosmall:")
e(f"  s_lshl_b32 s{sList}, s{sWave}, 8")
e(f"  s_add_u32 s{sList}, s{sList}, {LIST}")
e(f"  v_mov_b32 v{M}, -1")
e(f"  v_lshl_add_u32 v{Z+3}, v{vLane}, 2, s{sList}")
e(f"  ds_write_b32 v{Z+3}, v{M}")
t0, t1, t2, t3, t4 = Z, q_, Z + 2, Z + 3, Z + 4
PFA, QWA, RWA = D3, D3 + 2, D3 + 3
e(f"  s_mul_i32 s{sTmp}, s{sB}, 25600")
e(f"  v_and_b32 v{t2}, 7, v{vLane}")
e(f"  s_add_u32 s{rH}, s{sH}, s{sTmp}")
e(f"  v_xor_b32 v{t2}, v{t2}, v{t1}")
e(f"  s_addc_u32 s{rH+1}, s{sH+1}, 0")
e(f"  v_lshlrev_b32 v{vDC0}, 4, v{t2}")
e(f"  s_or_b32 s{rH+1}, s{rH+1}, {128 << 16}")
e(f"  v_xor_b32 v{vDC1}, 64, v{vDC0}")
e(f"  s_mov_b32 s{rH+2}, 200")
e(f"  v_lshrrev_b32 v{t2}, 3, v{vLane}")
e(f"  s_mov_b32 s{rH+3}, 0x20000")
e(f"  v_add_u32 v{vL}, s{sList}, v{t2}")
vR = [Z + 11, Z + 12, Z + 13, Z + 14]
e(f"  v_lshlrev_b32 v{vR[0]}, 2, v{vLane}")
e(f"  s_mov_b32 s{sK1}, 0xffff")
for i in range(1, 4):
    e(f"  v_add_u32 v{vR[i]}, {i}, v{vR[0]}")
pos = [Z + 2, Z + 3, Z + 4, Z + 5]
prio(1)
vPA = D2
vTA, vQA = Z + 9, Z + 15
vM0, vM1 = D2 + 2, D2 + 3
S = []
S.append(f"  s_mov_b32 s{sK2}, 0xffff0000")
S.append(f"  s_mov_b32 s{sScale}, 0xbfb8aa3b")
S.append(f"  s_mov_b32 s{sScale+1}, 0xbfb8aa3b")
S.append(f"  s_lshr_b32 s{sE0}, s{sWave}, 3")
S.append(f"  s_and_b32 s{sE0+1}, s{sWave}, 1")
S.append(f"  s_bfe_u32 s{sE1}, s{sWave}, 0x20001")
S.append(f"  s_lshl_b32 s{sTmp}, s{sE0}, 11")
S.append(f"  s_lshl_b32 s{sK3}, s{sE0+1}, 10")
S.append(f"  s_add_u32 s{sTmp}, s{sTmp}, s{sK3}")
S.append(f"  s_lshl_b32 s{sK3}, s{sE1}, 8")
S.append(f"  s_add_u32 s{sTmp}, s{sTmp}, s{sK3}")
S.append(f"  s_add_u32 s{sTmp}, s{sTmp}, {PFB}")
S.append(f"  s_lshl_b32 s{sE0}, s{sE0}, 10")
S.append(f"  s_add_u32 s{sE0}, s{sE0}, s{sK3}")
S.append(f"  s_lshl_b32 s{sE0+1}, s{sE0+1}, 3")
S.append(f"  s_add_u32 s{sE0}, s{sE0}, s{sE0+1}")
S.append(f"  s_add_u32 s{sE0}, s{sE0}, {QB}")
S.append(f"  s_add_u32 s{sK3}, s{sRing}, 4096")
S.append(f"  s_lshl_b32 s{sE1}, s{sWave}, 7")
S.append(f"  s_add_u32 s{sE1}, s{sE1}, {TB}")
V = []
V.append(f"  v_and_b32 v{t0}, 15, v{vLane}")
V.append(f"  v_lshrrev_b32 v{t2}, 1, v{t0}")
V.append(f"  v_xor_b32 v{t2}, v{t2}, v{t1}")
V.append(f"  v_lshlrev_b32 v{t2}, 4, v{t2}")
V.append(f"  v_lshl_add_u32 v{t2}, v{t0}, 7, v{t2}")
V.append(f"  v_add_u32 v{vA0}, s{sRing}, v{t2}")
V.append(f"  v_xor_b32 v{vA1}, 64, v{vA0}")
V.append(f"  v_lshrrev_b32 v{t2}, 2, v{t0}")
V.append(f"  v_and_b32 v{RWA}, 3, v{vLane}")
V.append(f"  v_cmp_eq_u32_e64 s[{sC1}:{sC1+1}], v{t2}, v{t1}")
V.append(f"  v_lshlrev_b32 v{RWA}, 3, v{RWA}")
V.append(f"  v_lshl_add_u32 v{RWA}, v{t2}, 7, v{RWA}")
V.append(f"  v_lshl_add_u32 v{RWA}, v{t1}, 5, v{RWA}")
V.append(f"  v_lshl_add_u32 v{t2}, v{t1}, 2, v{t2}")
V.append(f"  v_lshrrev_b32 v{t3}, 1, v{t2}")
V.append(f"  v_bfe_u32 v{t4}, v{vLane}, 1, 1")
V.append(f"  v_xor_b32 v{t3}, v{t3}, v{t4}")
V.append(f"  v_lshlrev_b32 v{t3}, 4, v{t3}")
V.append(f"  v_lshl_add_u32 v{t3}, v{t2}, 7, v{t3}")
V.append(f"  v_and_b32 v{t2}, 1, v{vLane}")
V.append(f"  v_lshl_add_u32 v{t3}, v{t2}, 3, v{t3}")
V.append(f"  v_lshlrev_b32 v{vQ16}, 4, v{t1}")
V.append(f"  v_add_u32 v{vT[0]}, s{sRing}, v{t3}")
V.append(f"  v_lshlrev_b32 v{t0}, 4, v{t0}")
for d in range(1, 4):
    V.append(f"  v_xor_b32 v{vT[d]}, {32*d}, v{vT[0]}")
for i in range(max(len(S), len(V))):
    if i < len(V): e(V[i])
    if i < len(S): e(S[i])
e(f"  v_lshl_add_u32 v{PFA}, v{t1}, 12, v{t0}")
e(f"  v_lshl_add_u32 v{QWA}, v{t1}, 11, v{t0}")
e(f"  v_add_u32 v{RWA}, s{sK3}, v{RWA}")
e(f"  v_add_u32 v{PFA}, s{sTmp}, v{PFA}")
e(f"  v_add_u32 v{QWA}, s{sE0}, v{QWA}")
e(f"  v_add_u32 v{vTA}, s{sE1}, v{vQ16}")
e(f"  v_lshlrev_b32 v{vPA}, 4, v{vLane}")
e(f"  v_add_u32 v{vQA}, {QB}, v{vPA}")
e(f"  v_add_u32 v{vPA}, {PFB}, v{vPA}")
e(f"  v_lshlrev_b32 v{t2}, 4, v{t2}")
e(f"  v_mov_b32 v{t3}, 0xffff")
e(f"  v_lshlrev_b32 v{t3}, v{t2}, v{t3}")
e(f"  v_cmp_gt_u32 vcc, 32, v{vLane}")
e(f"  v_cndmask_b32_e64 v{t3}, 0, v{t3}, s[{sC1}:{sC1+1}]")
e(f"  v_cmp_eq_u32_e64 s[{sC1}:{sC1+1}], 0, v{t4}")
e(f"  v_mov_b32 v{t0}, 0x3f80")
e(f"  v_mov_b32 v{pos[0]}, s{sList}")
e(f"  v_cndmask_b32 v{ONE}, 0, v{t0}, vcc")
e(f"  v_mov_b32 v{ONE+1}, 0")
e(f"  v_cndmask_b32_e64 v{vM0}, 0, v{t3}, s[{sC1}:{sC1+1}]")
e(f"  v_cndmask_b32_e64 v{vM1}, v{t3}, 0, s[{sC1}:{sC1+1}]")
AD = HB + 4
e(f"  s_mov_b32 s{sTmp}, 0x3f803f80")
e(f"  v_and_b32 v{AD}, s{sTmp}, v{vM0}")
e(f"  v_and_b32 v{AD+1}, s{sTmp}, v{vM1}")
if OPT["exact"]:
    e(f"  s_cmp_gt_u32 s{sE2}, 2")
    e("  s_cbranch_scc1 L_mw2")
    e(f"  s_cmp_eq_u32 s{sE2}, 0")
    e("  s_cbranch_scc1 L_mw3")
    e("  s_waitcnt vmcnt(4)")
    e("  s_branch L_mwd")
    e("L_mw3:")
    e("  s_waitcnt vmcnt(3)")
    e("  s_branch L_mwd")
    e("L_mw2:")
e("  s_waitcnt vmcnt(2)")
if OPT["exact"]:
    e("L_mwd:")
stamp(2)
prio(3)
e(f"  v_cmp_ne_u16_e64 s[{sC0}:{sC0+1}], 0, v{X0}")
e(f"  v_cmp_lt_u32_e64 s[{sC1}:{sC1+1}], s{sK1}, v{X0}")
e(f"  v_cmp_ne_u16_e64 s[{sC2}:{sC2+1}], 0, v{X0+1}")
e(f"  v_cmp_lt_u32_e64 s[{sC3}:{sC3+1}], s{sK1}, v{X0+1}")
e(f"  v_mbcnt_lo_u32_b32 v{pos[0]}, s{sC0}, v{pos[0]}")
e(f"  v_mbcnt_hi_u32_b32 v{pos[0]}, s{sC0+1}, v{pos[0]}")
for c in (sC1, sC2, sC3):
    e(f"  v_mbcnt_lo_u32_b32 v{pos[0]}, s{c}, v{pos[0]}")
    e(f"  v_mbcnt_hi_u32_b32 v{pos[0]}, s{c+1}, v{pos[0]}")
e(f"  s_mov_b64 exec, s[{sC0}:{sC0+1}]")
e(f"  ds_write_b8 v{pos[0]}, v{vR[0]}")
e("  s_mov_b64 exec, -1")
e(f"  v_addc_co_u32_e64 v{pos[1]}, s[{sDmy}:{sDmy+1}], 0, v{pos[0]}, s[{sC0}:{sC0+1}]")
e(f"  v_addc_co_u32_e64 v{pos[2]}, s[{sDmy}:{sDmy+1}], 0, v{pos[1]}, s[{sC1}:{sC1+1}]")
e(f"  v_addc_co_u32_e64 v{pos[3]}, s[{sDmy}:{sDmy+1}], 0, v{pos[2]}, s[{sC2}:{sC2+1}]")
for i, c in ((1, sC1), (2, sC2), (3, sC3)):
    e(f"  s_mov_b64 exec, s[{c}:{c+1}]")
    e(f"  ds_write_b8 v{pos[i]}, v{vR[i]}")
e("  s_mov_b64 exec, -1")
e(f"  ds_read_u8 v{vP0}, v{vL}")
e(f"  ds_read_u8 v{vP1}, v{vL} offset:8")
if OPT["e3"]:
    e(f"  ds_read_u8 v{M+8}, v{vL} offset:16")
e(f"  s_bcnt1_i32_b64 s{sN}, s[{sC0}:{sC0+1}]")
e(f"  s_bcnt1_i32_b64 s{sK3}, s[{sC1}:{sC1+1}]")
e(f"  s_add_u32 s{sN}, s{sN}, s{sK3}")
e(f"  s_bcnt1_i32_b64 s{sK3}, s[{sC2}:{sC2+1}]")
e(f"  s_add_u32 s{sN}, s{sN}, s{sK3}")
e(f"  s_bcnt1_i32_b64 s{sK3}, s[{sC3}:{sC3+1}]")
e(f"  s_add_u32 s{sN}, s{sN}, s{sK3}")
e(f"  s_waitcnt lgkmcnt({2 if OPT['e3'] else 1})")
dma(vP0, 0, 0)
e(f"  s_waitcnt lgkmcnt({1 if OPT['e3'] else 0})")
dma(vP1, 0, 1)
if OPT["e3"]:
    if OPT["e3"] > 1:
        e(f"  s_cmp_lt_u32 s{sWave}, {OPT['split']}")
        e(f"  s_cbranch_scc{0 if OPT['e3'] == 2 else 1} L_noe3")
    e("  s_waitcnt lgkmcnt(0)")
    dma(M + 8, 1, 0, f"  v_mov_b32 v{M+9}, v{vDC0}")
    if OPT["e3"] > 1:
        e("  s_waitcnt vmcnt(3)")
        e("  s_branch L_e3d")
        e("L_noe3:")
        e("  s_waitcnt vmcnt(2)")
        e("L_e3d:")
    else:
        e("  s_waitcnt vmcnt(3)")
stamp(3)
prio(2)
RW = M + 16
if not OPT["e3"]:
    e("  s_waitcnt vmcnt(2)")
stamp(4)
for m in range(4):
    e(f"  ds_read_b64_tr_b16 {vr(RW+2*m,2)}, v{RWA} offset:{512*m}")
e(f"  ds_read_u8 v{vP0}, v{vL} offset:16")
e(f"  ds_read_u8 v{vP1}, v{vL} offset:24")
e(f"  s_add_u32 s{sNT}, s{sN}, 15")
e(f"  s_lshr_b32 s{sNT}, s{sNT}, 4")
e(f"  s_movk_i32 s{sTmp}, 0x3f80")
e(f"  v_cmp_eq_u16_e64 s[{sE0}:{sE0+1}], s{sTmp}, v{X0}")
e(f"  v_cmp_eq_u16_e64 s[{sE2}:{sE2+1}], s{sTmp}, v{X0+1}")
e(f"  v_cmp_eq_u16_sdwa s[{sE1}:{sE1+1}], v{X0}, s{sTmp} src0_sel:WORD_1 src1_sel:WORD_0")
e(f"  v_cmp_eq_u16_sdwa s[{sE3}:{sE3+1}], v{X0+1}, s{sTmp} src0_sel:WORD_1 src1_sel:WORD_0")
e(f"  s_xor_b64 s[{sBad}:{sBad+1}], s[{sE0}:{sE0+1}], s[{sC0}:{sC0+1}]")
e(f"  s_xor_b64 s[{sE2}:{sE2+1}], s[{sE2}:{sE2+1}], s[{sC2}:{sC2+1}]")
e(f"  s_or_b64 s[{sBad}:{sBad+1}], s[{sBad}:{sBad+1}], s[{sE2}:{sE2+1}]")
for a_, b_ in ((sE1, sC1), (sE3, sC3)):
    e(f"  s_xor_b64 s[{a_}:{a_+1}], s[{a_}:{a_+1}], s[{b_}:{b_+1}]")
    e(f"  s_or_b64 s[{sBad}:{sBad+1}], s[{sBad}:{sBad+1}], s[{a_}:{a_+1}]")
e(f"  s_cmp_lg_u64 s[{sBad}:{sBad+1}], 0")
if OPT["ool"]:
    e("  s_cbranch_scc1 L_genmask")
    ctx = OutOfLine("L_genmask", "L_binmask"); ctx.__enter__()
else:
    e("  s_cbranch_scc0 L_binmask")
e(f"  s_add_u32 s{sTmp}, s{sRing}, {MOFF}")
for i in range(4):
    e(f"  v_mov_b32 v{M+i}, 0")
e(f"  v_lshl_add_u32 v{Z+6}, v{vLane}, 4, s{sTmp}")
e(f"  ds_write_b128 v{Z+6}, {vr(M,4)}")
e(f"  v_add_u32 v{vML}, s{sTmp}, v{vQ16}")
e(f"  v_lshlrev_b32 v{M+4}, 16, v{X0}")
e(f"  v_and_b32 v{M+5}, s{sK2}, v{X0}")
e(f"  v_lshlrev_b32 v{M+6}, 16, v{X0+1}")
e(f"  v_and_b32 v{M+7}, s{sK2}, v{X0+1}")
for i in range(4):
    e(f"  v_subrev_u32 v{pos[i]}, s{sList}, v{pos[i]}")
    e(f"  v_lshl_add_u32 v{pos[i]}, v{pos[i]}, 2, s{sTmp}")
for i, c in enumerate((sC0, sC1, sC2, sC3)):
    e(f"  s_mov_b64 exec, s[{c}:{c+1}]")
    e(f"  ds_write_b32 v{pos[i]}, v{M+4+i}")
e("  s_mov_b64 exec, -1")
if OPT["ool"]:
    ctx.__exit__()
e("L_binmask:")
W1R = M
Wa, Wc, Wd, Wb_ = W1R, W1R + 4, W1R + 8, W1R + 12
e("  s_waitcnt lgkmcnt(0)")
for m in range(4):
    for r in range(2):
        e(f"  v_lshlrev_b32 v{W1R+4*m+2*r}, 16, v{RW+2*m+r}")
        e(f"  v_and_b32 v{W1R+4*m+2*r+1}, s{sK2}, v{RW+2*m+r}")
for p in range(2):
    e(f"  v_pk_add_f32 {vr(Wa+2*p,2)}, {vr(Wa+2*p,2)}, {vr(Wc+2*p,2)}")
for p in range(2):
    e(f"  v_pk_add_f32 {vr(Wb_+2*p,2)}, {vr(Wb_+2*p,2)}, {vr(Wc+2*p,2)} neg_lo:[0,1] neg_hi:[0,1]")
for base in (Wa, Wd, Wb_):
    for p in range(2):
        e(f"  v_pk_mul_f32 {vr(base+2*p,2)}, {vr(base+2*p,2)}, s[{sScale}:{sScale+1}]")
e(f"  v_cvt_pk_bf16_f32 v{RW+2}, v{Wd}, v{Wd+1}")
e(f"  v_cvt_pk_bf16_f32 v{RW+3}, v{Wd+2}, v{Wd+3}")
e(f"  v_cvt_pk_bf16_f32 v{RW}, v{Wa}, v{Wa+1}")
e(f"  v_cvt_pk_bf16_f32 v{RW+1}, v{Wa+2}, v{Wa+3}")
e(f"  v_cvt_pk_bf16_f32 v{RW+6}, v{Wb_}, v{Wb_+1}")
e(f"  v_cvt_pk_bf16_f32 v{RW+7}, v{Wb_+2}, v{Wb_+3}")
e(f"  ds_write_b128 v{PFA}, {vr(RW,4)}")
e(f"  ds_write_b64 v{QWA}, {vr(RW+6,2)}")
if OPT["ool"]:
    e(f"  s_sub_u32 s{sE2}, s{sWave}, {SP0}")
    e(f"  s_cmp_le_u32 s{sE2}, 2")
    e("  s_cbranch_scc1 L_pub")
    ctx = OutOfLine("L_pub", "L_nosmall2"); ctx.__enter__()
e(f"  s_cmp_eq_u32 s{sWave}, {SP0}")
e("  s_cbranch_scc0 L_nb1")
e(f"  v_mul_f32 v{SB1}, s{sScale}, v{SB1}")
e(f"  v_lshlrev_b32 v{M+26}, 2, v{vLane}")
e(f"  ds_write_b32 v{M+26}, v{SB1} offset:{BB}")
e("L_nb1:")
e(f"  s_cmp_eq_u32 s{sWave}, {SP0+2}")
e("  s_cbranch_scc0 L_nosmall2")
e(f"  v_and_b32 v{M+26}, 15, v{vLane}")
e(f"  v_lshlrev_b32 v{M+26}, 2, v{M+26}")
e(f"  ds_write_b32 v{M+26}, v{SB2} offset:{B2B}")
if OPT["sharec"]:
    e(f"  v_mov_b32 v{M+26}, 0")
    e(f"  ds_write_b32 v{M+26}, v{M+26} offset:{CFLAG}")
if OPT["ool"]:
    ctx.__exit__()
e("L_nosmall2:")
e("  s_waitcnt lgkmcnt(0)")
e("  s_barrier")
stamp(5)
prio(OPT["mprio"])
e(f"  ds_read_b128 {vr(HT,4)}, v{vTA}")
e(f"  ds_read_b128 {vr(HT+4,4)}, v{vTA} offset:64")
if not OPT["sharec"]:
    for tau in range(4):
        e(f"  ds_read_b128 {vr(C+4*tau,4)}, v{vQ16} offset:{BB+64*tau}")
    for g in range(8):
        e(f"  ds_read_b128 {vr(M+4*g,4)}, v{vQA} offset:{1024*g}")
else:
    e(f"  s_sub_u32 s{sE2}, s{sWave}, {OPT['cw0']}")
    e(f"  s_cmp_lt_u32 s{sE2}, 4")
    if OPT["ool"]:
        e("  s_cbranch_scc1 L_cwave")
        ctx = OutOfLine("L_cwave", "L_noc"); ctx.__enter__()
    else:
        e("  s_cbranch_scc0 L_noc")
    e(f"  v_and_b32 v{M}, 15, v{vLane}")
    e(f"  s_lshl_b32 s{sTmp}, s{sE2}, 11")
    e(f"  v_lshl_add_u32 v{M+1}, v{M}, 7, v{vQ16}")
    e(f"  v_add_u32 v{M+2}, s{sTmp}, v{vQA}")
    e(f"  s_lshl_b32 s{sTmp}, s{sE2}, 6")
    e(f"  v_add_u32 v{M+3}, s{sTmp}, v{vQ16}")
    e(f"  ds_read_b128 {vr(M+4,4)}, v{M+1} offset:{TB}")
    e(f"  ds_read_b128 {vr(M+8,4)}, v{M+1} offset:{TB+64}")
    e(f"  ds_read_b128 {vr(M+12,4)}, v{M+2}")
    e(f"  ds_read_b128 {vr(M+16,4)}, v{M+2} offset:1024")
    e(f"  ds_read_b128 {vr(M+20,4)}, v{M+3} offset:{BB}")
    e(f"  v_mul_u32_u24 v{M}, {CSTR}, v{M}")
    e(f"  v_add_u32 v{M}, v{M}, v{M+3}")
    e(f"  v_add_u32 v{M}, {CB}, v{M}")
    e(f"  v_mov_b32 v{M+1}, 1")
    e(f"  v_mov_b32 v{M+2}, 0")
    e("  s_waitcnt lgkmcnt(0)")
    e(f"  v_mfma_f32_16x16x32_bf16 {vr(M+20,4)}, {vr(M+12,4)}, {vr(M+4,4)}, {vr(M+20,4)}")
    e(f"  v_mfma_f32_16x16x32_bf16 {vr(M+20,4)}, {vr(M+16,4)}, {vr(M+8,4)}, {vr(M+20,4)}")
    e("  s_nop 7")
    e(f"  ds_write_b128 v{M}, {vr(M+20,4)}")
    e("  s_waitcnt lgkmcnt(0)")
    e("  s_mov_b64 exec, 1")
    e(f"  ds_add_u32 v{M+2}, v{M+1} offset:{CFLAG}")
    e("  s_mov_b64 exec, -1")
    if OPT["ool"]:
        ctx.__exit__()
    e("L_noc:")
nlab = [0]
def cond_block(old_here, young_here, body):
    if not (old_here or young_here):
        return
    nlab[0] += 1
    lab_ = nlab[0]
    if old_here != young_here:
        e(f"  s_cmp_lt_u32 s{sWave}, {OPT['split']}")
        e(f"  s_cbranch_scc{0 if old_here else 1} L_rd{lab_}")
    body()
    if old_here != young_here:
        e(f"L_rd{lab_}:")
def idx2():
    e(f"  ds_read_u8 v{vP0}, v{vL} offset:32")
    e(f"  ds_read_u8 v{vP1}, v{vL} offset:40")
def ring_dma(posn):
    def t1():
        if OPT["e3"] == 0:
            dma(vP0, 1, 0)
        elif OPT["e3"] > 1:
            nlab[0] += 1
            l_ = nlab[0]
            e(f"  s_cmp_lt_u32 s{sWave}, {OPT['split']}")
            e(f"  s_cbranch_scc{1 if OPT['e3'] == 2 else 0} L_e3s{l_}")
            dma(vP0, 1, 0)
            e(f"L_e3s{l_}:")
        dma(vP1, 1, 1)
        if posn != -2:
            idx2()
    def t2():
        e("  s_waitcnt lgkmcnt(0)")
        dma(vP0, 2, 0)
        if OPT["dist"] != 25:
            dma(vP1, 2, 1)
    if posn == -1:
        cond_block(OPT["p1"] == -2, OPT["q1"] == -2, idx2)
    cond_block(OPT["p1"] == posn, OPT["q1"] == posn, t1)
    if OPT["dist"] in (3, 25):
        cond_block(OPT["p2"] == posn, OPT["q2"] == posn, t2)
B0 = [D3 + 4*i for i in range(4)]
B1 = [W2, W2 + 4, W2 + 8, HB]
BUFS = [B0, B1]
def mread(g):
    s, h = g >> 1, g & 1
    for tau in range(4):
        e(f"  ds_read_b128 {vr(BUFS[g&1][tau],4)}, v{vPA} offset:{tau*4096+s*2048+h*1024}")
ring_dma(-2)
if not OPT["sharec"]:
    for g in range(8):
        e(f"  s_waitcnt lgkmcnt({7-g})")
        tau, s = g >> 1, g & 1
        e(f"  v_mfma_f32_16x16x32_bf16 {vr(C+4*tau,4)}, {vr(M+4*g,4)}, {vr(HT+4*s,4)}, {vr(C+4*tau,4)}")
ring_dma(-1)
mread(0)
DT = [Z, Z + 4, Z + 8, Z + 12]
if OPT["sharec"]:
    e("  s_waitcnt lgkmcnt(4)")
e(f"  v_and_b32 v{AD+2}, v{HT}, v{vM0}")
e(f"  v_and_b32 v{AD+3}, v{HT+1}, v{vM1}")
def m_mfma(g, dst):
    for tau in range(4):
        e(f"  v_mfma_f32_16x16x32_bf16 {vr(dst+4*tau,4)}, {vr(AD,4)}, {vr(BUFS[g&1][tau],4)}, 0")
def m_and(g):
    s2, h2 = g >> 1, g & 1
    e(f"  v_and_b32 v{AD+2}, v{HT+4*s2+2*h2}, v{vM0}")
    e(f"  v_and_b32 v{AD+3}, v{HT+4*s2+2*h2+1}, v{vM1}")
def m_cvt(g, src):
    s, h = g >> 1, g & 1
    for tau in range(4):
        for p in range(2):
            e(f"  v_cvt_pk_bf16_f32 v{M+8*tau+4*s+2*h+p}, v{src+4*tau+2*p}, v{src+4*tau+2*p+1}")
if OPT["mpipe"]:
    assert OPT["sharec"] and OPT["earlyc"]
    mread(1)
    e("  s_waitcnt lgkmcnt(4)")
    m_mfma(0, Z)
    m_and(1)
    mread(2)
    e("  s_waitcnt lgkmcnt(4)")
    m_mfma(1, C)
    m_and(2)
    m_cvt(0, Z)
    ring_dma(0)
    mread(3)
    e("  s_waitcnt lgkmcnt(4)")
    m_mfma(2, Z)
    m_and(3)
    m_cvt(1, C)
    ring_dma(1)
    e("  s_waitcnt lgkmcnt(0)")
    m_mfma(3, C)
    e(f"  v_mov_b32 v{AD}, 0")
    e(f"  s_mul_i32 s{sTmp2}, s{sWave}, {CSTR}")
    e(f"  ds_read_b32 v{AD+1}, v{AD} offset:{CFLAG}")
    e(f"  ds_read_b128 {vr(W2,4)}, v{vQ16} offset:{W2A}")
    e(f"  ds_read_b128 {vr(W2+4,4)}, v{vQ16} offset:{W2C}")
    e(f"  ds_read_b128 {vr(B2,4)}, v{vQ16} offset:{B2B}")
    e(f"  s_add_u32 s{sTmp2}, s{sTmp2}, {CB}")
    e(f"  v_add_u32 v{AD+2}, s{sTmp2}, v{vQ16}")
    m_cvt(2, Z)
    ring_dma(2)
    m_cvt(3, C)
    ring_dma(3)
else:
    for g in range(4):
        s, h = g >> 1, g & 1
        if g < 3:
            mread(g + 1)
        e(f"  s_waitcnt lgkmcnt({4 if g < 3 else 0})")
        for tau in range(4):
            e(f"  v_mfma_f32_16x16x32_bf16 {vr(DT[tau],4)}, {vr(AD,4)}, {vr(BUFS[g&1][tau],4)}, 0")
        if g < 3:
            s2, h2 = (g + 1) >> 1, (g + 1) & 1
            e(f"  v_and_b32 v{AD+2}, v{HT+4*s2+2*h2}, v{vM0}")
            e(f"  v_and_b32 v{AD+3}, v{HT+4*s2+2*h2+1}, v{vM1}")
            e("  s_nop 2")
        elif OPT["sharec"] and OPT["earlyc"]:
            e(f"  v_mov_b32 v{AD}, 0")
            e(f"  s_mul_i32 s{sTmp2}, s{sWave}, {CSTR}")
            e(f"  ds_read_b32 v{AD+1}, v{AD} offset:{CFLAG}")
            e(f"  ds_read_b128 {vr(W2,4)}, v{vQ16} offset:{W2A}")
            e(f"  ds_read_b128 {vr(W2+4,4)}, v{vQ16} offset:{W2C}")
            e(f"  ds_read_b128 {vr(B2,4)}, v{vQ16} offset:{B2B}")
            e(f"  s_add_u32 s{sTmp2}, s{sTmp2}, {CB}")
            e(f"  v_add_u32 v{AD+2}, s{sTmp2}, v{vQ16}")
        else:
            e("  s_nop 4")
        for tau in range(4):
            for p in range(2):
                e(f"  v_cvt_pk_bf16_f32 v{M+8*tau+4*s+2*h+p}, v{DT[tau]+2*p}, v{DT[tau]+2*p+1}")
        ring_dma(g)
if OPT["sharec"] and OPT["earlyc"]:
    e("  s_waitcnt lgkmcnt(3)")
    e("L_cpoll:")
    e(f"  v_readfirstlane_b32 s{sTmp}, v{AD+1}")
    e(f"  s_cmp_ge_u32 s{sTmp}, 4")
    e("  s_cbranch_scc1 L_cready")
    e(f"  ds_read_b32 v{AD+1}, v{AD} offset:{CFLAG}")
    e("  s_waitcnt lgkmcnt(0)")
    e("  s_branch L_cpoll")
    e("L_cready:")
    for tau in range(4):
        e(f"  ds_read_b128 {vr(C+4*tau,4)}, v{AD+2} offset:{64*tau}")
else:
    if OPT["sharec"]:
        e(f"  v_mov_b32 v{HB}, 0")
        e(f"  s_mul_i32 s{sTmp}, s{sWave}, {CSTR}")
        e(f"  s_add_u32 s{sTmp}, s{sTmp}, {CB}")
        e(f"  v_add_u32 v{HB+1}, s{sTmp}, v{vQ16}")
        e("L_cpoll:")
        e(f"  ds_read_b32 v{HB+2}, v{HB} offset:{CFLAG}")
        e("  s_waitcnt lgkmcnt(0)")
        e(f"  v_readfirstlane_b32 s{sTmp}, v{HB+2}")
        e(f"  s_cmp_lt_u32 s{sTmp}, 4")
        e("  s_cbranch_scc1 L_cpoll")
        for tau in range(4):
            e(f"  ds_read_b128 {vr(C+4*tau,4)}, v{HB+1} offset:{64*tau}")
    e(f"  ds_read_b128 {vr(W2,4)}, v{vQ16} offset:{W2A}")
    e(f"  ds_read_b128 {vr(W2+4,4)}, v{vQ16} offset:{W2C}")
    e(f"  ds_read_b128 {vr(B2,4)}, v{vQ16} offset:{B2B}")
ring_dma(4)
e(f"  s_mov_b32 s{sC0}, 0xffff0000")
e(f"  s_mov_b32 s{sC0+1}, 0")
e(f"  s_mov_b32 s{sC1}, 0")
e(f"  s_mov_b32 s{sC1+1}, 0xffff")
e(f"  s_mov_b32 s{sC2}, 0")
e(f"  s_mov_b32 s{sC2+1}, 0xffff0000")
e(f"  s_lshl_b32 s{sE3}, s{sB}, 7")
if OPT["tab2"]:
    def pack(d):
        d = f"{d:04d}"
        return sum(int(c) << (4 * i) for i, c in enumerate(d))
    e(f"  s_lshr_b32 s42, s{sWave}, 2")
    e(f"  s_lshl_b32 s42, s42, 2")
    e(f"  s_lshr_b32 s40, {pack(OPT['tab2'])}, s42")
    e(f"  s_lshr_b32 s41, {pack(OPT['tab1'])}, s42")
    e(f"  s_and_b32 s40, s40, 15")
    e(f"  s_and_b32 s41, s41, 15")
e(f"  v_mov_b32 v{D2+2}, 0")
e(f"  v_mov_b32 v{D2+3}, 0")
e(f"  v_add_u32 v{vL}, {32 if (OPT['dist'] == 25 or OPT['hyb']) else 16*OPT['dist']}, v{vL}")
if OPT["hyb"]:
    e(f"  s_mov_b32 s{sN}, s{sNT}")
    e(f"  s_mov_b32 s{sK3}, 3")
e("  s_nop 0")
e(f"  v_mfma_f32_32x32x8_bf16 {vr(D3,16)}, {vr(D2+2,2)}, {vr(D2+2,2)}, 0")
e("  s_waitcnt lgkmcnt(0)")
stamp(6)
if OPT["stamp"]:
    e(f"  s_waitcnt vmcnt(4)")
    stamp(7)
if OPT["acc"]:
    e("  s_mov_b32 s44, 0")
    e("  s_mov_b32 s45, 0")
prio(2)
e(f"  s_cmp_eq_u32 s{sNT}, 0")
e("  s_cbranch_scc1 L_out")
e(f"  s_cmp_lg_u64 s[{sBad}:{sBad+1}], 0")
e("  s_cbranch_scc1 L_gen0")

lab = [0]
tails = []
D25 = OPT["dist"] == 25
DIST = 3 if D25 else OPT["dist"]
def tile(slot, general, lab_exit):
    so = slot * 2048
    sd_ = ((slot + DIST) % NS) * 2048
    lab[0] += 1
    k = lab[0]
    if OPT["acc"]:
        e("  s_memtime s[40:41]")
        e("  s_waitcnt lgkmcnt(0)")
    HYB = OPT["hyb"]
    if OPT["ool"] and HYB:
        e(f"  s_cmp_ge_u32 s{sNT}, {HYB - 1}")
        e(f"  s_cbranch_scc1 L_w4{k}")
        e(f"  s_cmp_gt_u32 s{sNT}, 1")
        e(f"  s_cbranch_scc1 L_w2{k}")
        e("  s_waitcnt vmcnt(0)")
        e(f"L_w2{k}:")
        e("  s_waitcnt vmcnt(2)")
        e(f"L_w4{k}:")
        e("  s_waitcnt vmcnt(4)")
    else:
        e(f"  s_cmp_ge_u32 s{sNT}, {HYB - 1 if HYB else DIST}")
        e(f"  s_cbranch_scc0 L_tw{k}")
        e(f"  s_waitcnt vmcnt({3 if D25 else 2*(DIST-1)})")
    e(f"L_aw{k}:")
    if OPT["acc"]:
        e("  s_memtime s[42:43]")
        e("  s_waitcnt lgkmcnt(0)")
        e("  s_sub_u32 s40, s42, s40")
        e("  s_add_u32 s44, s44, s40")
    tails.append(k)
    e(f"  ds_read_b128 {vr(HB,4)}, v{vA0} offset:{so}")
    e(f"  ds_read_b128 {vr(HB+4,4)}, v{vA1} offset:{so}")
    for d in range(4):
        e(f"  ds_read_b64_tr_b16 {vr(HT+2*d,2)}, v{vT[d]} offset:{so}")
    if D25:
        e(f"  ds_read_u8 v{vP0}, v{vL} offset:{16*slot+16}")
        e(f"  ds_read_u8 v{vP1}, v{vL} offset:{16*slot+8}")
    elif HYB:
        e(f"  s_cmp_ge_u32 s{sNT}, {HYB}")
        e(f"  s_cbranch_scc0 L_i2{k}")
        e(f"  ds_read_u8 v{vP0}, v{vL} offset:{16*slot+16}")
        e(f"  ds_read_u8 v{vP1}, v{vL} offset:{16*slot+24}")
        e(f"  s_branch L_i3{k}")
        e(f"L_i2{k}:")
        e(f"  ds_read_u8 v{vP0}, v{vL} offset:{16*slot}")
        e(f"  ds_read_u8 v{vP1}, v{vL} offset:{16*slot+8}")
        e(f"L_i3{k}:")
    else:
        e(f"  ds_read_u8 v{vP0}, v{vL} offset:{16*slot}")
        e(f"  ds_read_u8 v{vP1}, v{vL} offset:{16*slot+8}")
    nrd = 8
    if OPT["prio"] and OPT["lprio"]:
        e(f"  s_cmp_gt_u32 s{sNT}, {'s40' if OPT['tab2'] else OPT['t2']}")
        e(f"  s_cbranch_scc1 L_p{k}")
        e(f"  s_setprio 1")
        e(f"  s_cmp_gt_u32 s{sNT}, {'s41' if OPT['tab2'] else OPT['t1']}")
        e(f"  s_cbranch_scc1 L_p{k}")
        e(f"  s_setprio 0")
        e(f"L_p{k}:")
    e(f"  s_waitcnt lgkmcnt({nrd-1})")
    for tau in range(4):
        e(f"  v_mfma_f32_16x16x32_bf16 {vr(Z+4*tau,4)}, {vr(M+8*tau,4)}, {vr(HB,4)}, {vr(C+4*tau,4)}")
    e(f"  s_waitcnt lgkmcnt({nrd-2})")
    for tau in range(4):
        e(f"  v_mfma_f32_16x16x32_bf16 {vr(Z+4*tau,4)}, {vr(M+8*tau+4,4)}, {vr(HB+4,4)}, {vr(Z+4*tau,4)}")
    e("  s_nop 4")
    for i in range(16):
        e(f"  v_exp_f32 v{Z+i}, v{Z+i}")
    e("  s_nop 1")
    e(f"  v_mfma_f32_32x32x8_bf16 {vr(Z,16)}, {vr(ONE,2)}, {vr(ONE,2)}, {vr(Z,16)}")
    if OPT["dsplit"]:
        e("  s_waitcnt lgkmcnt(0)")
        e(f"  s_cmp_gt_u32 s{sNT}, {NS}")
        e(f"  s_cbranch_scc0 L_nh{k}")
        e(f"  s_add_u32 m0, s{sRing}, {so}")
        e("  s_nop 0")
        e(f"  buffer_load_dwordx4 {vr(vP0,2)}, s[{rH}:{rH+3}], 0 idxen offen{OPT['nt_hist']} lds")
        e(f"L_nh{k}:")
        e("  s_nop 8")
    else:
        e("  s_nop 11")
    for i in range(16):
        e(f"  v_rcp_f32 v{Z+i}, v{Z+i}")
    for i in range(8):
        e(f"  v_cvt_pk_bf16_f32 v{HB+i}, v{Z+2*i}, v{Z+2*i+1}")
    if general:
        e(f"  ds_read_b128 {vr(MK,4)}, v{vML} offset:{64*slot}")
    else:
        e("  s_nop 0")
    e(f"  v_mfma_f32_16x16x32_bf16 {vr(D2,4)}, {vr(HB,4)}, {vr(W2,4)}, {vr(B2,4)}")
    e(f"  v_mfma_f32_16x16x32_bf16 {vr(D2,4)}, {vr(HB+4,4)}, {vr(W2+4,4)}, {vr(D2,4)}")
    if slot == NS - 1 and general:
        e(f"  v_add_u32 v{vML}, {64*NS}, v{vML}")
    e("  s_nop 7")
    e("  s_waitcnt lgkmcnt(0)")
    if general:
        for i in range(4):
            e(f"  v_mul_f32 v{D2+i}, v{MK+i}, v{D2+i}")
    e(f"  v_cvt_pk_bf16_f32 v{SP}, v{D2}, v{D2+1}")
    e(f"  v_cvt_pk_bf16_f32 v{SP+1}, v{D2+2}, v{D2+3}")
    e(f"  s_cmp_gt_u32 s{sNT}, {HYB - 1 if HYB else (2 if D25 else DIST)}")
    e("  s_nop 0")
    for d in range(4):
        e(f"  v_mfma_f32_16x16x16_bf16 {vr(D3+4*d,4)}, {vr(SP,2)}, {vr(HT+2*d,2)}, {vr(D3+4*d,4)}")
    if OPT["acc"]:
        e("  s_memtime s[40:41]")
        e("  s_waitcnt lgkmcnt(0)")
    e(f"  s_cbranch_scc0 {'L_h2' if HYB else 'L_nd'}{k}")
    if D25:
        e(f"  s_add_u32 m0, s{sRing}, {((slot + 2) % NS) * 2048 + 1024}")
        e(f"  s_cmp_gt_u32 s{sNT}, 3")
        e(f"  buffer_load_dwordx4 {vr(vP1,2)}, s[{rH}:{rH+3}], 0 idxen offen{OPT['nt_hist']} lds")
        e(f"  s_cbranch_scc0 L_nd{k}")
        e(f"  s_add_u32 m0, s{sRing}, {so}")
        e("  s_nop 0")
        e(f"  buffer_load_dwordx4 {vr(vP0,2)}, s[{rH}:{rH+3}], 0 idxen offen{OPT['nt_hist']} lds")
    elif not OPT["dsplit"]:
        e(f"  s_add_u32 m0, s{sRing}, {sd_}")
        e("  s_nop 0")
        e(f"  buffer_load_dwordx4 {vr(vP0,2)}, s[{rH}:{rH+3}], 0 idxen offen{OPT['nt_hist']} lds")
    if not D25:
        e(f"  s_add_u32 m0, s{sRing}, {sd_+1024}")
        e("  s_nop 0")
        e(f"  buffer_load_dwordx4 {vr(vP1,2)}, s[{rH}:{rH+3}], 0 idxen offen{OPT['nt_hist']} lds")
    if HYB:
        e(f"  s_add_u32 s{sK3}, s{sK3}, 1")
        e(f"  s_branch L_nd{k}")
        e(f"L_h2{k}:")
        e(f"  s_sub_u32 s{sTmp}, s{sN}, s{sNT}")
        e(f"  s_add_u32 s{sTmp}, s{sTmp}, 2")
        e(f"  s_cmp_eq_u32 s{sTmp}, s{sK3}")
        e(f"  s_cbranch_scc0 L_nd{k}")
        e(f"  s_cmp_gt_u32 s{sNT}, 2")
        e(f"  s_cbranch_scc0 L_nd{k}")
        e(f"  s_add_u32 m0, s{sRing}, {((slot + 2) % NS) * 2048}")
        e(f"  s_add_u32 s{sK3}, s{sK3}, 1")
        e(f"  buffer_load_dwordx4 {vr(vP0,2)}, s[{rH}:{rH+3}], 0 idxen offen{OPT['nt_hist']} lds")
        e(f"  s_add_u32 m0, s{sRing}, {((slot + 2) % NS) * 2048 + 1024}")
        e("  s_nop 0")
        e(f"  buffer_load_dwordx4 {vr(vP1,2)}, s[{rH}:{rH+3}], 0 idxen offen{OPT['nt_hist']} lds")
    e(f"L_nd{k}:")
    if OPT["acc"]:
        e("  s_memtime s[42:43]")
        e("  s_waitcnt lgkmcnt(0)")
        e("  s_sub_u32 s40, s42, s40")
        e("  s_add_u32 s45, s45, s40")
    if slot == NS - 1:
        e(f"  v_add_u32 v{vL}, {16*NS}, v{vL}")
    e(f"  s_sub_u32 s{sNT}, s{sNT}, 1")
    e(f"  s_cmp_eq_u32 s{sNT}, 0")
    e(f"  s_cbranch_scc1 {lab_exit}")

e("L_bin0:")
for slot in range(NS):
    tile(slot, False, "L_out")
e("  s_branch L_bin0")
e("L_gen0:")
for slot in range(NS):
    tile(slot, True, "L_out")
e("  s_branch L_gen0")
for k in ([] if (OPT["ool"] and OPT["hyb"]) else tails):
    e(f"L_tw{k}:")
    if OPT["hyb"]:
        e(f"  s_cmp_gt_u32 s{sNT}, 1")
        e(f"  s_cbranch_scc0 L_tw{k}_1")
        e("  s_waitcnt vmcnt(2)")
        e(f"  s_branch L_aw{k}")
        e(f"L_tw{k}_1:")
    for r in range((1 if OPT["hyb"] else DIST - 1), 1, -1):
        e(f"  s_cmp_eq_u32 s{sNT}, {r}")
        e(f"  s_cbranch_scc0 L_tw{k}_{r}")
        e(f"  s_waitcnt vmcnt({2*(r-1)})")
        e(f"  s_branch L_aw{k}")
        e(f"L_tw{k}_{r}:")
    e("  s_waitcnt vmcnt(0)")
    e(f"  s_branch L_aw{k}")

e("L_out:")
stamp(8)
e("  s_nop 7")
e(f"  v_lshl_add_u32 v{Z}, v{vLane}, 1, s{sE3}")
e(f"  v_cndmask_b32_e64 v{Z+1}, v{D3}, v{D3+4}, s[{sC0}:{sC0+1}]")
e(f"  v_cndmask_b32_e64 v{Z+1}, v{Z+1}, v{D3+8}, s[{sC1}:{sC1+1}]")
e(f"  v_cndmask_b32_e64 v{Z+1}, v{Z+1}, v{D3+12}, s[{sC2}:{sC2+1}]")
e(f"  v_cvt_pk_bf16_f32 v{Z+1}, v{Z+1}, v{Z+1}")
e(f"  global_store_short v{Z}, v{Z+1}, s[{sO}:{sO+1}]{OPT['nt_out']}")
if OPT["endwait"] or OPT["stamp"]:
    e("  s_waitcnt vmcnt(0)")
if OPT["stamp"]:
    stamp(9)
    e(f"  s_getreg_b32 s{STAMP0}, hwreg(HW_REG_XCC_ID)")
    e(f"  v_writelane_b32 v{vST}, s{STAMP0}, 10")
    e(f"  v_writelane_b32 v{vST}, s{sN}, 11")
    if OPT["acc"]:
        e(f"  v_writelane_b32 v{vST}, s44, 14")
        e(f"  v_writelane_b32 v{vST}, s45, 15")
    e(f"  s_lshl_b32 s{sTmp}, s{sB}, 6")
    e(f"  s_add_u32 s88, s86, s{sTmp}")
    e(f"  s_addc_u32 s89, s87, 0")
    e(f"  s_and_b32 s89, s89, 0xffff")
    e(f"  s_mov_b32 s90, 64")
    e(f"  s_mov_b32 s91, 0x20000")
    e(f"  v_lshlrev_b32 v{Z}, 2, v{vLane}")
    e(f"  buffer_store_dword v{vST}, v{Z}, s[88:91], 0 offen")
    e("  s_waitcnt vmcnt(0)")
e("L_end:")
e("  s_endpgm")
out.extend(cold)
e('.section .rodata,"a"')
e(".p2align 6")
e(f".amdhsa_kernel {NAME}_kernel")
e("  .amdhsa_next_free_vgpr 128")
e("  .amdhsa_next_free_sgpr 96")
e("  .amdhsa_accum_offset 128")
e("  .amdhsa_group_segment_fixed_size 0")
e("  .amdhsa_kernarg_size 80")
e("  .amdhsa_user_sgpr_count 2")
e("  .amdhsa_user_sgpr_kernarg_segment_ptr 1")
e("  .amdhsa_system_sgpr_workgroup_id_x 1")
e("  .amdhsa_float_denorm_mode_32 3")
e(".end_amdhsa_kernel")
open(sys.argv[1], "w").write("\n".join(x for x in out if x is not None) + "\n")
```

```python
import sys

NAME = "standalone__sequential_behavior_din__recsys"
OPT = dict(nt_hist=" nt", nt_mask=" nt", nt_out="", stamp=0, prio=1, mprio=3, lprio=1,
           p1=0, p2=2, q1=-2, q2=1, t2=3, t1=1, split=8, acc=0, mbar=0, sp0=13, pf=0, pfn=44, endwait=1, sharec=1, cw0=4, earlyc=1, exact=0, dsplit=0, e3=0, dist=3, hyb=6, dt2=0, dt1=0, tab2=5432, tab1=2211, mpipe=0, hop=0, ool=2, padk=0)
for a in sys.argv[2:]:
    k, v = a.split("=", 1)
    if k.startswith("nt_"):
        OPT[k] = (" " + v.replace("+", " ")) if v else ""
    else:
        OPT[k] = int(v)

out = []
def e(s=""):
    out.append(s)

NS = 3
BB = 0
W2A = 256
W2C = 320
B2B = 384
TB = 512
LIST = TB + 2048
RING = LIST + 16 * 256
RPW = NS * 2048 + 1024
MOFF = NS * 2048
PFB = RING + 16 * RPW
QB = PFB + 16384
CSTR = 272
CB = QB + 8192
LDS_BYTES = CB + 16 * CSTR
CFLAG = 448
assert LDS_BYTES <= 163840 and RING % 16 == 0

M, C, D3, W2, B2, Z, HB, HT, D2 = 0, 32, 48, 64, 72, 76, 92, 100, 108
SP = D2
ONE = 112
vA0, vA1 = 114, 115
vT = [116, 117, 118, 119]
vP0, vP1 = 120, 122
vDC0, vDC1 = 121, 123
vL, vML = 124, 125
vLane, vQ16 = 126, 127
vST = vML
MK = Z

def vr(b, n=1):
    return f"v{b}" if n == 1 else f"v[{b}:{b+n-1}]"

sT, sH, sMk, sW1, sB1, sW2, sB2, sO = 4, 6, 8, 10, 12, 14, 16, 18
sWave, sB = 20, 21
rH = 24
sRing, sList, sN, sNT = 56, 57, 58, 59
sC0, sC1, sC2, sC3 = 60, 62, 64, 66
sK1, sK2, sK3 = 69, 70, 71
sScale, sTmp, sTmp2 = 72, 74, 75
sBad, sDmy = 76, 78
STAMP0 = 84
sE0, sE1, sE2, sE3 = 88, 90, 92, 94

def stamp(i):
    if OPT["stamp"]:
        e(f"  s_memrealtime s[{STAMP0}:{STAMP0+1}]")
        e("  s_waitcnt lgkmcnt(0)")
        e(f"  v_writelane_b32 v{vST}, s{STAMP0}, {i}")
        if i in (6, 8):
            e(f"  s_memtime s[{STAMP0}:{STAMP0+1}]")
            e("  s_waitcnt lgkmcnt(0)")
            e(f"  v_writelane_b32 v{vST}, s{STAMP0}, {12 if i == 6 else 13}")

cold = []
class OutOfLine:
    def __init__(self, entry, back):
        self.entry, self.back = entry, back
    def __enter__(self):
        self.n = len(out)
    def __exit__(self, *a):
        blk = out[self.n:]
        del out[self.n:]
        cold.append(f"{self.entry}:")
        cold.extend(blk)
        cold.append(f"  s_branch {self.back}")

def prio(p):
    if OPT["prio"]:
        e(f"  s_setprio {p}")

def dma(pair, slot, hf, filler="  s_nop 0"):
    e(f"  s_add_u32 m0, s{sRing}, {slot*2048+hf*1024}")
    e(filler)
    e(f"  buffer_load_dwordx4 {vr(pair,2)}, s[{rH}:{rH+3}], 0 idxen offen{OPT['nt_hist']} lds")

hdr = open("cdna_kernels/" + NAME + ".s.ref").read().split("; Override launch")[0]
e(hdr.rstrip())
e(f"; @launch grid=(256,1,1) block=(1024,1,1) lds={LDS_BYTES}")
for line in """
 DIN local activation unit, one wave per batch row, 16 waves (rows) per workgroup.
   z = hist (Wa + Wc + diag(t) Wd) + t (Wb - Wc) + b1      (w1 = [Wa; Wb; Wc; Wd], t = target row)
   out = sum_l mask_l (sigmoid(z_l) . w2 + b2) hist_l
 Rows whose mask is zero contribute nothing and are never fetched: each wave compacts the indices of its active
 rows and gathers them, 16 rows per tile, into a three-slot LDS ring with LDS-DMA loads (padding rows read as zero).
 Start-up: every wave converts a 4-row slice of w1 into the shared operand images [P'|Wd'] and Q' (scaled by
 -log2 e); after one barrier it builds its own M' = P' + diag(t) Wd' with MFMAs against a [1|t] selector; four waves
 compute c' = b1' + Q'^T t for all 16 rows and publish it through an LDS counter.
 Tile: Z^T = M'^T H^T + c' (MFMA), exp2, +1 (one 32x32 MFMA against a unit outer product), rcp, bf16 pack,
 scores = sigma w2 + b2 (MFMA), out += scores H (MFMA on transposed LDS reads).
 Masks that are not exactly 0 or 1 take a second loop that multiplies the scores by the mask values.
""".strip("\n").split("\n"):
    e(";" + line)
e('.amdgcn_target "amdgcn-amd-amdhsa--gfx950"')
e(".text")
e(f".globl {NAME}_kernel")
e(".p2align 8")
e(f".type {NAME}_kernel,@function")
e(f"{NAME}_kernel:")
e("  s_cmp_ge_u32 s2, 256")
e("  s_cbranch_scc1 L_end")
stamp(0)
if OPT["hop"]:
    for i in range(OPT["hop"]):
        e(f"  s_branch L_hop{i}")
        e("  .p2align 7")
        e(f"L_hop{i}:")
e("  s_load_dwordx16 s[4:19], s[0:1], 0")
for _ in range(OPT["padk"] * 128):
    e("  s_mov_b32 s22, 0x12345678")
if OPT["stamp"]:
    e("  s_load_dwordx2 s[86:87], s[0:1], 72")
prio(3)
X0 = W2
q_ = Z + 1
vMo, vWo, vWo2 = Z + 6, Z + 7, Z + 8
e(f"  v_lshrrev_b32 v{Z}, 6, v0")
e(f"  v_and_b32 v{vLane}, 63, v0")
e(f"  s_lshl_b32 s{sB}, s2, 4")
e(f"  v_readfirstlane_b32 s{sWave}, v{Z}")
e(f"  v_mov_b32 v{X0}, 0")
e(f"  v_mov_b32 v{X0+1}, 0")
e(f"  s_add_u32 s{sB}, s{sB}, s{sWave}")
e(f"  s_mul_i32 s{sTmp}, s{sB}, 400")
e(f"  s_mul_i32 s{sRing}, s{sWave}, {RPW}")
e(f"  v_lshl_add_u32 v{vMo}, v{vLane}, 3, s{sTmp}")
e(f"  v_and_b32 v{Z+2}, 32, v{vLane}")
e(f"  v_and_b32 v{Z+3}, 31, v{vLane}")
e(f"  s_lshl_b32 s{sTmp2}, s{sWave}, 9")
e(f"  v_lshlrev_b32 v{Z+2}, 9, v{Z+2}")
e(f"  s_add_u32 s{sK3}, s{sTmp2}, {24576-1024}")
e(f"  v_lshl_add_u32 v{vWo}, v{Z+3}, 4, s{sTmp2}")
e(f"  v_lshl_add_u32 v{vWo2}, v{Z+3}, 4, s{sK3}")
e(f"  s_bfm_b64 s[{sC0}:{sC0+1}], 50, 0")
e(f"  v_add_u32 v{vWo}, v{vWo}, v{Z+2}")
e(f"  v_sub_u32 v{vWo2}, v{vWo2}, v{Z+2}")
e(f"  s_add_u32 s{sRing}, s{sRing}, {RING}")
e(f"  s_add_u32 m0, s{sRing}, 4096")
e(f"  s_mov_b64 exec, s[{sC0}:{sC0+1}]")
e("  s_waitcnt lgkmcnt(0)")
stamp(1)
e(f"  global_load_dwordx2 {vr(X0,2)}, v{vMo}, s[{sMk}:{sMk+1}]{OPT['nt_mask']}")
e("  s_mov_b64 exec, -1")
if OPT["mbar"]:
    e("  s_barrier")
prio(2)
e(f"  global_load_lds_dwordx4 v{vWo}, s[{sW1}:{sW1+1}]")
e(f"  global_load_lds_dwordx4 v{vWo2}, s[{sW1}:{sW1+1}] offset:1024")
e(f"  v_lshrrev_b32 v{q_}, 4, v{vLane}")
if OPT["pf"]:
    e(f"  s_cmp_lt_u32 s2, {OPT['pf']}")
    e("  s_cbranch_scc0 L_nopf")
    e(f"  s_cmp_eq_u32 s{sWave}, 3")
    e("  s_cbranch_scc0 L_nopf")
    e("  s_getpc_b64 s[78:79]")
    e("L_pc:")
    e(f"  s_sub_u32 s78, s78, L_pc-{NAME}_kernel")
    e("  s_subb_u32 s79, s79, 0")
    e(f"  v_lshlrev_b32 v{M+28}, 7, v{vLane}")
    e(f"  s_bfm_b64 exec, {OPT['pfn']}, 0")
    e(f"  global_load_dword v{M+29}, v{M+28}, s[78:79]")
    e("  s_mov_b64 exec, -1")
    e("L_nopf:")
SB1, SB2 = M + 24, M + 25
SP0 = OPT["sp0"]
e(f"  s_sub_u32 s{sE2}, s{sWave}, {SP0}")
if OPT["ool"] == 1:
    e(f"  s_cmp_le_u32 s{sE2}, 2")
    e("  s_cbranch_scc1 L_small")
    ctx = OutOfLine("L_small", "L_nosmall"); ctx.__enter__()
else:
    e(f"  s_cmp_gt_u32 s{sE2}, 2")
    e("  s_cbranch_scc1 L_nosmall")
e(f"  s_cmp_eq_u32 s{sE2}, 1")
e("  s_cbranch_scc1 L_w14")
e(f"  s_cmp_eq_u32 s{sE2}, 2")
e("  s_cbranch_scc1 L_w15")
e(f"  v_mov_b32 v{SB1}, 0")
e(f"  v_lshlrev_b32 v{M+26}, 1, v{vLane}")
e(f"  global_load_short_d16_hi v{SB1}, v{M+26}, s[{sB1}:{sB1+1}]")
e("  s_branch L_nosmall")
e("L_w14:")
e(f"  s_lshl_b32 s{sTmp2}, s2, 11")
e(f"  v_lshl_add_u32 v{M+26}, v{vLane}, 4, s{sTmp2}")
e(f"  s_mov_b32 m0, {TB}")
e("  s_nop 0")
e(f"  global_load_lds_dwordx4 v{M+26}, s[{sT}:{sT+1}]")
e(f"  global_load_lds_dwordx4 v{M+26}, s[{sT}:{sT+1}] offset:1024")
e("  s_branch L_nosmall")
e("L_w15:")
e(f"  v_bfe_u32 v{M+26}, v{vLane}, 4, 1")
e(f"  v_lshlrev_b32 v{M+26}, 6, v{M+26}")
e(f"  v_bfe_u32 v{M+27}, v{vLane}, 1, 1")
e(f"  v_lshl_add_u32 v{M+26}, v{M+27}, 5, v{M+26}")
e(f"  v_bfe_u32 v{M+27}, v{vLane}, 2, 2")
e(f"  v_lshl_add_u32 v{M+26}, v{M+27}, 3, v{M+26}")
e(f"  v_and_b32 v{M+27}, 1, v{vLane}")
e(f"  v_lshl_add_u32 v{M+26}, v{M+27}, 2, v{M+26}")
e(f"  v_mov_b32 v{SB2}, 0")
e(f"  v_mov_b32 v{M+27}, 0")
e(f"  s_mov_b32 m0, {W2A}")
e(f"  global_load_short_d16_hi v{SB2}, v{M+27}, s[{sB2}:{sB2+1}]")
e(f"  s_bfm_b64 exec, 32, 0")
e(f"  global_load_lds_dword v{M+26}, s[{sW2}:{sW2+1}]")
e("  s_mov_b64 exec, -1")
if OPT["ool"] == 1:
    ctx.__exit__()
e("L_nosmall:")
e(f"  s_lshl_b32 s{sList}, s{sWave}, 8")
e(f"  s_add_u32 s{sList}, s{sList}, {LIST}")
e(f"  v_mov_b32 v{M}, -1")
e(f"  v_lshl_add_u32 v{Z+3}, v{vLane}, 2, s{sList}")
e(f"  ds_write_b32 v{Z+3}, v{M}")
t0, t1, t2, t3, t4 = Z, q_, Z + 2, Z + 3, Z + 4
PFA, QWA, RWA = D3, D3 + 2, D3 + 3
e(f"  s_mul_i32 s{sTmp}, s{sB}, 25600")
e(f"  v_and_b32 v{t2}, 7, v{vLane}")
e(f"  s_add_u32 s{rH}, s{sH}, s{sTmp}")
e(f"  v_xor_b32 v{t2}, v{t2}, v{t1}")
e(f"  s_addc_u32 s{rH+1}, s{sH+1}, 0")
e(f"  v_lshlrev_b32 v{vDC0}, 4, v{t2}")
e(f"  s_or_b32 s{rH+1}, s{rH+1}, {128 << 16}")
e(f"  v_xor_b32 v{vDC1}, 64, v{vDC0}")
e(f"  s_mov_b32 s{rH+2}, 200")
e(f"  v_lshrrev_b32 v{t2}, 3, v{vLane}")
e(f"  s_mov_b32 s{rH+3}, 0x20000")
e(f"  v_add_u32 v{vL}, s{sList}, v{t2}")
vR = [Z + 11, Z + 12, Z + 13, Z + 14]
e(f"  v_lshlrev_b32 v{vR[0]}, 2, v{vLane}")
e(f"  s_mov_b32 s{sK1}, 0xffff")
for i in range(1, 4):
    e(f"  v_add_u32 v{vR[i]}, {i}, v{vR[0]}")
pos = [Z + 2, Z + 3, Z + 4, Z + 5]
prio(1)
vPA = D2
vTA, vQA = Z + 9, Z + 15
vM0, vM1 = D2 + 2, D2 + 3
S = []
S.append(f"  s_mov_b32 s{sK2}, 0xffff0000")
S.append(f"  s_mov_b32 s{sScale}, 0xbfb8aa3b")
S.append(f"  s_mov_b32 s{sScale+1}, 0xbfb8aa3b")
S.append(f"  s_lshr_b32 s{sE0}, s{sWave}, 3")
S.append(f"  s_and_b32 s{sE0+1}, s{sWave}, 1")
S.append(f"  s_bfe_u32 s{sE1}, s{sWave}, 0x20001")
S.append(f"  s_lshl_b32 s{sTmp}, s{sE0}, 11")
S.append(f"  s_lshl_b32 s{sK3}, s{sE0+1}, 10")
S.append(f"  s_add_u32 s{sTmp}, s{sTmp}, s{sK3}")
S.append(f"  s_lshl_b32 s{sK3}, s{sE1}, 8")
S.append(f"  s_add_u32 s{sTmp}, s{sTmp}, s{sK3}")
S.append(f"  s_add_u32 s{sTmp}, s{sTmp}, {PFB}")
S.append(f"  s_lshl_b32 s{sE0}, s{sE0}, 10")
S.append(f"  s_add_u32 s{sE0}, s{sE0}, s{sK3}")
S.append(f"  s_lshl_b32 s{sE0+1}, s{sE0+1}, 3")
S.append(f"  s_add_u32 s{sE0}, s{sE0}, s{sE0+1}")
S.append(f"  s_add_u32 s{sE0}, s{sE0}, {QB}")
S.append(f"  s_add_u32 s{sK3}, s{sRing}, 4096")
S.append(f"  s_lshl_b32 s{sE1}, s{sWave}, 7")
S.append(f"  s_add_u32 s{sE1}, s{sE1}, {TB}")
V = []
V.append(f"  v_and_b32 v{t0}, 15, v{vLane}")
V.append(f"  v_lshrrev_b32 v{t2}, 1, v{t0}")
V.append(f"  v_xor_b32 v{t2}, v{t2}, v{t1}")
V.append(f"  v_lshlrev_b32 v{t2}, 4, v{t2}")
V.append(f"  v_lshl_add_u32 v{t2}, v{t0}, 7, v{t2}")
V.append(f"  v_add_u32 v{vA0}, s{sRing}, v{t2}")
V.append(f"  v_xor_b32 v{vA1}, 64, v{vA0}")
V.append(f"  v_lshrrev_b32 v{t2}, 2, v{t0}")
V.append(f"  v_and_b32 v{RWA}, 3, v{vLane}")
V.append(f"  v_cmp_eq_u32_e64 s[{sC1}:{sC1+1}], v{t2}, v{t1}")
V.append(f"  v_lshlrev_b32 v{RWA}, 3, v{RWA}")
V.append(f"  v_lshl_add_u32 v{RWA}, v{t2}, 7, v{RWA}")
V.append(f"  v_lshl_add_u32 v{RWA}, v{t1}, 5, v{RWA}")
V.append(f"  v_lshl_add_u32 v{t2}, v{t1}, 2, v{t2}")
V.append(f"  v_lshrrev_b32 v{t3}, 1, v{t2}")
V.append(f"  v_bfe_u32 v{t4}, v{vLane}, 1, 1")
V.append(f"  v_xor_b32 v{t3}, v{t3}, v{t4}")
V.append(f"  v_lshlrev_b32 v{t3}, 4, v{t3}")
V.append(f"  v_lshl_add_u32 v{t3}, v{t2}, 7, v{t3}")
V.append(f"  v_and_b32 v{t2}, 1, v{vLane}")
V.append(f"  v_lshl_add_u32 v{t3}, v{t2}, 3, v{t3}")
V.append(f"  v_lshlrev_b32 v{vQ16}, 4, v{t1}")
V.append(f"  v_add_u32 v{vT[0]}, s{sRing}, v{t3}")
V.append(f"  v_lshlrev_b32 v{t0}, 4, v{t0}")
for d in range(1, 4):
    V.append(f"  v_xor_b32 v{vT[d]}, {32*d}, v{vT[0]}")
for i in range(max(len(S), len(V))):
    if i < len(V): e(V[i])
    if i < len(S): e(S[i])
e(f"  v_lshl_add_u32 v{PFA}, v{t1}, 12, v{t0}")
e(f"  v_lshl_add_u32 v{QWA}, v{t1}, 11, v{t0}")
e(f"  v_add_u32 v{RWA}, s{sK3}, v{RWA}")
e(f"  v_add_u32 v{PFA}, s{sTmp}, v{PFA}")
e(f"  v_add_u32 v{QWA}, s{sE0}, v{QWA}")
e(f"  v_add_u32 v{vTA}, s{sE1}, v{vQ16}")
e(f"  v_lshlrev_b32 v{vPA}, 4, v{vLane}")
e(f"  v_add_u32 v{vQA}, {QB}, v{vPA}")
e(f"  v_add_u32 v{vPA}, {PFB}, v{vPA}")
e(f"  v_lshlrev_b32 v{t2}, 4, v{t2}")
e(f"  v_mov_b32 v{t3}, 0xffff")
e(f"  v_lshlrev_b32 v{t3}, v{t2}, v{t3}")
e(f"  v_cmp_gt_u32 vcc, 32, v{vLane}")
e(f"  v_cndmask_b32_e64 v{t3}, 0, v{t3}, s[{sC1}:{sC1+1}]")
e(f"  v_cmp_eq_u32_e64 s[{sC1}:{sC1+1}], 0, v{t4}")
e(f"  v_mov_b32 v{t0}, 0x3f80")
e(f"  v_mov_b32 v{pos[0]}, s{sList}")
e(f"  v_cndmask_b32 v{ONE}, 0, v{t0}, vcc")
e(f"  v_mov_b32 v{ONE+1}, 0")
e(f"  v_cndmask_b32_e64 v{vM0}, 0, v{t3}, s[{sC1}:{sC1+1}]")
e(f"  v_cndmask_b32_e64 v{vM1}, v{t3}, 0, s[{sC1}:{sC1+1}]")
AD = HB + 4
e(f"  s_mov_b32 s{sTmp}, 0x3f803f80")
e(f"  v_and_b32 v{AD}, s{sTmp}, v{vM0}")
e(f"  v_and_b32 v{AD+1}, s{sTmp}, v{vM1}")
if OPT["exact"]:
    e(f"  s_cmp_gt_u32 s{sE2}, 2")
    e("  s_cbranch_scc1 L_mw2")
    e(f"  s_cmp_eq_u32 s{sE2}, 0")
    e("  s_cbranch_scc1 L_mw3")
    e("  s_waitcnt vmcnt(4)")
    e("  s_branch L_mwd")
    e("L_mw3:")
    e("  s_waitcnt vmcnt(3)")
    e("  s_branch L_mwd")
    e("L_mw2:")
e("  s_waitcnt vmcnt(2)")
if OPT["exact"]:
    e("L_mwd:")
stamp(2)
prio(3)
e(f"  v_cmp_ne_u16_e64 s[{sC0}:{sC0+1}], 0, v{X0}")
e(f"  v_cmp_lt_u32_e64 s[{sC1}:{sC1+1}], s{sK1}, v{X0}")
e(f"  v_cmp_ne_u16_e64 s[{sC2}:{sC2+1}], 0, v{X0+1}")
e(f"  v_cmp_lt_u32_e64 s[{sC3}:{sC3+1}], s{sK1}, v{X0+1}")
e(f"  v_mbcnt_lo_u32_b32 v{pos[0]}, s{sC0}, v{pos[0]}")
e(f"  v_mbcnt_hi_u32_b32 v{pos[0]}, s{sC0+1}, v{pos[0]}")
for c in (sC1, sC2, sC3):
    e(f"  v_mbcnt_lo_u32_b32 v{pos[0]}, s{c}, v{pos[0]}")
    e(f"  v_mbcnt_hi_u32_b32 v{pos[0]}, s{c+1}, v{pos[0]}")
e(f"  s_mov_b64 exec, s[{sC0}:{sC0+1}]")
e(f"  ds_write_b8 v{pos[0]}, v{vR[0]}")
e("  s_mov_b64 exec, -1")
e(f"  v_addc_co_u32_e64 v{pos[1]}, s[{sDmy}:{sDmy+1}], 0, v{pos[0]}, s[{sC0}:{sC0+1}]")
e(f"  v_addc_co_u32_e64 v{pos[2]}, s[{sDmy}:{sDmy+1}], 0, v{pos[1]}, s[{sC1}:{sC1+1}]")
e(f"  v_addc_co_u32_e64 v{pos[3]}, s[{sDmy}:{sDmy+1}], 0, v{pos[2]}, s[{sC2}:{sC2+1}]")
for i, c in ((1, sC1), (2, sC2), (3, sC3)):
    e(f"  s_mov_b64 exec, s[{c}:{c+1}]")
    e(f"  ds_write_b8 v{pos[i]}, v{vR[i]}")
e("  s_mov_b64 exec, -1")
e(f"  ds_read_u8 v{vP0}, v{vL}")
e(f"  ds_read_u8 v{vP1}, v{vL} offset:8")
if OPT["e3"]:
    e(f"  ds_read_u8 v{M+8}, v{vL} offset:16")
e(f"  s_bcnt1_i32_b64 s{sN}, s[{sC0}:{sC0+1}]")
e(f"  s_bcnt1_i32_b64 s{sK3}, s[{sC1}:{sC1+1}]")
e(f"  s_add_u32 s{sN}, s{sN}, s{sK3}")
e(f"  s_bcnt1_i32_b64 s{sK3}, s[{sC2}:{sC2+1}]")
e(f"  s_add_u32 s{sN}, s{sN}, s{sK3}")
e(f"  s_bcnt1_i32_b64 s{sK3}, s[{sC3}:{sC3+1}]")
e(f"  s_add_u32 s{sN}, s{sN}, s{sK3}")
e(f"  s_waitcnt lgkmcnt({2 if OPT['e3'] else 1})")
dma(vP0, 0, 0)
e(f"  s_waitcnt lgkmcnt({1 if OPT['e3'] else 0})")
dma(vP1, 0, 1)
if OPT["e3"]:
    if OPT["e3"] > 1:
        e(f"  s_cmp_lt_u32 s{sWave}, {OPT['split']}")
        e(f"  s_cbranch_scc{0 if OPT['e3'] == 2 else 1} L_noe3")
    e("  s_waitcnt lgkmcnt(0)")
    dma(M + 8, 1, 0, f"  v_mov_b32 v{M+9}, v{vDC0}")
    if OPT["e3"] > 1:
        e("  s_waitcnt vmcnt(3)")
        e("  s_branch L_e3d")
        e("L_noe3:")
        e("  s_waitcnt vmcnt(2)")
        e("L_e3d:")
    else:
        e("  s_waitcnt vmcnt(3)")
stamp(3)
prio(2)
RW = M + 16
if not OPT["e3"]:
    e("  s_waitcnt vmcnt(2)")
stamp(4)
for m in range(4):
    e(f"  ds_read_b64_tr_b16 {vr(RW+2*m,2)}, v{RWA} offset:{512*m}")
e(f"  ds_read_u8 v{vP0}, v{vL} offset:16")
e(f"  ds_read_u8 v{vP1}, v{vL} offset:24")
e(f"  s_add_u32 s{sNT}, s{sN}, 15")
e(f"  s_lshr_b32 s{sNT}, s{sNT}, 4")
e(f"  s_movk_i32 s{sTmp}, 0x3f80")
e(f"  v_cmp_eq_u16_e64 s[{sE0}:{sE0+1}], s{sTmp}, v{X0}")
e(f"  v_cmp_eq_u16_e64 s[{sE2}:{sE2+1}], s{sTmp}, v{X0+1}")
e(f"  v_cmp_eq_u16_sdwa s[{sE1}:{sE1+1}], v{X0}, s{sTmp} src0_sel:WORD_1 src1_sel:WORD_0")
e(f"  v_cmp_eq_u16_sdwa s[{sE3}:{sE3+1}], v{X0+1}, s{sTmp} src0_sel:WORD_1 src1_sel:WORD_0")
e(f"  s_xor_b64 s[{sBad}:{sBad+1}], s[{sE0}:{sE0+1}], s[{sC0}:{sC0+1}]")
e(f"  s_xor_b64 s[{sE2}:{sE2+1}], s[{sE2}:{sE2+1}], s[{sC2}:{sC2+1}]")
e(f"  s_or_b64 s[{sBad}:{sBad+1}], s[{sBad}:{sBad+1}], s[{sE2}:{sE2+1}]")
for a_, b_ in ((sE1, sC1), (sE3, sC3)):
    e(f"  s_xor_b64 s[{a_}:{a_+1}], s[{a_}:{a_+1}], s[{b_}:{b_+1}]")
    e(f"  s_or_b64 s[{sBad}:{sBad+1}], s[{sBad}:{sBad+1}], s[{a_}:{a_+1}]")
e(f"  s_cmp_lg_u64 s[{sBad}:{sBad+1}], 0")
if OPT["ool"]:
    e("  s_cbranch_scc1 L_genmask")
    ctx = OutOfLine("L_genmask", "L_binmask"); ctx.__enter__()
else:
    e("  s_cbranch_scc0 L_binmask")
e(f"  s_add_u32 s{sTmp}, s{sRing}, {MOFF}")
for i in range(4):
    e(f"  v_mov_b32 v{M+i}, 0")
e(f"  v_lshl_add_u32 v{Z+6}, v{vLane}, 4, s{sTmp}")
e(f"  ds_write_b128 v{Z+6}, {vr(M,4)}")
e(f"  v_add_u32 v{vML}, s{sTmp}, v{vQ16}")
e(f"  v_lshlrev_b32 v{M+4}, 16, v{X0}")
e(f"  v_and_b32 v{M+5}, s{sK2}, v{X0}")
e(f"  v_lshlrev_b32 v{M+6}, 16, v{X0+1}")
e(f"  v_and_b32 v{M+7}, s{sK2}, v{X0+1}")
for i in range(4):
    e(f"  v_subrev_u32 v{pos[i]}, s{sList}, v{pos[i]}")
    e(f"  v_lshl_add_u32 v{pos[i]}, v{pos[i]}, 2, s{sTmp}")
for i, c in enumerate((sC0, sC1, sC2, sC3)):
    e(f"  s_mov_b64 exec, s[{c}:{c+1}]")
    e(f"  ds_write_b32 v{pos[i]}, v{M+4+i}")
e("  s_mov_b64 exec, -1")
if OPT["ool"]:
    ctx.__exit__()
e("L_binmask:")
W1R = M
Wa, Wc, Wd, Wb_ = W1R, W1R + 4, W1R + 8, W1R + 12
e("  s_waitcnt lgkmcnt(0)")
for m in range(4):
    for r in range(2):
        e(f"  v_lshlrev_b32 v{W1R+4*m+2*r}, 16, v{RW+2*m+r}")
        e(f"  v_and_b32 v{W1R+4*m+2*r+1}, s{sK2}, v{RW+2*m+r}")
for p in range(2):
    e(f"  v_pk_add_f32 {vr(Wa+2*p,2)}, {vr(Wa+2*p,2)}, {vr(Wc+2*p,2)}")
for p in range(2):
    e(f"  v_pk_add_f32 {vr(Wb_+2*p,2)}, {vr(Wb_+2*p,2)}, {vr(Wc+2*p,2)} neg_lo:[0,1] neg_hi:[0,1]")
for base in (Wa, Wd, Wb_):
    for p in range(2):
        e(f"  v_pk_mul_f32 {vr(base+2*p,2)}, {vr(base+2*p,2)}, s[{sScale}:{sScale+1}]")
e(f"  v_cvt_pk_bf16_f32 v{RW+2}, v{Wd}, v{Wd+1}")
e(f"  v_cvt_pk_bf16_f32 v{RW+3}, v{Wd+2}, v{Wd+3}")
e(f"  v_cvt_pk_bf16_f32 v{RW}, v{Wa}, v{Wa+1}")
e(f"  v_cvt_pk_bf16_f32 v{RW+1}, v{Wa+2}, v{Wa+3}")
e(f"  v_cvt_pk_bf16_f32 v{RW+6}, v{Wb_}, v{Wb_+1}")
e(f"  v_cvt_pk_bf16_f32 v{RW+7}, v{Wb_+2}, v{Wb_+3}")
e(f"  ds_write_b128 v{PFA}, {vr(RW,4)}")
e(f"  ds_write_b64 v{QWA}, {vr(RW+6,2)}")
if OPT["ool"] == 1:
    e(f"  s_sub_u32 s{sE2}, s{sWave}, {SP0}")
    e(f"  s_cmp_le_u32 s{sE2}, 2")
    e("  s_cbranch_scc1 L_pub")
    ctx = OutOfLine("L_pub", "L_nosmall2"); ctx.__enter__()
e(f"  s_cmp_eq_u32 s{sWave}, {SP0}")
e("  s_cbranch_scc0 L_nb1")
e(f"  v_mul_f32 v{SB1}, s{sScale}, v{SB1}")
e(f"  v_lshlrev_b32 v{M+26}, 2, v{vLane}")
e(f"  ds_write_b32 v{M+26}, v{SB1} offset:{BB}")
e("L_nb1:")
e(f"  s_cmp_eq_u32 s{sWave}, {SP0+2}")
e("  s_cbranch_scc0 L_nosmall2")
e(f"  v_and_b32 v{M+26}, 15, v{vLane}")
e(f"  v_lshlrev_b32 v{M+26}, 2, v{M+26}")
e(f"  ds_write_b32 v{M+26}, v{SB2} offset:{B2B}")
if OPT["sharec"]:
    e(f"  v_mov_b32 v{M+26}, 0")
    e(f"  ds_write_b32 v{M+26}, v{M+26} offset:{CFLAG}")
if OPT["ool"] == 1:
    ctx.__exit__()
e("L_nosmall2:")
e("  s_waitcnt lgkmcnt(0)")
e("  s_barrier")
stamp(5)
prio(OPT["mprio"])
e(f"  ds_read_b128 {vr(HT,4)}, v{vTA}")
e(f"  ds_read_b128 {vr(HT+4,4)}, v{vTA} offset:64")
if not OPT["sharec"]:
    for tau in range(4):
        e(f"  ds_read_b128 {vr(C+4*tau,4)}, v{vQ16} offset:{BB+64*tau}")
    for g in range(8):
        e(f"  ds_read_b128 {vr(M+4*g,4)}, v{vQA} offset:{1024*g}")
else:
    e(f"  s_sub_u32 s{sE2}, s{sWave}, {OPT['cw0']}")
    e(f"  s_cmp_lt_u32 s{sE2}, 4")
    if OPT["ool"] == 1:
        e("  s_cbranch_scc1 L_cwave")
        ctx = OutOfLine("L_cwave", "L_noc"); ctx.__enter__()
    else:
        e("  s_cbranch_scc0 L_noc")
    e(f"  v_and_b32 v{M}, 15, v{vLane}")
    e(f"  s_lshl_b32 s{sTmp}, s{sE2}, 11")
    e(f"  v_lshl_add_u32 v{M+1}, v{M}, 7, v{vQ16}")
    e(f"  v_add_u32 v{M+2}, s{sTmp}, v{vQA}")
    e(f"  s_lshl_b32 s{sTmp}, s{sE2}, 6")
    e(f"  v_add_u32 v{M+3}, s{sTmp}, v{vQ16}")
    e(f"  ds_read_b128 {vr(M+4,4)}, v{M+1} offset:{TB}")
    e(f"  ds_read_b128 {vr(M+8,4)}, v{M+1} offset:{TB+64}")
    e(f"  ds_read_b128 {vr(M+12,4)}, v{M+2}")
    e(f"  ds_read_b128 {vr(M+16,4)}, v{M+2} offset:1024")
    e(f"  ds_read_b128 {vr(M+20,4)}, v{M+3} offset:{BB}")
    e(f"  v_mul_u32_u24 v{M}, {CSTR}, v{M}")
    e(f"  v_add_u32 v{M}, v{M}, v{M+3}")
    e(f"  v_add_u32 v{M}, {CB}, v{M}")
    e(f"  v_mov_b32 v{M+1}, 1")
    e(f"  v_mov_b32 v{M+2}, 0")
    e("  s_waitcnt lgkmcnt(0)")
    e(f"  v_mfma_f32_16x16x32_bf16 {vr(M+20,4)}, {vr(M+12,4)}, {vr(M+4,4)}, {vr(M+20,4)}")
    e(f"  v_mfma_f32_16x16x32_bf16 {vr(M+20,4)}, {vr(M+16,4)}, {vr(M+8,4)}, {vr(M+20,4)}")
    e("  s_nop 7")
    e(f"  ds_write_b128 v{M}, {vr(M+20,4)}")
    e("  s_waitcnt lgkmcnt(0)")
    e("  s_mov_b64 exec, 1")
    e(f"  ds_add_u32 v{M+2}, v{M+1} offset:{CFLAG}")
    e("  s_mov_b64 exec, -1")
    if OPT["ool"] == 1:
        ctx.__exit__()
    e("L_noc:")
nlab = [0]
def cond_block(old_here, young_here, body):
    if not (old_here or young_here):
        return
    nlab[0] += 1
    lab_ = nlab[0]
    if old_here != young_here:
        e(f"  s_cmp_lt_u32 s{sWave}, {OPT['split']}")
        e(f"  s_cbranch_scc{0 if old_here else 1} L_rd{lab_}")
    body()
    if old_here != young_here:
        e(f"L_rd{lab_}:")
def idx2():
    e(f"  ds_read_u8 v{vP0}, v{vL} offset:32")
    e(f"  ds_read_u8 v{vP1}, v{vL} offset:40")
def ring_dma(posn):
    def t1():
        if OPT["e3"] == 0:
            dma(vP0, 1, 0)
        elif OPT["e3"] > 1:
            nlab[0] += 1
            l_ = nlab[0]
            e(f"  s_cmp_lt_u32 s{sWave}, {OPT['split']}")
            e(f"  s_cbranch_scc{1 if OPT['e3'] == 2 else 0} L_e3s{l_}")
            dma(vP0, 1, 0)
            e(f"L_e3s{l_}:")
        dma(vP1, 1, 1)
        if posn != -2:
            idx2()
    def t2():
        e("  s_waitcnt lgkmcnt(0)")
        dma(vP0, 2, 0)
        if OPT["dist"] != 25:
            dma(vP1, 2, 1)
    if posn == -1:
        cond_block(OPT["p1"] == -2, OPT["q1"] == -2, idx2)
    cond_block(OPT["p1"] == posn, OPT["q1"] == posn, t1)
    if OPT["dist"] in (3, 25):
        cond_block(OPT["p2"] == posn, OPT["q2"] == posn, t2)
B0 = [D3 + 4*i for i in range(4)]
B1 = [W2, W2 + 4, W2 + 8, HB]
BUFS = [B0, B1]
def mread(g):
    s, h = g >> 1, g & 1
    for tau in range(4):
        e(f"  ds_read_b128 {vr(BUFS[g&1][tau],4)}, v{vPA} offset:{tau*4096+s*2048+h*1024}")
ring_dma(-2)
if not OPT["sharec"]:
    for g in range(8):
        e(f"  s_waitcnt lgkmcnt({7-g})")
        tau, s = g >> 1, g & 1
        e(f"  v_mfma_f32_16x16x32_bf16 {vr(C+4*tau,4)}, {vr(M+4*g,4)}, {vr(HT+4*s,4)}, {vr(C+4*tau,4)}")
ring_dma(-1)
mread(0)
DT = [Z, Z + 4, Z + 8, Z + 12]
if OPT["sharec"]:
    e("  s_waitcnt lgkmcnt(4)")
e(f"  v_and_b32 v{AD+2}, v{HT}, v{vM0}")
e(f"  v_and_b32 v{AD+3}, v{HT+1}, v{vM1}")
def m_mfma(g, dst):
    for tau in range(4):
        e(f"  v_mfma_f32_16x16x32_bf16 {vr(dst+4*tau,4)}, {vr(AD,4)}, {vr(BUFS[g&1][tau],4)}, 0")
def m_and(g):
    s2, h2 = g >> 1, g & 1
    e(f"  v_and_b32 v{AD+2}, v{HT+4*s2+2*h2}, v{vM0}")
    e(f"  v_and_b32 v{AD+3}, v{HT+4*s2+2*h2+1}, v{vM1}")
def m_cvt(g, src):
    s, h = g >> 1, g & 1
    for tau in range(4):
        for p in range(2):
            e(f"  v_cvt_pk_bf16_f32 v{M+8*tau+4*s+2*h+p}, v{src+4*tau+2*p}, v{src+4*tau+2*p+1}")
if OPT["mpipe"]:
    assert OPT["sharec"] and OPT["earlyc"]
    mread(1)
    e("  s_waitcnt lgkmcnt(4)")
    m_mfma(0, Z)
    m_and(1)
    mread(2)
    e("  s_waitcnt lgkmcnt(4)")
    m_mfma(1, C)
    m_and(2)
    m_cvt(0, Z)
    ring_dma(0)
    mread(3)
    e("  s_waitcnt lgkmcnt(4)")
    m_mfma(2, Z)
    m_and(3)
    m_cvt(1, C)
    ring_dma(1)
    e("  s_waitcnt lgkmcnt(0)")
    m_mfma(3, C)
    e(f"  v_mov_b32 v{AD}, 0")
    e(f"  s_mul_i32 s{sTmp2}, s{sWave}, {CSTR}")
    e(f"  ds_read_b32 v{AD+1}, v{AD} offset:{CFLAG}")
    e(f"  ds_read_b128 {vr(W2,4)}, v{vQ16} offset:{W2A}")
    e(f"  ds_read_b128 {vr(W2+4,4)}, v{vQ16} offset:{W2C}")
    e(f"  ds_read_b128 {vr(B2,4)}, v{vQ16} offset:{B2B}")
    e(f"  s_add_u32 s{sTmp2}, s{sTmp2}, {CB}")
    e(f"  v_add_u32 v{AD+2}, s{sTmp2}, v{vQ16}")
    m_cvt(2, Z)
    ring_dma(2)
    m_cvt(3, C)
    ring_dma(3)
else:
    for g in range(4):
        s, h = g >> 1, g & 1
        if g < 3:
            mread(g + 1)
        e(f"  s_waitcnt lgkmcnt({4 if g < 3 else 0})")
        for tau in range(4):
            e(f"  v_mfma_f32_16x16x32_bf16 {vr(DT[tau],4)}, {vr(AD,4)}, {vr(BUFS[g&1][tau],4)}, 0")
        if g < 3:
            s2, h2 = (g + 1) >> 1, (g + 1) & 1
            e(f"  v_and_b32 v{AD+2}, v{HT+4*s2+2*h2}, v{vM0}")
            e(f"  v_and_b32 v{AD+3}, v{HT+4*s2+2*h2+1}, v{vM1}")
            e("  s_nop 2")
        elif OPT["sharec"] and OPT["earlyc"]:
            e(f"  v_mov_b32 v{AD}, 0")
            e(f"  s_mul_i32 s{sTmp2}, s{sWave}, {CSTR}")
            e(f"  ds_read_b32 v{AD+1}, v{AD} offset:{CFLAG}")
            e(f"  ds_read_b128 {vr(W2,4)}, v{vQ16} offset:{W2A}")
            e(f"  ds_read_b128 {vr(W2+4,4)}, v{vQ16} offset:{W2C}")
            e(f"  ds_read_b128 {vr(B2,4)}, v{vQ16} offset:{B2B}")
            e(f"  s_add_u32 s{sTmp2}, s{sTmp2}, {CB}")
            e(f"  v_add_u32 v{AD+2}, s{sTmp2}, v{vQ16}")
        else:
            e("  s_nop 4")
        for tau in range(4):
            for p in range(2):
                e(f"  v_cvt_pk_bf16_f32 v{M+8*tau+4*s+2*h+p}, v{DT[tau]+2*p}, v{DT[tau]+2*p+1}")
        ring_dma(g)
if OPT["sharec"] and OPT["earlyc"]:
    e("  s_waitcnt lgkmcnt(3)")
    e("L_cpoll:")
    e(f"  v_readfirstlane_b32 s{sTmp}, v{AD+1}")
    e(f"  s_cmp_ge_u32 s{sTmp}, 4")
    e("  s_cbranch_scc1 L_cready")
    e(f"  ds_read_b32 v{AD+1}, v{AD} offset:{CFLAG}")
    e("  s_waitcnt lgkmcnt(0)")
    e("  s_branch L_cpoll")
    e("L_cready:")
    for tau in range(4):
        e(f"  ds_read_b128 {vr(C+4*tau,4)}, v{AD+2} offset:{64*tau}")
else:
    if OPT["sharec"]:
        e(f"  v_mov_b32 v{HB}, 0")
        e(f"  s_mul_i32 s{sTmp}, s{sWave}, {CSTR}")
        e(f"  s_add_u32 s{sTmp}, s{sTmp}, {CB}")
        e(f"  v_add_u32 v{HB+1}, s{sTmp}, v{vQ16}")
        e("L_cpoll:")
        e(f"  ds_read_b32 v{HB+2}, v{HB} offset:{CFLAG}")
        e("  s_waitcnt lgkmcnt(0)")
        e(f"  v_readfirstlane_b32 s{sTmp}, v{HB+2}")
        e(f"  s_cmp_lt_u32 s{sTmp}, 4")
        e("  s_cbranch_scc1 L_cpoll")
        for tau in range(4):
            e(f"  ds_read_b128 {vr(C+4*tau,4)}, v{HB+1} offset:{64*tau}")
    e(f"  ds_read_b128 {vr(W2,4)}, v{vQ16} offset:{W2A}")
    e(f"  ds_read_b128 {vr(W2+4,4)}, v{vQ16} offset:{W2C}")
    e(f"  ds_read_b128 {vr(B2,4)}, v{vQ16} offset:{B2B}")
ring_dma(4)
e(f"  s_mov_b32 s{sC0}, 0xffff0000")
e(f"  s_mov_b32 s{sC0+1}, 0")
e(f"  s_mov_b32 s{sC1}, 0")
e(f"  s_mov_b32 s{sC1+1}, 0xffff")
e(f"  s_mov_b32 s{sC2}, 0")
e(f"  s_mov_b32 s{sC2+1}, 0xffff0000")
e(f"  s_lshl_b32 s{sE3}, s{sB}, 7")
if OPT["tab2"]:
    def pack(d):
        d = f"{d:04d}"
        return sum(int(c) << (4 * i) for i, c in enumerate(d))
    e(f"  s_lshr_b32 s42, s{sWave}, 2")
    e(f"  s_lshl_b32 s42, s42, 2")
    e(f"  s_lshr_b32 s40, {pack(OPT['tab2'])}, s42")
    e(f"  s_lshr_b32 s41, {pack(OPT['tab1'])}, s42")
    e(f"  s_and_b32 s40, s40, 15")
    e(f"  s_and_b32 s41, s41, 15")
e(f"  v_mov_b32 v{D2+2}, 0")
e(f"  v_mov_b32 v{D2+3}, 0")
e(f"  v_add_u32 v{vL}, {32 if (OPT['dist'] == 25 or OPT['hyb']) else 16*OPT['dist']}, v{vL}")
if OPT["hyb"]:
    e(f"  s_mov_b32 s{sN}, s{sNT}")
    e(f"  s_mov_b32 s{sK3}, 3")
e("  s_nop 0")
e(f"  v_mfma_f32_32x32x8_bf16 {vr(D3,16)}, {vr(D2+2,2)}, {vr(D2+2,2)}, 0")
e("  s_waitcnt lgkmcnt(0)")
stamp(6)
if OPT["stamp"]:
    e(f"  s_waitcnt vmcnt(4)")
    stamp(7)
if OPT["acc"]:
    e("  s_mov_b32 s44, 0")
    e("  s_mov_b32 s45, 0")
prio(2)
e(f"  s_cmp_eq_u32 s{sNT}, 0")
e("  s_cbranch_scc1 L_out")
e(f"  s_cmp_lg_u64 s[{sBad}:{sBad+1}], 0")
e("  s_cbranch_scc1 L_gen0")

lab = [0]
tails = []
D25 = OPT["dist"] == 25
DIST = 3 if D25 else OPT["dist"]
def tile(slot, general, lab_exit):
    so = slot * 2048
    sd_ = ((slot + DIST) % NS) * 2048
    lab[0] += 1
    k = lab[0]
    if OPT["acc"]:
        e("  s_memtime s[40:41]")
        e("  s_waitcnt lgkmcnt(0)")
    HYB = OPT["hyb"]
    if OPT["ool"] and HYB:
        e(f"  s_cmp_ge_u32 s{sNT}, {HYB - 1}")
        e(f"  s_cbranch_scc1 L_w4{k}")
        e(f"  s_cmp_gt_u32 s{sNT}, 1")
        e(f"  s_cbranch_scc1 L_w2{k}")
        e("  s_waitcnt vmcnt(0)")
        e(f"L_w2{k}:")
        e("  s_waitcnt vmcnt(2)")
        e(f"L_w4{k}:")
        e("  s_waitcnt vmcnt(4)")
    else:
        e(f"  s_cmp_ge_u32 s{sNT}, {HYB - 1 if HYB else DIST}")
        e(f"  s_cbranch_scc0 L_tw{k}")
        e(f"  s_waitcnt vmcnt({3 if D25 else 2*(DIST-1)})")
    e(f"L_aw{k}:")
    if OPT["acc"]:
        e("  s_memtime s[42:43]")
        e("  s_waitcnt lgkmcnt(0)")
        e("  s_sub_u32 s40, s42, s40")
        e("  s_add_u32 s44, s44, s40")
    tails.append(k)
    e(f"  ds_read_b128 {vr(HB,4)}, v{vA0} offset:{so}")
    e(f"  ds_read_b128 {vr(HB+4,4)}, v{vA1} offset:{so}")
    for d in range(4):
        e(f"  ds_read_b64_tr_b16 {vr(HT+2*d,2)}, v{vT[d]} offset:{so}")
    if D25:
        e(f"  ds_read_u8 v{vP0}, v{vL} offset:{16*slot+16}")
        e(f"  ds_read_u8 v{vP1}, v{vL} offset:{16*slot+8}")
    elif HYB:
        e(f"  s_cmp_ge_u32 s{sNT}, {HYB}")
        e(f"  s_cbranch_scc0 L_i2{k}")
        e(f"  ds_read_u8 v{vP0}, v{vL} offset:{16*slot+16}")
        e(f"  ds_read_u8 v{vP1}, v{vL} offset:{16*slot+24}")
        e(f"  s_branch L_i3{k}")
        e(f"L_i2{k}:")
        e(f"  ds_read_u8 v{vP0}, v{vL} offset:{16*slot}")
        e(f"  ds_read_u8 v{vP1}, v{vL} offset:{16*slot+8}")
        e(f"L_i3{k}:")
    else:
        e(f"  ds_read_u8 v{vP0}, v{vL} offset:{16*slot}")
        e(f"  ds_read_u8 v{vP1}, v{vL} offset:{16*slot+8}")
    nrd = 8
    if OPT["prio"] and OPT["lprio"]:
        e(f"  s_cmp_gt_u32 s{sNT}, {'s40' if OPT['tab2'] else OPT['t2']}")
        e(f"  s_cbranch_scc1 L_p{k}")
        e(f"  s_setprio 1")
        e(f"  s_cmp_gt_u32 s{sNT}, {'s41' if OPT['tab2'] else OPT['t1']}")
        e(f"  s_cbranch_scc1 L_p{k}")
        e(f"  s_setprio 0")
        e(f"L_p{k}:")
    e(f"  s_waitcnt lgkmcnt({nrd-1})")
    for tau in range(4):
        e(f"  v_mfma_f32_16x16x32_bf16 {vr(Z+4*tau,4)}, {vr(M+8*tau,4)}, {vr(HB,4)}, {vr(C+4*tau,4)}")
    e(f"  s_waitcnt lgkmcnt({nrd-2})")
    for tau in range(4):
        e(f"  v_mfma_f32_16x16x32_bf16 {vr(Z+4*tau,4)}, {vr(M+8*tau+4,4)}, {vr(HB+4,4)}, {vr(Z+4*tau,4)}")
    e("  s_nop 4")
    for i in range(16):
        e(f"  v_exp_f32 v{Z+i}, v{Z+i}")
    e("  s_nop 1")
    e(f"  v_mfma_f32_32x32x8_bf16 {vr(Z,16)}, {vr(ONE,2)}, {vr(ONE,2)}, {vr(Z,16)}")
    if OPT["dsplit"]:
        e("  s_waitcnt lgkmcnt(0)")
        e(f"  s_cmp_gt_u32 s{sNT}, {NS}")
        e(f"  s_cbranch_scc0 L_nh{k}")
        e(f"  s_add_u32 m0, s{sRing}, {so}")
        e("  s_nop 0")
        e(f"  buffer_load_dwordx4 {vr(vP0,2)}, s[{rH}:{rH+3}], 0 idxen offen{OPT['nt_hist']} lds")
        e(f"L_nh{k}:")
        e("  s_nop 8")
    else:
        e("  s_nop 11")
    for i in range(16):
        e(f"  v_rcp_f32 v{Z+i}, v{Z+i}")
    for i in range(8):
        e(f"  v_cvt_pk_bf16_f32 v{HB+i}, v{Z+2*i}, v{Z+2*i+1}")
    if general:
        e(f"  ds_read_b128 {vr(MK,4)}, v{vML} offset:{64*slot}")
    else:
        e("  s_nop 0")
    e(f"  v_mfma_f32_16x16x32_bf16 {vr(D2,4)}, {vr(HB,4)}, {vr(W2,4)}, {vr(B2,4)}")
    e(f"  v_mfma_f32_16x16x32_bf16 {vr(D2,4)}, {vr(HB+4,4)}, {vr(W2+4,4)}, {vr(D2,4)}")
    if slot == NS - 1 and general:
        e(f"  v_add_u32 v{vML}, {64*NS}, v{vML}")
    e("  s_nop 7")
    e("  s_waitcnt lgkmcnt(0)")
    if general:
        for i in range(4):
            e(f"  v_mul_f32 v{D2+i}, v{MK+i}, v{D2+i}")
    e(f"  v_cvt_pk_bf16_f32 v{SP}, v{D2}, v{D2+1}")
    e(f"  v_cvt_pk_bf16_f32 v{SP+1}, v{D2+2}, v{D2+3}")
    e(f"  s_cmp_gt_u32 s{sNT}, {HYB - 1 if HYB else (2 if D25 else DIST)}")
    e("  s_nop 0")
    for d in range(4):
        e(f"  v_mfma_f32_16x16x16_bf16 {vr(D3+4*d,4)}, {vr(SP,2)}, {vr(HT+2*d,2)}, {vr(D3+4*d,4)}")
    if OPT["acc"]:
        e("  s_memtime s[40:41]")
        e("  s_waitcnt lgkmcnt(0)")
    e(f"  s_cbranch_scc0 {'L_h2' if HYB else 'L_nd'}{k}")
    if D25:
        e(f"  s_add_u32 m0, s{sRing}, {((slot + 2) % NS) * 2048 + 1024}")
        e(f"  s_cmp_gt_u32 s{sNT}, 3")
        e(f"  buffer_load_dwordx4 {vr(vP1,2)}, s[{rH}:{rH+3}], 0 idxen offen{OPT['nt_hist']} lds")
        e(f"  s_cbranch_scc0 L_nd{k}")
        e(f"  s_add_u32 m0, s{sRing}, {so}")
        e("  s_nop 0")
        e(f"  buffer_load_dwordx4 {vr(vP0,2)}, s[{rH}:{rH+3}], 0 idxen offen{OPT['nt_hist']} lds")
    elif not OPT["dsplit"]:
        e(f"  s_add_u32 m0, s{sRing}, {sd_}")
        e("  s_nop 0")
        e(f"  buffer_load_dwordx4 {vr(vP0,2)}, s[{rH}:{rH+3}], 0 idxen offen{OPT['nt_hist']} lds")
    if not D25:
        e(f"  s_add_u32 m0, s{sRing}, {sd_+1024}")
        e("  s_nop 0")
        e(f"  buffer_load_dwordx4 {vr(vP1,2)}, s[{rH}:{rH+3}], 0 idxen offen{OPT['nt_hist']} lds")
    if HYB:
        e(f"  s_add_u32 s{sK3}, s{sK3}, 1")
        e(f"  s_branch L_nd{k}")
        e(f"L_h2{k}:")
        e(f"  s_sub_u32 s{sTmp}, s{sN}, s{sNT}")
        e(f"  s_add_u32 s{sTmp}, s{sTmp}, 2")
        e(f"  s_cmp_eq_u32 s{sTmp}, s{sK3}")
        e(f"  s_cbranch_scc0 L_nd{k}")
        e(f"  s_cmp_gt_u32 s{sNT}, 2")
        e(f"  s_cbranch_scc0 L_nd{k}")
        e(f"  s_add_u32 m0, s{sRing}, {((slot + 2) % NS) * 2048}")
        e(f"  s_add_u32 s{sK3}, s{sK3}, 1")
        e(f"  buffer_load_dwordx4 {vr(vP0,2)}, s[{rH}:{rH+3}], 0 idxen offen{OPT['nt_hist']} lds")
        e(f"  s_add_u32 m0, s{sRing}, {((slot + 2) % NS) * 2048 + 1024}")
        e("  s_nop 0")
        e(f"  buffer_load_dwordx4 {vr(vP1,2)}, s[{rH}:{rH+3}], 0 idxen offen{OPT['nt_hist']} lds")
    e(f"L_nd{k}:")
    if OPT["acc"]:
        e("  s_memtime s[42:43]")
        e("  s_waitcnt lgkmcnt(0)")
        e("  s_sub_u32 s40, s42, s40")
        e("  s_add_u32 s45, s45, s40")
    if slot == NS - 1:
        e(f"  v_add_u32 v{vL}, {16*NS}, v{vL}")
    e(f"  s_sub_u32 s{sNT}, s{sNT}, 1")
    e(f"  s_cmp_eq_u32 s{sNT}, 0")
    e(f"  s_cbranch_scc1 {lab_exit}")

e("L_bin0:")
for slot in range(NS):
    tile(slot, False, "L_out")
e("  s_branch L_bin0")
e("L_gen0:")
for slot in range(NS):
    tile(slot, True, "L_out")
e("  s_branch L_gen0")
for k in ([] if (OPT["ool"] and OPT["hyb"]) else tails):
    e(f"L_tw{k}:")
    if OPT["hyb"]:
        e(f"  s_cmp_gt_u32 s{sNT}, 1")
        e(f"  s_cbranch_scc0 L_tw{k}_1")
        e("  s_waitcnt vmcnt(2)")
        e(f"  s_branch L_aw{k}")
        e(f"L_tw{k}_1:")
    for r in range((1 if OPT["hyb"] else DIST - 1), 1, -1):
        e(f"  s_cmp_eq_u32 s{sNT}, {r}")
        e(f"  s_cbranch_scc0 L_tw{k}_{r}")
        e(f"  s_waitcnt vmcnt({2*(r-1)})")
        e(f"  s_branch L_aw{k}")
        e(f"L_tw{k}_{r}:")
    e("  s_waitcnt vmcnt(0)")
    e(f"  s_branch L_aw{k}")

e("L_out:")
stamp(8)
e("  s_nop 7")
e(f"  v_lshl_add_u32 v{Z}, v{vLane}, 1, s{sE3}")
e(f"  v_cndmask_b32_e64 v{Z+1}, v{D3}, v{D3+4}, s[{sC0}:{sC0+1}]")
e(f"  v_cndmask_b32_e64 v{Z+1}, v{Z+1}, v{D3+8}, s[{sC1}:{sC1+1}]")
e(f"  v_cndmask_b32_e64 v{Z+1}, v{Z+1}, v{D3+12}, s[{sC2}:{sC2+1}]")
e(f"  v_cvt_pk_bf16_f32 v{Z+1}, v{Z+1}, v{Z+1}")
e(f"  global_store_short v{Z}, v{Z+1}, s[{sO}:{sO+1}]{OPT['nt_out']}")
if OPT["endwait"] or OPT["stamp"]:
    e("  s_waitcnt vmcnt(0)")
if OPT["stamp"]:
    stamp(9)
    e(f"  s_getreg_b32 s{STAMP0}, hwreg(HW_REG_XCC_ID)")
    e(f"  v_writelane_b32 v{vST}, s{STAMP0}, 10")
    e(f"  v_writelane_b32 v{vST}, s{sN}, 11")
    if OPT["acc"]:
        e(f"  v_writelane_b32 v{vST}, s44, 14")
        e(f"  v_writelane_b32 v{vST}, s45, 15")
    e(f"  s_lshl_b32 s{sTmp}, s{sB}, 6")
    e(f"  s_add_u32 s88, s86, s{sTmp}")
    e(f"  s_addc_u32 s89, s87, 0")
    e(f"  s_and_b32 s89, s89, 0xffff")
    e(f"  s_mov_b32 s90, 64")
    e(f"  s_mov_b32 s91, 0x20000")
    e(f"  v_lshlrev_b32 v{Z}, 2, v{vLane}")
    e(f"  buffer_store_dword v{vST}, v{Z}, s[88:91], 0 offen")
    e("  s_waitcnt vmcnt(0)")
e("L_end:")
e("  s_endpgm")
out.extend(cold)
e('.section .rodata,"a"')
e(".p2align 6")
e(f".amdhsa_kernel {NAME}_kernel")
e("  .amdhsa_next_free_vgpr 128")
e("  .amdhsa_next_free_sgpr 96")
e("  .amdhsa_accum_offset 128")
e("  .amdhsa_group_segment_fixed_size 0")
e("  .amdhsa_kernarg_size 80")
e("  .amdhsa_user_sgpr_count 2")
e("  .amdhsa_user_sgpr_kernarg_segment_ptr 1")
e("  .amdhsa_system_sgpr_workgroup_id_x 1")
e("  .amdhsa_float_denorm_mode_32 3")
e(".end_amdhsa_kernel")
open(sys.argv[1], "w").write("\n".join(x for x in out if x is not None) + "\n")
```
